```python
import torch

def _softmax(x, axis=-1):
    return torch.softmax(x, dim=axis)
def _gelu(x):
    return torch.nn.functional.gelu(x, approximate="tanh")
def _silu(x):
    return torch.nn.functional.silu(x)
def _sigmoid(x):
    return torch.sigmoid(x)
def _layernorm(x, axis=-1, eps=1e-5):
    m = x.mean(dim=axis, keepdim=True)
    v = x.var(dim=axis, keepdim=True, unbiased=False)
    return (x - m) / torch.sqrt(v + eps)
def _scatter_add(tgt, idx, src, axis=0):
    return tgt.clone().index_add_(axis, idx, src)
def _segment_sum(src, seg, n):
    out = torch.zeros((n,) + src.shape[1:], dtype=src.dtype)
    return out.index_add_(0, seg, src)
def _pad(x, pw):
    flat = tuple(v for pair in reversed(pw) for v in pair)
    return torch.nn.functional.pad(x, flat)

kernel_name = 'concat_heads__ssm_conv_s4__softmax_full_mha__prompt'

def setup_inputs():

    _w = (lambda a: (lambda t: t.to(torch.bfloat16) if t.is_floating_point() else t)(torch.as_tensor(a)))
    def _A_setup():
        B, L, D, N = 1, 2048, 576, 128
        A_re = -(lambda _x: torch.exp(torch.as_tensor(_x)))((lambda *s: torch.randn(*s, dtype=torch.bfloat16) * 6.4)(D, N))
        A_im = torch.pi * (lambda *s: torch.randn(*s, dtype=torch.bfloat16) * 0.1)(D, N)
        B_re = (lambda *s: torch.randn(*s, dtype=torch.bfloat16) * 0.2)(D, N)
        B_im = (lambda *s: torch.randn(*s, dtype=torch.bfloat16) * 0.2)(D, N)
        C_re = (lambda *s: torch.randn(*s, dtype=torch.bfloat16) * 0.2)(D, N)
        C_im = (lambda *s: torch.randn(*s, dtype=torch.bfloat16) * 0.2)(D, N)
        log_dt = (lambda *s: torch.randn(*s, dtype=torch.bfloat16) * 0.1)(D) * 0.5 - 4.0
        Dskip = (lambda *s: torch.randn(*s, dtype=torch.bfloat16) * 0.1)(D)
        return {
            "u": _w((lambda *s: torch.randn(*s, dtype=torch.bfloat16) * 0.05)(B, L, D)),
            "A_re": _w(A_re),
            "A_im": _w(A_im),
            "B_re": _w(B_re),
            "B_im": _w(B_im),
            "C_re": _w(C_re),
            "C_im": _w(C_im),
            "log_dt": _w(log_dt),
            "Dskip": _w(Dskip),
        }
    _A_in = _A_setup()

    def _B_setup():
        B, S, D = 1, 2048, 576
        return {
            "x": _w((lambda *s: torch.randn(*s, dtype=torch.bfloat16) * 0.2)(B, S, D)),
            "wqkv": _w((lambda *s: torch.randn(*s, dtype=torch.bfloat16) * 0.2)(D, 3 * D)),
            "wo": _w((lambda *s: torch.randn(*s, dtype=torch.bfloat16) * 0.05)(D, D)),
        }
    _B_in = _B_setup()

    return {
        "A_u": _A_in["u"],
        "A_A_re": _A_in["A_re"],
        "A_A_im": _A_in["A_im"],
        "A_B_re": _A_in["B_re"],
        "A_B_im": _A_in["B_im"],
        "A_C_re": _A_in["C_re"],
        "A_C_im": _A_in["C_im"],
        "A_log_dt": _A_in["log_dt"],
        "A_Dskip": _A_in["Dskip"],
        "B_x": _B_in["x"],
        "B_wqkv": _B_in["wqkv"],
        "B_wo": _B_in["wo"],
    }

def reference(A_u, A_A_re, A_A_im, A_B_re, A_B_im, A_C_re, A_C_im, A_log_dt, A_Dskip, B_x, B_wqkv, B_wo):
    def _A_ref(u, A_re, A_im, B_re, B_im, C_re, C_im, log_dt, Dskip):
        Bsz, L, D = u.shape
        dt = torch.exp(log_dt)[:, None]
        A = A_re + 1j * A_im
        Bc = B_re + 1j * B_im
        Cc = C_re + 1j * C_im
        logdA = dt * A
        dB = dt * Bc
        l = (lambda x, dt: x.to(dt))(torch.arange(L), A_re.dtype)
        P = torch.exp(logdA[:, :, None] * l[None, None, :])
        K = torch.einsum("dn,dnl,dn->dl", Cc, P, dB).real
        L2 = 2 * L
        Kp = _pad(K, ((0, 0), (0, L)))
        up = (lambda x, *d: x.permute(*d))(u, 0, 2, 1)
        up = _pad(up, ((0, 0), (0, 0), (0, L)))
        Kf = (lambda x, axes=(-2,-1): torch.fft.rfft2(x.float(), dim=axes))(Kp[:, None, :], axes=(-2, -1))
        Uf = (lambda x, axes=(-2,-1): torch.fft.rfft2(x.float(), dim=axes))(up[:, :, None, :], axes=(-2, -1))
        Yf = Uf * Kf[None, :, :, :]
        y = (lambda x, s, axes=(-2,-1): torch.fft.irfft2(x, s=s, dim=axes).to(torch.bfloat16))(Yf, (1, L2), axes=(-2, -1))[:, :, 0, :L]
        y = (lambda x, *d: x.permute(*d))(y, 0, 2, 1) + u * Dskip[None, None, :]
        return y

    def _B_ref(x, wqkv, wo):
        B, S, D = x.shape
        H = 32; Dh = D // H
        qkv = (lambda x, *d: x.permute(*d))((x @ wqkv).reshape(B, S, 3, H, Dh), 2, 0, 3, 1, 4)
        q, k, v = qkv[0], qkv[1], qkv[2]
        scale = Dh ** -0.5
        scores = torch.einsum("bhqd,bhkd->bhqk", q, k) * scale
        p = _softmax(scores, axis=-1)
        o = torch.einsum("bhqk,bhkd->bhqd", p, v)
        return (lambda x, *d: x.permute(*d))(o, 0, 2, 1, 3).reshape(B, S, D) @ wo

    a = _A_ref(A_u, A_A_re, A_A_im, A_B_re, A_B_im, A_C_re, A_C_im, A_log_dt, A_Dskip)
    b = _B_ref(B_x, B_wqkv, B_wo)
    return torch.concatenate([a, b], axis=-1)
```

```python
class Asm:
    def __init__(self):
        self.lines = []
    def e(self, s):
        for l in s.strip("\n").split("\n"):
            self.lines.append("  " + l.strip())
    def label(self, n): self.lines.append(n + ":")
    def c(self, s): self.lines.append("  ; " + s)
    def raw(self, s): self.lines.append(s)
    def text(self): return "\n".join(self.lines) + "\n"

def vr(a, n=1):
    return f"v{a}" if n == 1 else f"v[{a}:{a+n-1}]"
def sr(a, n=1):
    return f"s{a}" if n == 1 else f"s[{a}:{a+n-1}]"

def kernel_begin(A, name):
    A.raw(".text"); A.raw(f".globl {name}"); A.raw(".p2align 8"); A.raw(f".type {name},@function"); A.label(name)

def kernel_end(A, name, vgpr, sgpr=96, accum=None):
    if accum is None: accum = (vgpr + 3)//4*4
    A.raw(f""".section .rodata,"a"
.p2align 6
.amdhsa_kernel {name}
  .amdhsa_next_free_vgpr {vgpr}
  .amdhsa_next_free_sgpr {sgpr}
  .amdhsa_accum_offset {accum}
  .amdhsa_group_segment_fixed_size 0
  .amdhsa_kernarg_size 120
  .amdhsa_user_sgpr_count 2
  .amdhsa_user_sgpr_kernarg_segment_ptr 1
  .amdhsa_system_sgpr_workgroup_id_x 1
.end_amdhsa_kernel""")

def make_srd(A, d, base_lo, base_hi, off, size):
    A.e(f"s_add_u32 s{d}, s{base_lo}, {off}")
    A.e(f"s_addc_u32 s{d+1}, s{base_hi}, 0")
    A.e(f"s_mov_b32 s{d+2}, {size}")
    A.e(f"s_mov_b32 s{d+3}, 0x00020000")
```

```python
import sys; sys.path.insert(0, "work")
from asmlib import *
import layout as LY

def gen_attn(A, name, stamps=False, opt=None, helper_tail=None):
    opt = opt or {}
    def stamp(i):
        if stamps: A.e(f"s_memtime s[{60+2*i}:{61+2*i}]")
    SA, SB, OA, OB = 0, 16, 32, 48
    P0, P1 = 64, 68
    Q1A, Q2A, Q1B, Q2B = 72, 76, 80, 84
    K1 = [88, 96]; K2 = [92, 100]
    V0 = [104, 112]; V1 = [108, 116]
    AK1, AK2, AV = 120, 121, 122
    T0, T1, T2, T3, LANE = 123, 124, 125, 126, 127
    NV = 128
    TILE = LY.KVTILE; VOFF = 1152; VSZ = 592
    def mf(D, Aop, Bop, C):
        c = "0" if C is None else vr(C, 16)
        return f"v_mfma_f32_32x32x16_bf16 {vr(D,16)}, {vr(Aop,4)}, {vr(Bop,4)}, {c}"
    kernel_begin(A, name)
    A.e("s_cmp_ge_u32 s2, 256")
    A.e(f"s_cbranch_scc1 {name}_end")
    A.e("s_load_dwordx2 s[4:5], s[0:1], 112")
    stamp(0)
    if stamps: A.e("s_memrealtime s[76:77]")
    A.e("s_and_b32 s6, s2, 7")
    A.e("s_lshl_b32 s6, s6, 2")
    A.e("s_lshr_b32 s7, s2, 3")
    A.e("s_and_b32 s8, s7, 3")
    A.e("s_add_u32 s6, s6, s8")
    A.e("s_lshr_b32 s7, s2, 5")
    A.e(f"v_and_b32 v{LANE}, 63, v0")
    A.e(f"v_lshrrev_b32 v{T0}, 6, v0")
    A.e(f"v_and_b32 v{T1}, 31, v{LANE}")
    A.e(f"v_readfirstlane_b32 s9, v{T0}")
    A.e(f"v_lshlrev_b32 v{T0}, 4, v{LANE}")
    A.e(f"v_lshlrev_b32 v{T2}, 2, v{T1}")
    A.e("s_cmp_ge_u32 s9, 4")
    A.e(f"s_cbranch_scc1 {name}_helper")
    A.e(f"s_mul_i32 s13, s6, {64*1152}")
    A.e("s_lshl_b32 s14, s7, 3")
    A.e("s_lshl_b32 s15, s9, 1")
    A.e("s_add_u32 s14, s14, s15")
    A.e("s_mul_i32 s15, s14, 1152")
    A.e("s_add_u32 s13, s13, s15")
    A.e(f"s_add_u32 s13, s13, {LY.Q_OFF}")
    A.e("s_mov_b32 s36, 9")
    A.e("s_waitcnt lgkmcnt(0)")
    make_srd(A, 20, 4, 5, "s13", 2*1152)
    A.e(f"buffer_load_dwordx4 {vr(Q1A,4)}, v{T0}, s[20:23], 0 offen")
    A.e(f"buffer_load_dwordx4 {vr(Q1B,4)}, v{T0}, s[20:23], 0 offen offset:1152")
    A.e(f"buffer_load_dword v{Q2A}, v{T2}, s[20:23], 0 offen offset:1024")
    A.e(f"buffer_load_dword v{Q2B}, v{T2}, s[20:23], 0 offen offset:{1152+1024}")
    make_srd(A, 24, 4, 5, str(LY.O_OFF), LY.O_BYTES)
    A.e(f"v_lshrrev_b32 v{T3}, 5, v{LANE}")
    A.e(f"v_cmp_gt_u32 s[34:35], 32, v{LANE}")
    ones = 0x3F803F80
    for b in range(2):
        A.e(f"v_mov_b32 v{K2[b]+1}, 0x{ones:x}")
        A.e(f"v_mov_b32 v{K2[b]+2}, 0")
        A.e(f"v_mov_b32 v{K2[b]+3}, 0")
    for qq in (Q2A, Q2B):
        for r in (1, 2, 3): A.e(f"v_mov_b32 v{qq+r}, 0")
    A.label(f"{name}_rerun")
    A.e(f"v_and_b32 v{T1}, 31, v{LANE}")
    A.e(f"v_lshlrev_b32 v{AK1}, 4, v{LANE}")
    A.e(f"v_lshlrev_b32 v{AK2}, 2, v{T1}")
    A.e(f"v_lshrrev_b32 v{T3}, 5, v{LANE}")
    A.e(f"v_mul_u32_u24 v{AV}, 18, v{T3}")
    A.e(f"v_add_u32 v{AV}, v{AV}, v{T1}")
    A.e(f"v_cmp_gt_u32 vcc, 18, v{T1}")
    for r in range(4): A.e(f"v_mov_b32 v{V1[1]+r}, 0")
    A.e(f"v_cndmask_b32 v{AV}, 36, v{AV}, vcc")
    A.e(f"v_lshlrev_b32 v{AV}, 4, v{AV}")
    for r in range(16):
        A.e(f"v_mov_b32 v{OA+r}, 0"); A.e(f"v_mov_b32 v{OB+r}, 0")
    for r in range(4): A.e(f"v_mov_b32 v{P1+r}, 0")
    A.e("s_cmp_eq_u32 s36, 0")
    A.e(f"s_cbranch_scc1 {name}_pipe_start")
    A.e("s_waitcnt vmcnt(0)")
    A.e("s_barrier")
    stamp(2)
    A.e(f"ds_read_b128 {vr(K1[0],4)}, v{AK1}")
    A.e(f"ds_read_b32 v{K2[0]}, v{AK2} offset:1024")
    A.e(f"v_cndmask_b32 v{Q2A}, 0, v{Q2A}, s[34:35]")
    A.e(f"v_cndmask_b32 v{Q2B}, 0, v{Q2B}, s[34:35]")
    A.e("s_waitcnt lgkmcnt(0)")
    A.e(mf(SA, K1[0], Q1A, None))
    A.e(mf(SB, K1[0], Q1B, None))
    A.e(mf(SA, K2[0], Q2A, SA))
    A.e(mf(SB, K2[0], Q2B, SB))
    A.e("s_nop 9")
    def setM(S, Q2, have_max=False):
        if not have_max:
            A.e(f"v_max3_f32 v{T0}, v{S}, v{S+1}, v{S+2}")
            for r in range(3, 15, 2):
                A.e(f"v_max3_f32 v{T0}, v{T0}, v{S+r}, v{S+r+1}")
            A.e(f"v_max_f32 v{T0}, v{T0}, v{S+15}")
        else:
            A.e(f"v_mov_b32 v{T0}, v{S}")
        A.e(f"v_cvt_pk_bf16_f32 v{T1}, v{T0}, v{T0}")
        A.e(f"v_and_b32 v{T1}, 0xffff0000, v{T1}")
        A.e(f"v_sub_f32 v{T2}, v{T0}, v{T1}")
        A.e(f"v_cvt_pk_bf16_f32 v{T1}, -v{T1}, -v{T2}")
        A.e(f"v_cndmask_b32 v{Q2+1}, 0, v{T1}, s[34:35]")
    setM(SA, Q2A); setM(SB, Q2B)
    A.label(f"{name}_pipe_start")
    A.e(f"ds_read_b128 {vr(K1[0],4)}, v{AK1}")
    A.e(f"ds_read_b32 v{K2[0]}, v{AK2} offset:1024")
    A.e(f"ds_read_b128 {vr(K1[1],4)}, v{AK1} offset:{TILE}")
    A.e(f"ds_read_b32 v{K2[1]}, v{AK2} offset:{TILE+1024}")
    A.e(f"ds_read_b128 {vr(V0[0],4)}, v{AV} offset:{VOFF}")
    A.e(f"ds_read_b128 {vr(V1[0],4)}, v{AV} offset:{VOFF+VSZ}")
    for r in range(16): A.e(f"v_mov_b32 v{SB+r}, 0")
    A.e("s_waitcnt lgkmcnt(4)")
    A.e(mf(SA, K1[0], Q1A, None))
    A.e(mf(SA, K2[0], Q2A, SA))
    A.e("s_mov_b32 s31, 0")
    A.e("s_nop 7")
    stamp(3)
    A.raw(".p2align 3")
    A.label(f"{name}_loop")
    A.e("s_bitcmp1_b32 s36, s31")
    A.e(f"s_cbranch_scc1 {name}_dobar")
    A.label(f"{name}_body")
    for tt in range(4):
        b = tt % 2; nb = 1 - b
        off = tt*TILE
        def E(S, r): return f"v_exp_f32 v{S+r}, v{S+r}"
        def C(P, S, r): return f"v_cvt_pk_bf16_f32 v{P}, v{S+r}, v{S+r+1}"
        lds = not opt.get("nolds")
        if opt.get("sameaddr"): off = 0
        slots = [
            ([C(P1+2, SB, 12), C(P1+3, SB, 14)], (SA, 0),  mf(SB, K1[b], Q1B, None), None),
            ([C(P0+0, SA, 0),  C(P0+1, SA, 2)],  (SA, 4),  mf(SB, K2[b], Q2B, SB), None),
            ([C(P0+2, SA, 4),  C(P0+3, SA, 6)],  (SA, 8),  mf(OB, V1[nb], P1, OB),
                 f"ds_read_b128 {vr(K1[b],4)}, v{AK1} offset:{off+2*TILE}"),
            ([C(P1+0, SA, 8),  C(P1+1, SA, 10)], (SA, 12), mf(OA, V0[b], P0, OA),
                 f"ds_read_b32 v{K2[b]}, v{AK2} offset:{off+2*TILE+1024}"),
            ([C(P1+2, SA, 12), C(P1+3, SA, 14)], (SB, 0),  mf(SA, K1[nb], Q1A, None),
                 f"ds_read_b128 {vr(V0[nb],4)}, v{AV} offset:{off+TILE+VOFF}"),
            ([C(P0+0, SB, 0),  C(P0+1, SB, 2)],  (SB, 4),  mf(SA, K2[nb], Q2A, SA),
                 f"ds_read_b128 {vr(V1[nb],4)}, v{AV} offset:{off+TILE+VOFF+VSZ}"),
            ([C(P0+2, SB, 4),  C(P0+3, SB, 6)],  (SB, 8),  mf(OA, V1[b], P1, OA), None),
            ([C(P1+0, SB, 8),  C(P1+1, SB, 10)], (SB, 12), mf(OB, V0[b], P0, OB), None),
        ]
        for si, (cv, (S, r0), m, ex) in enumerate(slots):
            A.e(cv[0]); A.e(cv[1])
            if si == 2 and lds:
                A.e(E(S, r0)); A.e("s_waitcnt lgkmcnt(0)"); A.e(E(S, r0+1).replace("v_exp_f32", "v_exp_f32_e64"))
            else:
                A.e(E(S, r0)); A.e(E(S, r0+1))
            A.e(m)
            if ex and lds: A.e(ex)
            A.e(E(S, r0+2))
            A.e(E(S, r0+3))
    if not opt.get("sameaddr"):
        A.e(f"v_add_u32 v{AK1}, {4*TILE}, v{AK1}")
        A.e(f"v_add_u32 v{AK2}, {4*TILE}, v{AK2}")
        A.e(f"v_add_u32 v{AV}, {4*TILE}, v{AV}")
    A.e("s_add_u32 s31, s31, 1")
    A.e(f"s_cmp_lt_u32 s31, {opt.get('nit', 16)}")
    A.e(f"s_cbranch_scc1 {name}_loop")
    stamp(4)
    A.e(f"v_cvt_pk_bf16_f32 v{P1+2}, v{SB+12}, v{SB+13}")
    A.e(f"v_cvt_pk_bf16_f32 v{P1+3}, v{SB+14}, v{SB+15}")
    A.e("s_mov_b32 s40, 0x53800000")
    A.e(f"v_rcp_f32 v{T2}, v{OA+10}")
    A.e(mf(OB, V1[1], P1, OB))
    A.e(f"v_cmp_ge_f32 vcc, s40, v{OA+10}")
    for r in range(10): A.e(f"v_mul_f32 v{SA+r}, v{OA+r}, v{T2}")
    for i in range(5): A.e(f"v_cvt_pk_bf16_f32 v{SA+i}, v{SA+2*i}, v{SA+2*i+1}")
    A.e("s_lshl_b32 s41, s6, 6")
    A.e("s_add_u32 s41, s41, s14")
    A.e("s_lshl_b32 s42, s41, 10")
    A.e("s_lshl_b32 s43, s41, 7")
    A.e(f"s_add_u32 s43, s43, {LY.O1_BYTES}")
    A.e(f"v_lshlrev_b32 v{T0}, 4, v{LANE}")
    A.e(f"v_lshlrev_b32 v{T1}, 2, v{LANE}")
    A.e(f"v_cmp_ge_f32 s[44:45], s40, v{OB+10}")
    A.e(f"v_rcp_f32 v{T2}, v{OB+10}")
    A.e("s_nop 1")
    A.e("s_and_b64 vcc, vcc, s[44:45]")
    A.e("s_cmp_eq_u32 s36, 0")
    A.e(f"s_cbranch_scc1 {name}_fin")
    A.e("s_cmp_eq_u64 vcc, -1")
    A.e(f"s_cbranch_scc0 {name}_fallback")
    A.label(f"{name}_fin")
    A.e(f"buffer_store_dwordx4 {vr(SA,4)}, v{T0}, s[24:27], s42 offen")
    for r in range(10): A.e(f"v_mul_f32 v{SB+r}, v{OB+r}, v{T2}")
    for i in range(5): A.e(f"v_cvt_pk_bf16_f32 v{SB+i}, v{SB+2*i}, v{SB+2*i+1}")
    A.e(f"buffer_store_dwordx4 {vr(SB,4)}, v{T0}, s[24:27], s42 offen offset:1024")
    A.e("s_mov_b64 exec, s[34:35]")
    A.e(f"buffer_store_dword v{SA+4}, v{T1}, s[24:27], s43 offen")
    A.e(f"buffer_store_dword v{SB+4}, v{T1}, s[24:27], s43 offen offset:128")
    def dump():
        stamp(6)
        A.e("s_mov_b64 exec, -1")
        A.e("s_waitcnt lgkmcnt(0) vmcnt(0)")
        stamp(7)
        A.e("s_memrealtime s[78:79]")
        A.e("s_waitcnt lgkmcnt(0)")
        A.e("s_sub_u32 s72, s78, s76")
        A.e("s_mov_b32 s73, 0")
        A.e("s_add_u32 s72, s72, s60")
        A.e("s_addc_u32 s73, s61, 0")
        make_srd(A, 44, 4, 5, str(64<<20), 1<<20)
        A.e("s_lshl_b32 s48, s2, 3")
        A.e("s_add_u32 s48, s48, s9")
        A.e("s_lshl_b32 s48, s48, 6")
        for i in range(16): A.e(f"v_mov_b32 v{i}, s{60+i}")
        A.e("v_mov_b32 v16, s48")
        A.e("s_mov_b64 exec, 1")
        for i in range(4):
            A.e(f"buffer_store_dwordx4 v[{4*i}:{4*i+3}], v16, s[44:47], 0 offen offset:{16*i}")
    if stamps: dump()
    A.label(f"{name}_end")
    A.e("s_endpgm")
    A.label(f"{name}_dobar")
    A.e("s_barrier")
    A.e(f"s_branch {name}_body")
    A.label(f"{name}_fallback")
    MA, MB = P0, P0+1
    A.e(f"v_mov_b32 v{MA}, 0xff7fffff")
    A.e(f"v_mov_b32 v{MB}, 0xff7fffff")
    for qq in (Q2A, Q2B): A.e(f"v_mov_b32 v{qq+1}, 0")
    A.e(f"v_and_b32 v{T1}, 31, v{LANE}")
    A.e(f"v_lshlrev_b32 v{T0}, 4, v{LANE}")
    A.e(f"v_lshlrev_b32 v{T2}, 2, v{T1}")
    A.e("s_mov_b32 s31, 0")
    A.label(f"{name}_mloop")
    A.e(f"ds_read_b128 {vr(K1[1],4)}, v{T0}")
    A.e(f"ds_read_b32 v{K2[1]}, v{T2} offset:1024")
    A.e("s_waitcnt lgkmcnt(0)")
    A.e(mf(SA, K1[1], Q1A, None))
    A.e(mf(SB, K1[1], Q1B, None))
    A.e(mf(SA, K2[1], Q2A, SA))
    A.e(mf(SB, K2[1], Q2B, SB))
    A.e("s_nop 15")
    for S, M in ((SA, MA), (SB, MB)):
        for r in range(0, 16, 2):
            A.e(f"v_max3_f32 v{M}, v{M}, v{S+r}, v{S+r+1}")
    A.e(f"v_add_u32 v{T0}, {TILE}, v{T0}")
    A.e(f"v_add_u32 v{T2}, {TILE}, v{T2}")
    A.e("s_add_u32 s31, s31, 1")
    A.e("s_cmp_lt_u32 s31, 64")
    A.e(f"s_cbranch_scc1 {name}_mloop")
    for M, S in ((MA, SA), (MB, SB)):
        A.e(f"v_mov_b32 v{T1}, v{M}")
        A.e("s_nop 1")
        A.e(f"v_permlane32_swap_b32 v{M}, v{T1}")
        A.e("s_nop 1")
        A.e(f"v_max_f32 v{S}, v{M}, v{T1}")
    setM(SA, Q2A, True); setM(SB, Q2B, True)
    A.e("s_mov_b32 s36, 0")
    A.e(f"s_branch {name}_rerun")
    A.label(f"{name}_helper")
    A.e(f"s_mul_i32 s12, s6, {64*TILE}")
    A.e(f"s_add_u32 s12, s12, {LY.KV_OFF}")
    A.e("s_sub_u32 s10, s9, 4")
    A.e("s_lshl_b32 s28, s10, 10")
    A.e("s_waitcnt lgkmcnt(0)")
    make_srd(A, 16, 4, 5, "s12", 64*TILE)
    def dma(s):
        A.e(f"s_add_u32 s29, s28, {4096*s}")
        A.e("s_mov_b32 m0, s29")
        A.e("s_nop 0")
        A.e(f"buffer_load_dwordx4 v{T0}, s[16:19], s29 offen lds")
    for s in range(12): dma(s)
    A.e("s_waitcnt vmcnt(10)")
    A.e("s_barrier")
    for s in range(12, 20): dma(s)
    A.e("s_waitcnt vmcnt(12)")
    A.e("s_barrier")
    for s in range(20, 37): dma(s)
    A.e("s_waitcnt vmcnt(0)")
    A.e("s_barrier")
    stamp(3)
    if helper_tail: helper_tail(A, name)
    if stamps:
        stamp(2); stamp(4); stamp(5); stamp(1)
        dump()
    A.e("s_endpgm")
    kernel_end(A, name, NV)
```

```python
import sys; sys.path.insert(0,"gen")
from asmlib import *
from l1gemm import gen_gemm_role
from l1ssm import *
def gen_l1(A):
    kernel_begin(A, "l1_kernel")
    A.e("s_cmp_ge_u32 s2, 408")
    A.e("s_cbranch_scc1 l1_kernel_end")
    A.e("s_cmp_ge_u32 s2, 336")
    A.e("s_cbranch_scc1 l1u")
    A.e("s_cmp_ge_u32 s2, 192")
    A.e("s_cbranch_scc1 l1k")
    nv = gen_gemm_role(A, "l1g")
    A.label("l1k")
    nv = max(nv, gen_kgen_role(A, "l1k", 192, "l1_idxtab"))
    A.label("l1u")
    nv = max(nv, gen_ut_role(A, "l1u", 336))
    A.label("l1_kernel_end")
    A.e("s_endpgm")
    emit_idx_table(A, "l1_idxtab")
    kernel_end(A, "l1_kernel", nv)
if __name__ == "__main__":
    hdr = open("concat_heads__ssm_conv_s4__softmax_full_mha__prompt.s.ref").read().split("; Override")[0]
    A = Asm()
    A.raw(hdr.rstrip())
    A.raw("; @launch kernel=l1_kernel grid=(408,1,1) block=(256,1,1) lds=74752")
    A.raw('.amdgcn_target "amdgcn-amd-amdhsa--gfx950"')
    gen_l1(A)
    open(sys.argv[1], "w").write(A.text())
```

```python
import sys; sys.path.insert(0, "work")
from asmlib import *
import layout as LY

def conv_tail(A, name, prio=None):
    LANE = 127
    ACC0, ACC1 = 0, 16
    SETS = [32, 44, 56, 68]
    VA, VB, T0, T1, T2 = 80, 81, 82, 83, 84
    A.e("s_lshl_b32 s40, s10, 8")
    A.e("s_add_u32 s40, s40, s2")
    A.e("s_cmp_ge_u32 s40, 576")
    A.e(f"s_cbranch_scc1 {name}_cend")
    if prio is not None: A.e(f"s_setprio {prio}")
    A.e(f"s_mul_i32 s41, s40, {LY.KR_ROW}")
    A.e(f"s_add_u32 s41, s41, {LY.KR_OFF}")
    make_srd(A, 44, 4, 5, "s41", LY.KR_ROW)
    A.e(f"s_mul_i32 s41, s40, {LY.UT_ROW}")
    A.e(f"s_add_u32 s41, s41, {LY.UT_OFF}")
    make_srd(A, 48, 4, 5, "s41", LY.UT_ROW)
    A.e("s_lshl_b32 s41, s40, 12")
    A.e(f"s_add_u32 s41, s41, {LY.YT_OFF}")
    make_srd(A, 52, 4, 5, "s41", 4096)
    A.e(f"v_and_b32 v{T0}, 31, v{LANE}")
    A.e(f"v_lshrrev_b32 v{T1}, 5, v{LANE}")
    A.e(f"v_lshlrev_b32 v{VB}, 6, v{T0}")
    A.e(f"v_lshl_add_u32 v{VB}, v{T1}, 4, v{VB}")
    A.e(f"v_lshlrev_b32 v{T2}, 3, v{T1}")
    A.e(f"v_sub_u32 v{T2}, v{T2}, v{T0}")
    A.e(f"v_add_u32 v{T2}, 32, v{T2}")
    A.e(f"v_lshlrev_b32 v{VA}, 1, v{T2}")
    A.e(f"v_and_b32 v{T2}, 1, v{T0}")
    A.e(f"v_mul_u32_u24 v{T2}, {LY.KRLEN*2+2}, v{T2}")
    A.e(f"v_add_u32 v{VA}, v{VA}, v{T2}")
    for r in range(32): A.e(f"v_mov_b32 v{r}, 0")
    A.e("s_movk_i32 s56, 4064"); A.e("s_movk_i32 s57, 4128"); A.e("s_movk_i32 s58, 2080")
    def load(set_, b0):
        A.e(f"buffer_load_dwordx4 {vr(set_,4)}, v{VA}, s[44:47], s56 offen")
        A.e(f"buffer_load_dwordx4 {vr(set_+4,4)}, v{VB}, s[48:51], s57 offen")
        if b0: A.e(f"buffer_load_dwordx4 {vr(set_+8,4)}, v{VB}, s[48:51], s58 offen")
        A.e("s_sub_i32 s56, s56, 32"); A.e("s_max_i32 s56, s56, 0")
        A.e("s_sub_i32 s57, s57, 32"); A.e("s_max_i32 s57, s57, 0")
        if b0:
            A.e("s_sub_i32 s58, s58, 32"); A.e("s_max_i32 s58, s58, 0")
    for u in range(3): load(SETS[u], True)
    for ph in range(2):
        A.e("s_mov_b32 s59, 0")
        A.label(f"{name}_cl{ph}")
        for u in range(4):
            load(SETS[(u+3) % 4], ph == 0)
            A.e(f"s_waitcnt vmcnt({9 if ph == 0 else 6})")
            s = SETS[u]
            A.e(f"v_mfma_f32_32x32x16_bf16 {vr(ACC1,16)}, {vr(s,4)}, {vr(s+4,4)}, {vr(ACC1,16)}")
            if ph == 0:
                A.e(f"v_mfma_f32_32x32x16_bf16 {vr(ACC0,16)}, {vr(s,4)}, {vr(s+8,4)}, {vr(ACC0,16)}")
        A.e("s_add_u32 s59, s59, 1")
        A.e("s_cmp_lt_u32 s59, 16")
        A.e(f"s_cbranch_scc1 {name}_cl{ph}")
    A.e(f"v_lshlrev_b32 v{VB}, 6, v{T0}")
    A.e(f"v_lshl_add_u32 v{VB}, v{T1}, 3, v{VB}")
    A.e("s_waitcnt vmcnt(0)")
    A.e("s_nop 15")
    for n, acc in ((0, ACC0), (1, ACC1)):
        for g in range(4):
            A.e(f"v_cvt_pk_bf16_f32 v{32+2*g}, v{acc+4*g}, v{acc+4*g+1}")
            A.e(f"v_cvt_pk_bf16_f32 v{33+2*g}, v{acc+4*g+2}, v{acc+4*g+3}")
            A.e(f"buffer_store_dwordx2 {vr(32+2*g,2)}, v{VB}, s[52:55], 0 offen offset:{2048*n+16*g}")
        A.e("s_nop 1")
    A.label(f"{name}_cend")
```

```python
import sys; sys.path.insert(0, "work")
from asmlib import *
import layout as LY

STAGE = 18432; XREG = 8192; WROW = 320
NST = 18
def f32bits(x):
    import struct
    return struct.unpack("<I", struct.pack("<f", x))[0]

def gen_gemm_role(A, name):
    ACC = [0, 16, 32, 48]; ACL = 64
    XF = [[80, 84, 88, 92], [96, 100, 104, 108]]
    WM = [112, 116]; WL = [120, 124]
    AX = [128, 129]
    AWM, AWL = 130, 131
    BX0, BX1, BWM, BWL = 132, 133, 134, 135
    VXO = 136; VW = [137, 138, 139]
    LANE, T0, T1, T2, T3, T4 = 140, 141, 142, 143, 144, 145
    A.e("s_load_dwordx4 s[4:7], s[0:1], 72")
    A.e("s_load_dwordx2 s[8:9], s[0:1], 112")
    A.e("s_and_b32 s10, s2, 7")
    A.e("s_lshr_b32 s11, s2, 3")
    A.e("s_lshr_b32 s24, s10, 1")
    A.e("s_lshl_b32 s24, s24, 2")
    A.e("s_and_b32 s25, s11, 3")
    A.e("s_add_u32 s24, s24, s25")
    A.e("s_and_b32 s25, s10, 1")
    A.e("s_mul_i32 s25, s25, 6")
    A.e("s_lshr_b32 s26, s11, 2")
    A.e("s_add_u32 s25, s25, s26")
    A.e("s_lshr_b32 s26, s25, 2")
    A.e("s_and_b32 s27, s25, 3")
    A.e(f"v_and_b32 v{LANE}, 63, v0")
    A.e(f"v_lshrrev_b32 v{T0}, 6, v0")
    A.e("s_nop 0")
    A.e(f"v_readfirstlane_b32 s28, v{T0}")
    A.e("s_mul_i32 s29, s25, 288")
    A.e(f"s_mul_i32 s30, s24, {128*1152}")
    A.e(f"v_lshrrev_b32 v{T0}, 2, v{LANE}")
    A.e(f"v_mul_u32_u24 v{VXO}, 1152, v{T0}")
    A.e(f"v_lshrrev_b32 v{T1}, 4, v{LANE}")
    A.e(f"v_and_b32 v{T2}, 3, v{LANE}")
    A.e(f"v_xor_b32 v{T1}, v{T1}, v{T2}")
    A.e(f"v_lshl_add_u32 v{VXO}, v{T1}, 4, v{VXO}")
    for i in range(3):
        A.e(f"s_add_u32 s31, s28, {4*i}")
        A.e("s_lshl_b32 s31, s31, 6")
        A.e(f"v_add_u32 v{T0}, s31, v{LANE}")
        A.e(f"v_mul_u32_u24 v{T1}, 3277, v{T0}")
        A.e(f"v_lshrrev_b32 v{T1}, 16, v{T1}")
        A.e(f"v_mul_u32_u24 v{T2}, 20, v{T1}")
        A.e(f"v_sub_u32 v{T2}, v{T0}, v{T2}")
        A.e(f"v_mul_u32_u24 v{T1}, 3456, v{T1}")
        A.e(f"v_lshl_add_u32 v{VW[i]}, v{T2}, 4, v{T1}")
        A.e(f"v_cmp_gt_u32 vcc, 18, v{T2}")
        A.e("s_movk_i32 s38, 640")
        A.e(f"v_cmp_gt_u32 s[32:33], s38, v{T0}")
        A.e("s_nop 1")
        A.e("s_and_b64 vcc, vcc, s[32:33]")
        A.e(f"v_mov_b32 v{T3}, 0x7ffffff0")
        A.e(f"v_cndmask_b32 v{VW[i]}, v{T3}, v{VW[i]}, vcc")
    A.e("s_waitcnt lgkmcnt(0)")
    make_srd(A, 12, 4, 5, "s30", 128*1152)
    A.e("s_add_u32 s16, s6, s29")
    A.e("s_addc_u32 s17, s7, 0")
    A.e(f"s_sub_u32 s18, {576*3456}, s29")
    A.e("s_mov_b32 s19, 0x00020000")
    A.e(f"s_mul_i32 s34, s28, {2*16*1152}")
    A.e("s_lshl_b32 s35, s28, 11")
    A.e("s_lshl_b32 s36, s28, 10")
    A.e(f"s_add_u32 s36, s36, {XREG}")
    A.e("s_cmp_lt_u32 s28, 2")
    A.e(f"s_cselect_b32 s37, 1, 0")
    def issue(stage_sreg_k64, stage_sreg_w, slot_sreg):
        for j in range(2):
            A.e(f"s_add_u32 s44, s34, s40") if j == 0 else A.e(f"s_add_u32 s44, s44, {16*1152}")
            A.e(f"s_add_u32 s45, s42, s35") if j == 0 else A.e("s_add_u32 s45, s45, 1024")
            A.e("s_mov_b32 m0, s45")
            A.e("s_nop 0")
            A.e(f"buffer_load_dwordx4 v{VXO}, s[12:15], s44 offen lds")
        for i in range(3):
            if i == 0: A.e("s_add_u32 s45, s42, s36")
            elif i == 1: A.e("s_add_u32 s45, s45, 4096")
            else:
                A.e("s_add_u32 s45, s45, 4096")
                A.e("s_cmp_eq_u32 s37, 1")
                A.e(f"s_cselect_b32 s45, s45, {4*STAGE}")
            A.e("s_mov_b32 m0, s45")
            A.e("s_nop 0")
            A.e(f"buffer_load_dwordx4 v{VW[i]}, s[16:19], s41 offen lds")
    for st in range(4):
        A.e(f"s_mov_b32 s40, {st*64}")
        A.e(f"s_mov_b32 s41, {st*32*3456}")
        A.e(f"s_mov_b32 s42, {st*STAGE}")
        issue(None, None, None)
    A.e(f"v_and_b32 v{T0}, 31, v{LANE}")
    A.e(f"v_lshrrev_b32 v{T1}, 5, v{LANE}")
    A.e(f"v_lshrrev_b32 v{T2}, 2, v{T0}")
    A.e(f"v_and_b32 v{T2}, 3, v{T2}")
    A.e(f"v_xor_b32 v{T2}, v{T2}, v{T1}")
    A.e(f"v_lshlrev_b32 v{BX0}, 6, v{T0}")
    A.e(f"v_lshl_add_u32 v{BX0}, v{T2}, 4, v{BX0}")
    A.e(f"v_xor_b32 v{BX1}, 32, v{BX0}")
    A.e(f"v_lshrrev_b32 v{T2}, 2, v{LANE}")
    A.e(f"v_and_b32 v{T2}, 3, v{T2}")
    A.e(f"v_lshl_add_u32 v{T2}, v{T1}, 3, v{T2}")
    A.e(f"v_mul_u32_u24 v{T2}, {WROW}, v{T2}")
    A.e(f"v_add_u32 v{T2}, {XREG}, v{T2}")
    A.e(f"v_lshrrev_b32 v{T3}, 4, v{LANE}")
    A.e(f"v_and_b32 v{T3}, 1, v{T3}")
    A.e(f"v_and_b32 v{T4}, 3, v{LANE}")
    A.e(f"v_lshl_add_u32 v{T3}, v{T3}, 2, v{T4}")
    A.e("s_cmp_eq_u32 s26, 2")
    A.e(f"s_cbranch_scc1 {name}_vaddr")
    A.e(f"v_lshlrev_b32 v{T0}, 2, v{T3}")
    A.e(f"v_mov_b32 v{BWM}, 0x86753120")
    A.e(f"v_lshrrev_b32 v{BWM}, v{T0}, v{BWM}")
    A.e(f"v_and_b32 v{BWM}, 15, v{BWM}")
    A.e("s_mul_i32 s31, s28, 9")
    A.e(f"v_add_u32 v{BWM}, s31, v{BWM}")
    A.e(f"v_lshl_add_u32 v{BWM}, v{BWM}, 3, v{T2}")
    A.e(f"v_mul_u32_u24 v{BWL}, 9, v{T4}")
    A.e(f"v_add_u32 v{BWL}, 4, v{BWL}")
    A.e(f"v_lshl_add_u32 v{BWL}, v{BWL}, 3, v{T2}")
    A.e(f"s_branch {name}_addr_done")
    A.label(f"{name}_vaddr")
    A.e("s_lshl_b32 s31, s28, 3")
    A.e(f"v_add_u32 v{BWM}, s31, v{T3}")
    A.e(f"v_lshl_add_u32 v{BWM}, v{BWM}, 3, v{T2}")
    A.e(f"v_add_u32 v{BWL}, 32, v{T4}")
    A.e(f"v_lshl_add_u32 v{BWL}, v{BWL}, 3, v{T2}")
    A.label(f"{name}_addr_done")
    for r in range(80): A.e(f"v_mov_b32 v{r}, 0")

    def reads(buf, ks):
        ax = AX[ks]
        for T in range(4):
            A.e(f"ds_read_b128 {vr(XF[buf][T],4)}, v{ax} offset:{2048*T}")
        for q in range(2):
            A.e(f"ds_read_b64_tr_b16 {vr(WM[buf]+2*q,2)}, v{AWM} offset:{ks*16*WROW + q*4*WROW}")
        for q in range(2):
            A.e(f"ds_read_b64_tr_b16 {vr(WL[buf]+2*q,2)}, v{AWL} offset:{ks*16*WROW + q*4*WROW}")
    def set_addrs(slot_sreg):
        A.e(f"v_add_u32 v{AX[0]}, {slot_sreg}, v{BX0}")
        A.e(f"v_add_u32 v{AX[1]}, {slot_sreg}, v{BX1}")
        A.e(f"v_add_u32 v{AWM}, {slot_sreg}, v{BWM}")
        A.e(f"v_add_u32 v{AWL}, {slot_sreg}, v{BWL}")
    def mfmas(buf, vtype, wv):
        for T in range(4):
            if vtype: A.e(f"v_mfma_f32_32x32x16_bf16 {vr(ACC[T],16)}, {vr(XF[buf][T],4)}, {vr(WM[buf],4)}, {vr(ACC[T],16)}")
            else:     A.e(f"v_mfma_f32_32x32x16_bf16 {vr(ACC[T],16)}, {vr(WM[buf],4)}, {vr(XF[buf][T],4)}, {vr(ACC[T],16)}")
    XL = [146, 150]
    AXL = [154, 155]; BXL0, BXL1 = 156, 157
    A.e("s_lshl_b32 s31, s28, 11")
    A.e(f"v_add_u32 v{BXL0}, s31, v{BX0}")
    A.e(f"v_add_u32 v{BXL1}, s31, v{BX1}")
    def reads2(buf, ks):
        reads(buf, ks)
        A.e(f"ds_read_b128 {vr(XL[buf],4)}, v{AXL[ks]}")
    def set_addrs2(s):
        set_addrs(s)
        A.e(f"v_add_u32 v{AXL[0]}, {s}, v{BXL0}")
        A.e(f"v_add_u32 v{AXL[1]}, {s}, v{BXL1}")
    def mfmas2(buf, vtype):
        mfmas(buf, vtype, None)
        if vtype: A.e(f"v_mfma_f32_32x32x16_bf16 {vr(ACL,16)}, {vr(XL[buf],4)}, {vr(WL[buf],4)}, {vr(ACL,16)}")
        else:     A.e(f"v_mfma_f32_32x32x16_bf16 {vr(ACL,16)}, {vr(WL[buf],4)}, {vr(XL[buf],4)}, {vr(ACL,16)}")

    A.e("s_waitcnt vmcnt(15)")
    A.e("s_barrier")
    A.e("s_mov_b32 s46, 0")
    set_addrs2("s46")
    reads2(0, 0)
    A.e("s_mov_b32 s47, 0")
    A.e("s_cmp_eq_u32 s26, 2")
    A.e(f"s_cbranch_scc1 {name}_vloop")
    for vtype in (0, 1):
        L = f"{name}_{'v' if vtype else 'q'}loop"
        A.label(L)
        reads2(1, 1)
        A.e("s_waitcnt lgkmcnt(9)")
        mfmas2(0, vtype)
        A.e("s_cmp_ge_u32 s47, 15")
        A.e(f"s_cbranch_scc1 {L}_tw")
        A.e("s_waitcnt vmcnt(10) lgkmcnt(0)")
        A.label(f"{L}_twd")
        A.e("s_barrier")
        A.e("s_cmp_ge_u32 s47, 14")
        A.e(f"s_cbranch_scc1 {L}_noiss")
        A.e("s_add_u32 s40, s47, 4")
        A.e(f"s_mul_i32 s41, s40, {32*3456}")
        A.e("s_lshl_b32 s40, s40, 6")
        A.e("s_mov_b32 s42, s46")
        issue(None, None, None)
        A.label(f"{L}_noiss")
        A.e(f"s_add_u32 s46, s46, {STAGE}")
        A.e(f"s_cmp_ge_u32 s46, {4*STAGE}")
        A.e("s_cselect_b32 s46, 0, s46")
        set_addrs2("s46")
        reads2(0, 0)
        mfmas2(1, vtype)
        A.e("s_add_u32 s47, s47, 1")
        A.e(f"s_cmp_lt_u32 s47, {NST}")
        A.e(f"s_cbranch_scc1 {L}")
        A.e(f"s_branch {name}_epi_{'v' if vtype else 'q'}")
        A.label(f"{L}_tw")
        A.e("s_cmp_eq_u32 s47, 15")
        A.e(f"s_cbranch_scc1 {L}_tw5")
        A.e("s_waitcnt vmcnt(0) lgkmcnt(0)")
        A.e(f"s_branch {L}_twd")
        A.label(f"{L}_tw5")
        A.e("s_waitcnt vmcnt(5) lgkmcnt(0)")
        A.e(f"s_branch {L}_twd")
    A.label(f"{name}_epi_q")
    A.e("s_waitcnt lgkmcnt(0)")
    A.e("s_nop 15")
    A.e("s_cmp_eq_u32 s26, 0")
    def csel(d, a, b):
        A.e(f"s_mov_b32 s55, {a}"); A.e(f"s_mov_b32 s56, {b}"); A.e(f"s_cselect_b32 s{d}, s55, s56")
    csel(30, LY.Q_OFF, LY.KV_OFF); csel(31, LY.Q_BYTES, LY.KV_BYTES)
    csel(48, 64*1152, 64*LY.KVTILE); csel(49, 1152, LY.KVTILE); csel(50, f32bits(LY.QSCALE), f32bits(1.0))
    A.e("s_add_u32 s20, s8, s30")
    A.e("s_addc_u32 s21, s9, 0")
    A.e("s_mov_b32 s22, s31")
    A.e("s_mov_b32 s23, 0x00020000")
    A.e("s_lshl_b32 s51, s27, 3")
    A.e("s_lshl_b32 s52, s28, 1")
    A.e("s_add_u32 s52, s52, s51")
    A.e("s_mul_i32 s52, s52, s48")
    A.e("s_lshl_b32 s53, s24, 2")
    A.e("s_mul_i32 s53, s53, s49")
    A.e("s_add_u32 s52, s52, s53")
    A.e(f"v_lshlrev_b32 v{T0}, 4, v{LANE}")
    for T in range(4):
        a = ACC[T]
        for r in range(16): A.e(f"v_mul_f32 v{a+r}, s50, v{a+r}")
        for i in range(8): A.e(f"v_cvt_pk_bf16_f32 v{a+i}, v{a+2*i}, v{a+2*i+1}")
        A.e(f"buffer_store_dwordx4 {vr(a,4)}, v{T0}, s[20:23], s52 offen")
        A.e("s_add_u32 s54, s52, s48")
        A.e(f"buffer_store_dwordx4 {vr(a+4,4)}, v{T0}, s[20:23], s54 offen")
        A.e("s_add_u32 s52, s52, s49")
    for r in range(8): A.e(f"v_mul_f32 v{ACL+r}, s50, v{ACL+r}")
    for i in range(4): A.e(f"v_cvt_pk_bf16_f32 v{ACL+i}, v{ACL+2*i}, v{ACL+2*i+1}")
    A.e("s_mul_i32 s52, s51, s48")
    A.e("s_lshl_b32 s53, s24, 2")
    A.e("s_add_u32 s53, s53, s28")
    A.e("s_mul_i32 s53, s53, s49")
    A.e("s_add_u32 s52, s52, s53")
    A.e("s_add_u32 s52, s52, 1024")
    A.e(f"v_lshrrev_b32 v{T1}, 5, v{LANE}")
    A.e("s_lshl_b32 s53, s48, 1")
    A.e(f"v_mul_lo_u32 v{T1}, v{T1}, s53")
    A.e(f"v_and_b32 v{T2}, 31, v{LANE}")
    A.e(f"v_lshl_add_u32 v{T1}, v{T2}, 2, v{T1}")
    for i in range(4):
        A.e(f"s_mul_i32 s53, s48, {4*(i//2) + (i%2)}")
        A.e("s_add_u32 s53, s53, s52")
        A.e(f"buffer_store_dword v{ACL+i}, v{T1}, s[20:23], s53 offen")
    A.e("s_endpgm")
    A.label(f"{name}_epi_v")
    A.e("s_waitcnt lgkmcnt(0)")
    A.e("s_nop 15")
    make_srd(A, 20, 8, 9, str(LY.KV_OFF), LY.KV_BYTES)
    HS = 64*LY.KVTILE
    def voff(dst, feat_sreg_expr_base):
        A.e(f"v_mul_u32_u24 v{T1}, 3641, v{T0}")
        A.e(f"v_lshrrev_b32 v{T1}, 16, v{T1}")
        A.e(f"v_mul_u32_u24 v{T2}, 18, v{T1}")
        A.e(f"v_sub_u32 v{T2}, v{T0}, v{T2}")
        A.e(f"v_lshrrev_b32 v{T3}, 5, v{LANE}")
        A.e(f"v_mul_u32_u24 v{T3}, 18, v{T3}")
        A.e(f"v_add_u32 v{T2}, v{T2}, v{T3}")
        A.e(f"v_add_u32 v{T1}, s51, v{T1}")
        A.e(f"s_mov_b32 s53, {HS}")
        A.e(f"v_mul_lo_u32 v{T1}, v{T1}, s53")
        A.e(f"v_lshl_add_u32 v{dst}, v{T2}, 4, v{T1}")
    A.e("s_lshl_b32 s51, s27, 3")
    A.e(f"v_and_b32 v{T0}, 31, v{LANE}")
    A.e("s_lshl_b32 s31, s28, 5")
    A.e(f"v_add_u32 v{T0}, s31, v{T0}")
    voff(AX[0], None)
    A.e("s_lshl_b32 s53, s24, 2")
    A.e(f"s_mul_i32 s52, s53, {LY.KVTILE}")
    A.e("s_add_u32 s52, s52, 1152")
    for T in range(4):
        a = ACC[T]
        for i in range(8): A.e(f"v_cvt_pk_bf16_f32 v{a+i}, v{a+2*i}, v{a+2*i+1}")
        A.e(f"buffer_store_dwordx4 {vr(a,4)}, v{AX[0]}, s[20:23], s52 offen")
        A.e(f"buffer_store_dwordx4 {vr(a+4,4)}, v{AX[0]}, s[20:23], s52 offen offset:592")
        A.e(f"s_add_u32 s52, s52, {LY.KVTILE}")
    A.e(f"v_and_b32 v{T0}, 31, v{LANE}")
    A.e(f"v_add_u32 v{T0}, 128, v{T0}")
    voff(AX[1], None)
    A.e(f"v_and_b32 v{T0}, 16, v{LANE}")
    A.e(f"v_cmp_eq_u32 vcc, 0, v{T0}")
    A.e(f"v_mov_b32 v{T3}, 0x7ffffff0")
    A.e(f"v_cndmask_b32 v{AX[1]}, v{T3}, v{AX[1]}, vcc")
    for i in range(8): A.e(f"v_cvt_pk_bf16_f32 v{ACL+i}, v{ACL+2*i}, v{ACL+2*i+1}")
    A.e("s_lshl_b32 s53, s24, 2")
    A.e("s_add_u32 s53, s53, s28")
    A.e(f"s_mul_i32 s52, s53, {LY.KVTILE}")
    A.e("s_add_u32 s52, s52, 1152")
    A.e(f"buffer_store_dwordx4 {vr(ACL,4)}, v{AX[1]}, s[20:23], s52 offen")
    A.e(f"buffer_store_dwordx4 {vr(ACL+4,4)}, v{AX[1]}, s[20:23], s52 offen offset:592")
    A.e(f"v_lshrrev_b32 v{T0}, 1, v{LANE}")
    A.e(f"v_add_u32 v{T0}, s51, v{T0}")
    A.e(f"s_mov_b32 s53, {HS}")
    A.e(f"v_mul_lo_u32 v{T0}, v{T0}, s53")
    A.e(f"v_and_b32 v{T1}, 1, v{LANE}")
    A.e(f"v_mul_u32_u24 v{T1}, 592, v{T1}")
    A.e(f"v_add3_u32 v{T0}, v{T0}, v{T1}, 0")
    A.e(f"v_add_u32 v{T0}, 576, v{T0}")
    A.e(f"v_cmp_gt_u32 vcc, 16, v{LANE}")
    A.e(f"v_cndmask_b32 v{T0}, v{T3}, v{T0}, vcc")
    for r in range(4): A.e(f"v_mov_b32 v{r}, 0x3f803f80")
    A.e(f"buffer_store_dwordx4 v[0:3], v{T0}, s[20:23], s52 offen")
    A.e("s_endpgm")
    return 160
```

```python
import sys; sys.path.insert(0, "work")
from asmlib import *
import layout as LY
import numpy as np, math, struct
def f32bits(x): return struct.unpack("<I", struct.pack("<f", x))[0]

def rnd_bf16_int(l):
    import struct
    u = struct.unpack("<I", struct.pack("<f", float(l)))[0]
    u = (u + 0x7FFF + ((u >> 16) & 1)) & 0xFFFF0000
    return int(struct.unpack("<f", struct.pack("<I", u))[0])
def rowcol(lp):
    if lp < 256: return lp % 8, lp // 8
    if lp < 512: return 8 + (lp % 8)//2, (lp-256)//8
    if lp < 1024: return 12 + 2*((lp-512)//256) + (lp % 8)//4, ((lp-512) % 256)//8
    return 16 + (lp-1024)//256, ((lp-1024) % 256)//8
def idx_table():
    t = []
    for cp in range(2):
        for x in range(LY.KRLEN):
            idx = LY.KRC + cp - x
            if 0 <= idx <= 2047:
                r, c = rowcol(rnd_bf16_int(idx)); t.append((c*32 + r)*2)
            else: t.append(2048)
    return t

XROW = 272; XT = 21*XROW; ET = 32*XROW; WREG = 14592

def gen_kgen_role(A, name, first_wg, tabname):
    LANE, T0, T1, T2, T3 = 0, 1, 2, 3, 4
    RAW = 8
    DT = 14
    IDX = 16
    G1, G2, G4, G8, H, W, CUR, EC, TMP = 52, 54, 56, 58, 60, 62, 64, 66, 68
    S0, S1, S2, S3 = 70, 71, 72, 73
    AXW, AEW, AA, AB = 74, 75, 76, 77
    FA, FB = 80, 84; FA2, FB2 = 88, 92
    ACC = 96
    OUT = 112
    AD = 120
    A.e("s_load_dwordx8 s[4:11], s[0:1], 8")
    A.e("s_load_dwordx4 s[12:15], s[0:1], 40")
    A.e("s_load_dwordx2 s[16:17], s[0:1], 56")
    A.e("s_load_dwordx2 s[18:19], s[0:1], 112")
    A.e(f"v_lshrrev_b32 v{T0}, 6, v0")
    A.e(f"v_and_b32 v{LANE}, 63, v0")
    A.e(f"v_readfirstlane_b32 s28, v{T0}")
    A.e(f"s_sub_u32 s29, s2, {first_wg}")
    A.e("s_lshl_b32 s29, s29, 2")
    A.e("s_add_u32 s29, s29, s28")
    A.e(f"s_mul_i32 s30, s28, {WREG}")
    A.e("s_getpc_b64 s[20:21]")
    A.label(f"{name}_pc")
    A.e(f"s_add_u32 s20, s20, {tabname}-{name}_pc")
    A.e("s_addc_u32 s21, s21, 0")
    A.e(f"v_lshlrev_b32 v{T1}, 4, v{LANE}")
    for it in range(9):
        A.e(f"global_load_dwordx4 {vr(IDX+4*it,4)}, v{T1}, s[20:21] offset:{0}" if it == 0 else
            f"global_load_dwordx4 {vr(IDX+4*it,4)}, v{T1}, s[20:21] offset:{1024*it if 1024*it < 4096 else 0}" if 1024*it < 4096 else "")
    A.e(f"v_add_u32 v{T2}, 4096, v{T1}")
    for it in range(4, 8): A.e(f"global_load_dwordx4 {vr(IDX+4*it,4)}, v{T2}, s[20:21] offset:{1024*(it-4)}")
    A.e(f"v_add_u32 v{T2}, 8192, v{T1}")
    A.e(f"global_load_dwordx4 {vr(IDX+32,4)}, v{T2}, s[20:21]")
    A.e(f"v_lshlrev_b32 v{T0}, 2, v{LANE}")
    A.e("s_lshl_b32 s31, s29, 8")
    A.e("s_waitcnt lgkmcnt(0)")
    for i, p in enumerate((4, 6, 8, 10, 12, 14)):
        A.e(f"s_mov_b32 s{32+4*i}, s{p}")
        A.e(f"s_mov_b32 s{33+4*i}, s{p+1}")
        A.e(f"s_mov_b32 s{34+4*i}, {576*256}")
        A.e(f"s_mov_b32 s{35+4*i}, 0x00020000")
        A.e(f"buffer_load_dword v{RAW+i}, v{T0}, s[{32+4*i}:{35+4*i}], s31 offen")
    make_srd(A, 24, 16, 17, "0", 1152)
    A.e("s_lshl_b32 s22, s29, 1")
    A.e(f"v_mov_b32 v{T2}, s22")
    A.e(f"buffer_load_ushort v{DT}, v{T2}, s[24:27], 0 offen")
    A.e(f"v_add_u32 v{AXW}, s30, v{T0}")
    A.e(f"v_add_u32 v{AEW}, {XT}, v{AXW}")
    A.e(f"v_and_b32 v{T1}, 31, v{LANE}")
    A.e(f"v_lshrrev_b32 v{T2}, 5, v{LANE}")
    A.e(f"v_min_u32 v{T3}, 20, v{T1}")
    A.e(f"v_mul_u32_u24 v{AA}, {XROW}, v{T3}")
    A.e(f"v_lshl_add_u32 v{AA}, v{T2}, 4, v{AA}")
    A.e(f"v_add_u32 v{AA}, s30, v{AA}")
    A.e(f"v_mul_u32_u24 v{AB}, {XROW}, v{T1}")
    A.e(f"v_lshl_add_u32 v{AB}, v{T2}, 4, v{AB}")
    A.e(f"v_add_u32 v{AB}, s30, v{AB}")
    A.e(f"v_add_u32 v{AB}, {XT}, v{AB}")
    for r in range(16): A.e(f"v_mov_b32 v{ACC+r}, 0")
    A.e("s_waitcnt vmcnt(0)")
    L_hi = float(np.float32(math.log2(math.e))); L_lo = math.log2(math.e) - L_hi
    A.e(f"v_lshlrev_b32 v{DT}, 16, v{DT}")
    A.e(f"s_mov_b32 s22, 0x{f32bits(L_hi):x}")
    A.e(f"s_mov_b32 s23, 0x{f32bits(L_lo):x}")
    A.e(f"v_mul_f32 v{S0}, s22, v{DT}")
    A.e(f"v_fma_f32 v{S1}, v{DT}, s22, -v{S0}")
    A.e(f"v_fma_f32 v{S1}, v{DT}, s23, v{S1}")
    A.e(f"v_exp_f32 v{S0}, v{S0}")
    A.e(f"v_mul_f32 v{S1}, 0x{f32bits(math.log(2.0)):x}, v{S1}")
    A.e(f"v_fma_f32 v{S0}, v{S0}, v{S1}, v{S0}")
    A.e(f"v_cvt_pk_bf16_f32 v{S0}, v{S0}, v{S0}")
    A.e(f"v_and_b32 v{DT}, 0xffff0000, v{S0}")
    def cmul(D, X, G):
        A.e(f"v_pk_mul_f32 {vr(TMP,2)}, {vr(X,2)}, {vr(G,2)} op_sel_hi:[1,0]")
        A.e(f"v_pk_fma_f32 {vr(D,2)}, {vr(X,2)}, {vr(G,2)}, {vr(TMP,2)} op_sel:[1,1,0] op_sel_hi:[0,1,1] neg_lo:[0,1,0]")
    def cmul2(D, X, G, TM):
        A.e(f"v_pk_mul_f32 {vr(TM,2)}, {vr(X,2)}, {vr(G,2)} op_sel_hi:[1,0]")
        A.e(f"v_pk_fma_f32 {vr(D,2)}, {vr(X,2)}, {vr(G,2)}, {vr(TM,2)} op_sel:[1,1,0] op_sel_hi:[0,1,1] neg_lo:[0,1,0]")
    PK = 78; PK2 = 79; TMP2 = 116
    def putX(row, X):
        A.e(f"v_cvt_pk_bf16_f32 v{PK}, v{X}, -v{X+1}")
        A.e(f"ds_write_b32 v{AXW}, v{PK} offset:{row*XROW}")
    def putE(row, X):
        A.e(f"v_cvt_pk_bf16_f32 v{PK2}, v{X}, v{X+1}")
        A.e(f"ds_write_b32 v{AEW}, v{PK2} offset:{row*XROW}")
    for p in range(2):
        ex = (lambda d, s: A.e(f"v_lshlrev_b32 v{d}, 16, v{s}")) if p == 0 else (lambda d, s: A.e(f"v_and_b32 v{d}, 0xffff0000, v{s}"))
        ex(S0, RAW+0); ex(S1, RAW+1)
        A.e(f"v_mul_f32 v{S0}, v{DT}, v{S0}")
        A.e(f"v_mul_f32 v{S1}, v{DT}, v{S1}")
        A.e(f"v_mul_f32 v{S2}, 0x{f32bits(math.log2(math.e)):x}, v{S0}")
        A.e(f"v_mul_f32 v{S3}, 0x{f32bits(1.0/(2*math.pi)):x}, v{S1}")
        for (G, m) in ((G1, 1.0), (G8, 8.0), (H, 256.0)):
            A.e(f"v_mul_f32 v{S0}, 0x{f32bits(m):x}, v{S2}")
            A.e(f"v_mul_f32 v{S1}, 0x{f32bits(m):x}, v{S3}")
            A.e(f"v_exp_f32 v{S0}, v{S0}")
            A.e(f"v_fract_f32 v{S1}, v{S1}")
            A.e("s_nop 0")
            A.e(f"v_cos_f32 v{G}, v{S1}")
            A.e(f"v_sin_f32 v{G+1}, v{S1}")
            A.e("s_nop 0")
            A.e(f"v_mul_f32 v{G}, v{G}, v{S0}")
            A.e(f"v_mul_f32 v{G+1}, v{G+1}, v{S0}")
        ex(S0, RAW+2); ex(S1, RAW+3)
        A.e(f"v_mul_f32 v{CUR}, v{DT}, v{S0}")
        A.e(f"v_mul_f32 v{CUR+1}, v{DT}, v{S1}")
        ex(EC, RAW+4); ex(EC+1, RAW+5)
        cmul(W, CUR, EC)
        cmul(G2, G1, G1)
        cmul(G4, G2, G2)
        if p == 1: A.e("s_waitcnt lgkmcnt(0)")
        xops = []
        xops.append(("put", 0, W))
        prev = W
        XA, XB = CUR, CUR
        seq = [("mul", CUR, W, G1, 1)] + [("mul", CUR, CUR, G1, b) for b in range(2, 8)]
        seq += [("mul", EC+0, W, H, 8)]
        prog = []
        prog.append(lambda: putX(0, W))
        prog.append(lambda: (cmul(CUR, W, G1), putX(1, CUR)))
        for b in range(2, 8): prog.append(lambda b=b: (cmul(CUR, CUR, G1), putX(b, CUR)))
        XH = W
        prog.append(lambda: (cmul(XH, W, H), putX(8, XH)))
        prog.append(lambda: (cmul(CUR, XH, G2), putX(9, CUR)))
        prog.append(lambda: (cmul(CUR, CUR, G2), putX(10, CUR)))
        prog.append(lambda: (cmul(CUR, CUR, G2), putX(11, CUR)))
        prog.append(lambda: (cmul(XH, XH, H), putX(12, XH)))
        prog.append(lambda: (cmul(CUR, XH, G4), putX(13, CUR)))
        prog.append(lambda: (cmul(XH, XH, H), putX(14, XH)))
        prog.append(lambda: (cmul(CUR, XH, G4), putX(15, CUR)))
        for row in range(16, 21): prog.append(lambda row=row: (cmul(XH, XH, H), putX(row, XH)))
        eprog = []
        def e0():
            A.e(f"v_mov_b32 v{PK2}, 0x00003f80")
            A.e(f"ds_write_b32 v{AEW}, v{PK2}")
        eprog.append(e0)
        eprog.append(lambda: putE(1, G8))
        eprog.append(lambda: (cmul2(EC, G8, G8, TMP2), putE(2, EC)))
        for r in range(3, 32): eprog.append(lambda r=r: (cmul2(EC, EC, G8, TMP2), putE(r, EC)))
        for i in range(32):
            eprog[i]()
            if i < len(prog): prog[i]()
        A.e("s_waitcnt lgkmcnt(0)")
        for s in range(0, 8, 2):
            A.e(f"ds_read_b128 {vr(FA,4)}, v{AA} offset:{32*s}")
            A.e(f"ds_read_b128 {vr(FB,4)}, v{AB} offset:{32*s}")
            A.e(f"ds_read_b128 {vr(FA2,4)}, v{AA} offset:{32*s+32}")
            A.e(f"ds_read_b128 {vr(FB2,4)}, v{AB} offset:{32*s+32}")
            A.e("s_waitcnt lgkmcnt(2)")
            A.e(f"v_mfma_f32_32x32x16_bf16 {vr(ACC,16)}, {vr(FA,4)}, {vr(FB,4)}, {vr(ACC,16)}")
            A.e("s_waitcnt lgkmcnt(0)")
            A.e(f"v_mfma_f32_32x32x16_bf16 {vr(ACC,16)}, {vr(FA2,4)}, {vr(FB2,4)}, {vr(ACC,16)}")
    A.e(f"v_and_b32 v{T1}, 31, v{LANE}")
    A.e(f"v_lshrrev_b32 v{T2}, 5, v{LANE}")
    A.e(f"v_lshlrev_b32 v{T1}, 6, v{T1}")
    A.e(f"v_lshl_add_u32 v{T1}, v{T2}, 3, v{T1}")
    A.e(f"v_add_u32 v{T1}, s30, v{T1}")
    A.e(f"v_mov_b32 v{T3}, s30")
    A.e(f"v_mov_b32 v{S0}, 0")
    A.e("s_nop 7")
    A.e(f"ds_write_b32 v{T3}, v{S0} offset:2048")
    for g in range(3):
        A.e(f"v_cvt_pk_bf16_f32 v{FA}, v{ACC+4*g}, v{ACC+4*g+1}")
        A.e(f"v_cvt_pk_bf16_f32 v{FA+1}, v{ACC+4*g+2}, v{ACC+4*g+3}")
        A.e(f"ds_write_b64 v{T1}, {vr(FA,2)} offset:{16*g}")
    A.e(f"s_mul_i32 s31, s29, {LY.KR_ROW}")
    A.e(f"s_add_u32 s31, s31, {LY.KR_OFF}")
    make_srd(A, 24, 18, 19, "s31", LY.KR_ROW)
    A.e(f"v_lshlrev_b32 v{T1}, 4, v{LANE}")
    A.e("s_waitcnt lgkmcnt(0)")
    for it in range(9):
        o = OUT + 4*(it % 2)
        for e in range(8):
            A.e(f"v_add_u32_sdwa v{AD+e}, v{T3}, v{IDX+4*it+e//2} dst_sel:DWORD dst_unused:UNUSED_PAD src0_sel:DWORD src1_sel:WORD_{e%2}")
        for e in range(8):
            A.e(f"ds_read_u16 v{AD+e}, v{AD+e}")
        A.e("s_waitcnt lgkmcnt(0)")
        for i in range(4):
            A.e(f"v_lshl_or_b32 v{o+i}, v{AD+2*i+1}, 16, v{AD+2*i}")
        A.e(f"buffer_store_dwordx4 {vr(o,4)}, v{T1}, s[24:27], 0 offen offset:{1024*it}" if 1024*it < 4096 else
            f"buffer_store_dwordx4 {vr(o,4)}, v{T1}, s[24:27], s{22 if False else 23} offen" )
        if 1024*(it+1) >= 4096 and it < 8: A.e(f"s_mov_b32 s23, {1024*(it+1)}")
    A.e("s_endpgm")
    return 128

def emit_idx_table(A, tabname):
    t = idx_table() + [2048]*(576*8 - 2*LY.KRLEN)
    A.raw(".p2align 4")
    A.raw(f".type {tabname},@object")
    A.label(tabname)
    for i in range(0, len(t), 16):
        A.raw("  .short " + ", ".join(str(x) for x in t[i:i+16]))
    A.raw(f".size {tabname}, {len(t)*2}")

def gen_ut_role(A, name, first_wg):
    LANE, T0, T1, T2, T3 = 0, 1, 2, 3, 4
    VU, VS, VZ = 5, 6, 7
    R = 8
    A.e("s_load_dwordx2 s[4:5], s[0:1], 0")
    A.e("s_load_dwordx2 s[10:11], s[0:1], 112")
    A.e(f"v_lshrrev_b32 v{T0}, 6, v0")
    A.e(f"v_and_b32 v{LANE}, 63, v0")
    A.e(f"v_readfirstlane_b32 s28, v{T0}")
    A.e(f"s_sub_u32 s29, s2, {first_wg}")
    A.e("s_lshl_b32 s29, s29, 2")
    A.e("s_add_u32 s29, s29, s28")
    A.e("s_mul_i32 s33, s29, 7282")
    A.e("s_lshr_b32 s33, s33, 16")
    A.e("s_mul_i32 s34, s33, 9")
    A.e("s_sub_u32 s34, s29, s34")
    A.e("s_lshl_b32 s40, s33, 6")
    A.e("s_lshl_b32 s41, s34, 6")
    A.e("s_lshl_b32 s30, s28, 13")
    A.e(f"v_lshrrev_b32 v{T0}, 3, v{LANE}")
    A.e(f"v_mul_u32_u24 v{VU}, 1152, v{T0}")
    A.e(f"v_and_b32 v{T1}, 7, v{LANE}")
    A.e(f"v_lshl_add_u32 v{VU}, v{T1}, 4, v{VU}")
    A.e(f"v_mul_u32_u24 v{VZ}, {LY.UT_ROW}, v{T0}")
    A.e(f"v_lshl_add_u32 v{VZ}, v{T1}, 4, v{VZ}")
    A.e("s_waitcnt lgkmcnt(0)")
    make_srd(A, 12, 4, 5, "0", 2048*1152)
    make_srd(A, 24, 10, 11, str(LY.UT_OFF), LY.UT_BYTES)
    A.e("s_mul_i32 s35, s40, 1152")
    A.e("s_lshl_b32 s36, s41, 1")
    A.e("s_add_u32 s35, s35, s36")
    A.e("s_mov_b32 s36, s30")
    for n in range(8):
        if n:
            A.e(f"s_add_u32 s35, s35, {8*1152}"); A.e("s_add_u32 s36, s36, 1024")
        A.e("s_mov_b32 m0, s36"); A.e("s_nop 0")
        A.e(f"buffer_load_dwordx4 v{VU}, s[12:15], s35 offen lds")
    for r in range(4): A.e(f"v_mov_b32 v{R+r}, 0")
    A.e("s_cmp_ge_u32 s33, 16")
    A.e(f"s_cbranch_scc1 {name}_nz")
    A.e(f"s_mul_i32 s35, s41, {LY.UT_ROW}")
    A.e("s_lshl_b32 s36, s33, 7")
    A.e("s_add_u32 s35, s35, s36")
    for n in range(8):
        A.e(f"buffer_store_dwordx4 {vr(R,4)}, v{VZ}, s[24:27], s35 offen")
        A.e(f"s_add_u32 s35, s35, {8*LY.UT_ROW}")
    A.label(f"{name}_nz")
    A.e(f"v_lshrrev_b32 v{T1}, 4, v{LANE}")
    A.e(f"v_lshrrev_b32 v{T2}, 2, v{LANE}")
    A.e(f"v_and_b32 v{T2}, 3, v{T2}")
    A.e(f"v_lshl_add_u32 v{T2}, v{T1}, 3, v{T2}")
    A.e(f"v_lshlrev_b32 v{T2}, 7, v{T2}")
    A.e(f"v_and_b32 v{T3}, 3, v{LANE}")
    A.e(f"v_lshl_add_u32 v{T2}, v{T3}, 3, v{T2}")
    A.e(f"v_add_u32 v{T2}, s30, v{T2}")
    A.e(f"v_and_b32 v{T0}, 15, v{LANE}")
    A.e(f"v_mul_u32_u24 v{VS}, {LY.UT_ROW}, v{T0}")
    A.e(f"v_lshl_add_u32 v{VS}, v{T1}, 4, v{VS}")
    A.e(f"s_mul_i32 s35, s41, {LY.UT_ROW}")
    A.e("s_lshl_b32 s36, s40, 1")
    A.e("s_add_u32 s35, s35, s36")
    A.e("s_add_u32 s35, s35, 2048")
    A.e("s_waitcnt vmcnt(0)")
    for it in range(4):
        for hf in range(2):
            o = R + 4 + 8*((it*2+hf) % 4)//2*0 + 4*((it*2+hf) % 4)
            A.e(f"ds_read_b64_tr_b16 {vr(o,2)}, v{T2} offset:{hf*32*128 + it*32}")
            A.e(f"ds_read_b64_tr_b16 {vr(o+2,2)}, v{T2} offset:{hf*32*128 + 4*128 + it*32}")
            A.e("s_waitcnt lgkmcnt(0)")
            A.e(f"s_add_u32 s37, s35, {it*16*LY.UT_ROW + hf*64}")
            A.e(f"buffer_store_dwordx4 {vr(o,4)}, v{VS}, s[24:27], s37 offen")
    A.e("s_endpgm")
    return 32
```

```python
import sys; sys.path.insert(0, "work")
from asmlib import *
import layout as LY

def gen_outproj_role(A, name):
    ACC = [0, 16, 32]
    OF = 48
    OL = 112
    WF = [[120, 124, 128], [132, 136, 140]]
    AW, AWL = 144, 145
    LANE, T0, T1, T2, T3, T4 = 146, 147, 148, 149, 150, 151
    VW = [152, 153, 154]
    A.e("s_load_dwordx4 s[4:7], s[0:1], 88")
    A.e("s_load_dwordx2 s[8:9], s[0:1], 112")
    A.e("s_and_b32 s10, s2, 7")
    A.e("s_lshr_b32 s11, s2, 3")
    A.e("s_lshl_b32 s24, s10, 2")
    A.e("s_and_b32 s25, s11, 3")
    A.e("s_add_u32 s24, s24, s25")
    A.e("s_lshr_b32 s25, s11, 2")
    A.e(f"v_and_b32 v{LANE}, 63, v0")
    A.e(f"v_lshrrev_b32 v{T0}, 6, v0")
    A.e("s_nop 0")
    A.e(f"v_readfirstlane_b32 s28, v{T0}")
    A.e("s_mul_i32 s29, s25, 192")
    for i in range(3):
        A.e(f"v_add_u32 v{T0}, {64*i}, v{LANE}")
        A.e(f"v_mul_u32_u24 v{T1}, 5462, v{T0}")
        A.e(f"v_lshrrev_b32 v{T1}, 16, v{T1}")
        A.e(f"v_mul_u32_u24 v{T2}, 12, v{T1}")
        A.e(f"v_sub_u32 v{T2}, v{T0}, v{T2}")
        A.e(f"v_mul_u32_u24 v{T1}, 1152, v{T1}")
        A.e(f"v_lshl_add_u32 v{VW[i]}, v{T2}, 4, v{T1}")
    A.e("s_and_b32 s30, s28, 1")
    A.e("s_lshr_b32 s31, s28, 1")
    A.e("s_lshl_b32 s32, s24, 1")
    A.e("s_add_u32 s32, s32, s30")
    A.e("s_waitcnt lgkmcnt(0)")
    A.e("s_add_u32 s12, s4, s29")
    A.e("s_addc_u32 s13, s5, 0")
    A.e(f"s_sub_u32 s14, {576*1152}, s29")
    A.e("s_mov_b32 s15, 0x00020000")
    make_srd(A, 16, 8, 9, str(LY.O_OFF), LY.O_BYTES)
    make_srd(A, 20, 6, 7, "0", 2048*2304)
    A.e(f"v_lshlrev_b32 v{T0}, 4, v{LANE}")
    A.e("s_lshl_b32 s33, s31, 4")
    A.e("s_lshl_b32 s34, s33, 6")
    A.e("s_add_u32 s34, s34, s32")
    A.e("s_lshl_b32 s34, s34, 10")
    def wdma(g):
        A.e(f"s_add_u32 s36, s28, {4*g}")
        A.e(f"s_mul_i32 s37, s36, {16*1152}")
        A.e("s_mul_i32 s38, s36, 3072")
        for i in range(3):
            if i: A.e("s_add_u32 s38, s38, 1024")
            A.e("s_mov_b32 m0, s38")
            A.e("s_nop 0")
            A.e(f"buffer_load_dwordx4 v{VW[i]}, s[12:15], s37 offen lds")
    for g in range(2): wdma(g)
    for h in range(16):
        A.e(f"buffer_load_dwordx4 {vr(OF+4*h,4)}, v{T0}, s[16:19], s34 offen")
        A.e(f"s_add_u32 s34, s34, {64*1024}")
    A.e(f"v_lshrrev_b32 v{T1}, 5, v{LANE}")
    A.e(f"v_lshlrev_b32 v{T1}, 15, v{T1}")
    A.e(f"v_and_b32 v{T2}, 31, v{LANE}")
    A.e(f"v_lshl_add_u32 v{T1}, v{T2}, 2, v{T1}")
    A.e("s_lshl_b32 s35, s33, 13")
    A.e("s_lshl_b32 s36, s32, 7")
    A.e("s_add_u32 s35, s35, s36")
    A.e(f"s_add_u32 s35, s35, {LY.O1_BYTES}")
    for m in range(2):
        for x in range(4):
            A.e(f"buffer_load_dword v{OL+4*m+x}, v{T1}, s[16:19], s35 offen")
            A.e(f"s_add_u32 s35, s35, 8192")
        A.e(f"s_add_u32 s35, s35, {4*8192}")
    for g in range(2, 9): wdma(g)
    A.e(f"v_lshrrev_b32 v{T1}, 5, v{LANE}")
    A.e(f"v_lshrrev_b32 v{T2}, 2, v{LANE}")
    A.e(f"v_and_b32 v{T2}, 3, v{T2}")
    A.e(f"v_lshrrev_b32 v{T3}, 4, v{LANE}")
    A.e(f"v_and_b32 v{T3}, 1, v{T3}")
    A.e(f"v_and_b32 v{T4}, 3, v{LANE}")
    A.e(f"v_lshl_add_u32 v{T3}, v{T3}, 2, v{T4}")
    A.e(f"v_lshlrev_b32 v{T3}, 2, v{T3}")
    A.e(f"v_mov_b32 v{T4}, 0x75643120")
    A.e(f"v_lshrrev_b32 v{T4}, v{T3}, v{T4}")
    A.e(f"v_and_b32 v{T4}, 15, v{T4}")
    A.e(f"v_lshlrev_b32 v{T4}, 3, v{T4}")
    A.e(f"v_lshl_add_u32 v{T0}, v{T1}, 2, v{T2}")
    A.e(f"v_mul_u32_u24 v{AW}, 192, v{T0}")
    A.e(f"v_add_u32 v{AW}, v{AW}, v{T4}")
    A.e(f"s_mul_i32 s36, s31, {16*18*192}")
    A.e(f"v_add_u32 v{AW}, s36, v{AW}")
    A.e(f"v_lshrrev_b32 v{T0}, 1, v{T2}")
    A.e(f"v_lshl_add_u32 v{T0}, v{T1}, 2, v{T0}")
    A.e(f"v_mul_u32_u24 v{T0}, 18, v{T0}")
    A.e(f"v_and_b32 v{T2}, 1, v{T2}")
    A.e(f"v_add3_u32 v{T0}, v{T0}, v{T2}, 16")
    A.e(f"v_mul_u32_u24 v{AWL}, 192, v{T0}")
    A.e(f"v_add_u32 v{AWL}, v{AWL}, v{T4}")
    A.e(f"v_add_u32 v{AWL}, s36, v{AWL}")
    for r in range(48): A.e(f"v_mov_b32 v{r}, 0")
    A.e("s_waitcnt vmcnt(0)")
    A.e("s_barrier")
    steps = [("m", h) for h in range(16)] + [("l", m) for m in range(2)]
    def rd(buf, st):
        kind, x = st
        for ft in range(3):
            for q in range(2):
                if kind == "m": A.e(f"ds_read_b64_tr_b16 {vr(WF[buf][ft]+2*q,2)}, v{AW} offset:{(18*x + 8*q)*192 + 64*ft}")
                else:           A.e(f"ds_read_b64_tr_b16 {vr(WF[buf][ft]+2*q,2)}, v{AWL} offset:{(18*(8*x + 2*q))*192 + 64*ft}")
    rd(0, steps[0])
    for i, st in enumerate(steps):
        buf = i % 2
        if i + 1 < len(steps):
            rd(1-buf, steps[i+1]); A.e("s_waitcnt lgkmcnt(6)")
        else: A.e("s_waitcnt lgkmcnt(0)")
        o = OF + 4*st[1] if st[0] == "m" else OL + 4*st[1]
        for ft in range(3):
            A.e(f"v_mfma_f32_32x32x16_bf16 {vr(ACC[ft],16)}, {vr(WF[buf][ft],4)}, {vr(o,4)}, {vr(ACC[ft],16)}")
    A.e("s_barrier")
    A.e(f"v_lshlrev_b32 v{T0}, 4, v{LANE}")
    A.e(f"s_mul_i32 s36, s30, {12*1024}")
    A.e(f"v_add_u32 v{T0}, s36, v{T0}")
    A.e("s_nop 7")
    A.e("s_cmp_eq_u32 s31, 0")
    A.e(f"s_cbranch_scc1 {name}_recv")
    for i in range(12): A.e(f"ds_write_b128 v{T0}, {vr(4*i,4)} offset:{1024*i}")
    A.e("s_waitcnt lgkmcnt(0)")
    A.e("s_barrier")
    A.e("s_endpgm")
    A.label(f"{name}_recv")
    A.e("s_barrier")
    for i in range(12): A.e(f"ds_read_b128 {vr(48+4*i,4)}, v{T0} offset:{1024*i}")
    A.e(f"v_and_b32 v{T1}, 31, v{LANE}")
    A.e("s_lshl_b32 s36, s32, 5")
    A.e(f"v_add_u32 v{T1}, s36, v{T1}")
    A.e("s_movk_i32 s37, 2304")
    A.e(f"v_mul_lo_u32 v{T1}, v{T1}, s37")
    A.e(f"v_lshrrev_b32 v{T2}, 5, v{LANE}")
    A.e(f"v_lshl_add_u32 v{T1}, v{T2}, 4, v{T1}")
    A.e("s_add_u32 s36, s29, 1152")
    A.e("s_waitcnt lgkmcnt(0)")
    for r in range(48): A.e(f"v_add_f32 v{r}, v{r}, v{48+r}")
    for ft in range(3):
        a = ACC[ft]
        for i in range(8): A.e(f"v_cvt_pk_bf16_f32 v{a+i}, v{a+2*i}, v{a+2*i+1}")
        A.e(f"buffer_store_dwordx4 {vr(a,4)}, v{T1}, s[20:23], s36 offen offset:{64*ft}")
        A.e(f"buffer_store_dwordx4 {vr(a+4,4)}, v{T1}, s[20:23], s36 offen offset:{64*ft+32}")
    A.e("s_endpgm")
    return 156

def gen_final_role(A, name, first_wg):
    LANE, T0, T1, T2, T3, T4 = 0, 1, 2, 3, 4, 5
    VY, VU, VA = 6, 7, 8
    Y = 16
    A.e("s_load_dwordx2 s[4:5], s[0:1], 0")
    A.e("s_load_dwordx2 s[6:7], s[0:1], 64")
    A.e("s_load_dwordx2 s[8:9], s[0:1], 96")
    A.e("s_load_dwordx2 s[10:11], s[0:1], 112")
    A.e(f"v_lshrrev_b32 v{T0}, 6, v0")
    A.e(f"v_and_b32 v{LANE}, 63, v0")
    A.e(f"v_readfirstlane_b32 s28, v{T0}")
    A.e(f"s_sub_u32 s29, s2, {first_wg}")
    A.e("s_lshl_b32 s29, s29, 2")
    A.e("s_add_u32 s29, s29, s28")
    A.e("s_lshl_b32 s29, s29, 1")
    A.e("s_lshl_b32 s30, s28, 14")
    A.e(f"v_lshrrev_b32 v{T0}, 3, v{LANE}")
    A.e(f"v_lshlrev_b32 v{VY}, 12, v{T0}")
    A.e(f"v_and_b32 v{T1}, 7, v{LANE}")
    A.e(f"v_lshl_add_u32 v{VY}, v{T1}, 4, v{VY}")
    A.e(f"v_and_b32 v{T0}, 15, v{LANE}")
    A.e(f"v_lshrrev_b32 v{T1}, 4, v{LANE}")
    A.e(f"v_mul_u32_u24 v{VU}, 1152, v{T0}")
    A.e(f"v_lshl_add_u32 v{VU}, v{T1}, 4, v{VU}")
    A.e(f"v_mul_u32_u24 v{VA}, 2304, v{T0}")
    A.e(f"v_lshl_add_u32 v{VA}, v{T1}, 4, v{VA}")
    A.e(f"v_lshrrev_b32 v{T2}, 2, v{LANE}")
    A.e(f"v_and_b32 v{T2}, 3, v{T2}")
    A.e(f"v_lshl_add_u32 v{T2}, v{T1}, 3, v{T2}")
    A.e(f"v_lshlrev_b32 v{T2}, 7, v{T2}")
    A.e(f"v_and_b32 v{T3}, 3, v{LANE}")
    A.e(f"v_lshl_add_u32 v{T2}, v{T3}, 3, v{T2}")
    A.e(f"v_add_u32 v{T2}, s30, v{T2}")
    A.e(f"v_lshlrev_b32 v{T4}, 4, v{T1}")
    A.e("s_waitcnt lgkmcnt(0)")
    make_srd(A, 12, 4, 5, "0", 2048*1152)
    make_srd(A, 16, 6, 7, "0", 1152)
    make_srd(A, 20, 8, 9, "0", 2048*2304)
    make_srd(A, 24, 10, 11, str(LY.YT_OFF), LY.YT_BYTES)
    U = 16
    DS = 80
    for k in range(2):
        A.e(f"s_add_u32 s31, s29, {k}")
        A.e("s_mul_i32 s33, s31, 7282")
        A.e("s_lshr_b32 s33, s33, 16")
        A.e("s_mul_i32 s34, s33, 9")
        A.e("s_sub_u32 s34, s31, s34")
        A.e(f"s_lshl_b32 s{40+4*k}, s33, 6")
        A.e(f"s_lshl_b32 s{41+4*k}, s34, 6")
        A.e(f"s_lshl_b32 s35, s{41+4*k}, 12")
        A.e(f"s_lshl_b32 s36, s{40+4*k}, 1")
        A.e("s_add_u32 s35, s35, s36")
        A.e(f"s_add_u32 s36, s30, {8192*k}")
        for n in range(8):
            if n:
                A.e(f"s_add_u32 s35, s35, {8*4096}"); A.e("s_add_u32 s36, s36, 1024")
            A.e("s_mov_b32 m0, s36"); A.e("s_nop 0")
            A.e(f"buffer_load_dwordx4 v{VY}, s[24:27], s35 offen lds")
        A.e(f"s_mul_i32 s35, s{40+4*k}, 1152")
        A.e(f"s_lshl_b32 s36, s{41+4*k}, 1")
        A.e("s_add_u32 s35, s35, s36")
        for it in range(4):
            for hf in range(2):
                A.e(f"buffer_load_dwordx4 {vr(U+32*k+8*it+4*hf,4)}, v{VU}, s[12:15], s35 offen offset:{64*hf}")
            A.e(f"s_add_u32 s35, s35, {16*1152}")
        for hf in range(2):
            A.e(f"buffer_load_dwordx4 {vr(DS+8*k+4*hf,4)}, v{T4}, s[16:19], s36 offen offset:{64*hf}")
    YR = 96; DF = 100; W0 = 116
    for k in range(2):
        A.e(f"s_waitcnt vmcnt({18 if k == 0 else 8})")
        A.e(f"s_mul_i32 s35, s{40+4*k}, 2304")
        A.e(f"s_lshl_b32 s36, s{41+4*k}, 1")
        A.e("s_add_u32 s35, s35, s36")
        for hf in range(2):
            d = DS + 8*k + 4*hf
            for i in range(4):
                A.e(f"v_lshlrev_b32 v{DF+2*i}, 16, v{d+i}")
                A.e(f"v_and_b32 v{DF+2*i+1}, 0xffff0000, v{d+i}")
            for it in range(4):
                A.e(f"ds_read_b64_tr_b16 {vr(YR,2)}, v{T2} offset:{8192*k + hf*32*128 + it*32}")
                A.e(f"ds_read_b64_tr_b16 {vr(YR+2,2)}, v{T2} offset:{8192*k + hf*32*128 + 4*128 + it*32}")
                u = U + 32*k + 8*it + 4*hf
                for i in range(4):
                    A.e(f"v_lshlrev_b32 v{W0}, 16, v{u+i}")
                    A.e(f"v_and_b32 v{W0+1}, 0xffff0000, v{u+i}")
                    A.e(f"v_mul_f32 v{W0}, v{W0}, v{DF+2*i}")
                    A.e(f"v_mul_f32 v{W0+1}, v{W0+1}, v{DF+2*i+1}")
                    A.e(f"v_cvt_pk_bf16_f32 v{u+i}, v{W0}, v{W0+1}")
                A.e("s_waitcnt lgkmcnt(0)")
                for i in range(4):
                    A.e(f"v_lshlrev_b32 v{W0}, 16, v{u+i}")
                    A.e(f"v_and_b32 v{W0+1}, 0xffff0000, v{u+i}")
                    A.e(f"v_lshlrev_b32 v{W0+2}, 16, v{YR+i}")
                    A.e(f"v_and_b32 v{W0+3}, 0xffff0000, v{YR+i}")
                    A.e(f"v_add_f32 v{W0}, v{W0}, v{W0+2}")
                    A.e(f"v_add_f32 v{W0+1}, v{W0+1}, v{W0+3}")
                    A.e(f"v_cvt_pk_bf16_f32 v{u+i}, v{W0}, v{W0+1}")
                A.e(f"s_add_u32 s37, s35, {it*16*2304 + hf*64}")
                A.e(f"buffer_store_dwordx4 {vr(u,4)}, v{VA}, s[20:23], s37 offen")
    A.e("s_endpgm")
    return 124
```

```python
import sys; sys.path.insert(0,"gen")
from asmlib import *
from attn import gen_attn
from conv import conv_tail
from build_l1_only import gen_l1, L1_WGS, L1_LDS
from l3 import *
def gen_l3(A):
    kernel_begin(A, "l3_kernel")
    A.e("s_cmp_ge_u32 s2, 228")
    A.e("s_cbranch_scc1 l3_kernel_end")
    A.e("s_cmp_ge_u32 s2, 192")
    A.e("s_cbranch_scc1 l3f")
    nv = gen_outproj_role(A, "l3o")
    A.label("l3f")
    nv = max(nv, gen_final_role(A, "l3f", 192))
    A.label("l3_kernel_end")
    A.e("s_endpgm")
    kernel_end(A, "l3_kernel", nv)
def build(path, stamps=False, opt=None):
    opt = opt or {}
    hdr = open("concat_heads__ssm_conv_s4__softmax_full_mha__prompt.s.ref").read().split("; Override")[0]
    A = Asm()
    A.raw(hdr.rstrip())
    A.raw(f"; @launch kernel=l1_kernel grid=({L1_WGS},1,1) block=(256,1,1) lds={L1_LDS}")
    A.raw("; @launch kernel=attn_kernel grid=(256,1,1) block=(512,1,1) lds=155648")
    A.raw("; @launch kernel=l3_kernel grid=(228,1,1) block=(256,1,1) lds=110592")
    A.raw('.amdgcn_target "amdgcn-amd-amdhsa--gfx950"')
    gen_l1(A)
    gen_attn(A, "attn_kernel", stamps=stamps, opt=opt, helper_tail=lambda A, n: conv_tail(A, n, opt.get("cprio")))
    gen_l3(A)
    open(path, "w").write(A.text())
if __name__ == "__main__":
    opt = {}
    for k in sys.argv[2:]:
        if '=' in k: a, b = k.split('='); opt[a] = int(b)
        else: opt[k] = True
    build(sys.argv[1], stamps=opt.get("stamps", False), opt=opt)
```

```python
class Asm:
    def __init__(self):
        self.lines = []
    def e(self, s):
        for l in s.strip("\n").split("\n"):
            self.lines.append("  " + l.strip())
    def label(self, n): self.lines.append(n + ":")
    def c(self, s): self.lines.append("  ; " + s)
    def raw(self, s): self.lines.append(s)
    def text(self): return "\n".join(self.lines) + "\n"

def vr(a, n=1):
    return f"v{a}" if n == 1 else f"v[{a}:{a+n-1}]"
def sr(a, n=1):
    return f"s{a}" if n == 1 else f"s[{a}:{a+n-1}]"

def kernel_begin(A, name):
    A.raw(".text"); A.raw(f".globl {name}"); A.raw(".p2align 8"); A.raw(f".type {name},@function"); A.label(name)

def kernel_end(A, name, vgpr, sgpr=102, accum=None):
    if accum is None: accum = (vgpr + 3)//4*4
    A.raw(f""".section .rodata,"a"
.p2align 6
.amdhsa_kernel {name}
  .amdhsa_next_free_vgpr {vgpr}
  .amdhsa_next_free_sgpr {sgpr}
  .amdhsa_accum_offset {accum}
  .amdhsa_group_segment_fixed_size 0
  .amdhsa_kernarg_size 120
  .amdhsa_user_sgpr_count 2
  .amdhsa_user_sgpr_kernarg_segment_ptr 1
  .amdhsa_system_sgpr_workgroup_id_x 1
.end_amdhsa_kernel""")

def make_srd(A, d, base_lo, base_hi, off, size):
    A.e(f"s_add_u32 s{d}, s{base_lo}, {off}")
    A.e(f"s_addc_u32 s{d+1}, s{base_hi}, 0")
    A.e(f"s_mov_b32 s{d+2}, {size}")
    A.e(f"s_mov_b32 s{d+3}, 0x00020000")

STAMPS = {"on": False}
def stamp(A, i):
    if STAMPS["on"]: A.e(f"s_memtime s[{80+2*i}:{81+2*i}]")
def stamp_rt0(A):
    if STAMPS["on"]: A.e("s_memrealtime s[96:97]")
def stamp_dump(A, wssgpr, wave_sgpr, waves_per_wg, vbase=0):
    if not STAMPS["on"]: return
    A.e("s_mov_b64 exec, -1")
    A.e("s_waitcnt lgkmcnt(0) vmcnt(0)")
    A.e("s_memtime s[92:93]")
    A.e("s_memrealtime s[98:99]")
    A.e("s_waitcnt lgkmcnt(0)")
    A.e("s_sub_u32 s94, s98, s96")
    A.e("s_mov_b32 s95, 0")
    A.e("s_add_u32 s94, s94, s80")
    A.e("s_addc_u32 s95, s81, 0")
    A.e(f"s_add_u32 s76, s{wssgpr}, {64<<20}")
    A.e(f"s_addc_u32 s77, s{wssgpr+1}, 0")
    A.e(f"s_mov_b32 s78, {1<<20}")
    A.e("s_mov_b32 s79, 0x00020000")
    A.e(f"s_mul_i32 s98, s2, {waves_per_wg}")
    A.e(f"s_add_u32 s98, s98, s{wave_sgpr}")
    A.e("s_lshl_b32 s98, s98, 6")
    for i in range(16): A.e(f"v_mov_b32 v{vbase+i}, s{80+i}")
    A.e(f"v_mov_b32 v{vbase+16}, s98")
    A.e("s_mov_b64 exec, 1")
    for i in range(4):
        A.e(f"buffer_store_dwordx4 v[{vbase+4*i}:{vbase+4*i+3}], v{vbase+16}, s[76:79], 0 offen offset:{16*i}")
```

```python
import sys; sys.path.insert(0,"gen")
from asmlib import *
from l1gemm import gen_gemm_role, GEMM_LDS
from ssm import *
L1_LDS = max(GEMM_LDS, SSM_LDS)
L1_WGS = 192 + 288
def gen_l1(A, only=None):
    kernel_begin(A, "l1_kernel")
    if only == "g":
        A.e("s_cmp_ge_u32 s2, 192"); A.e("s_cbranch_scc1 l1_kernel_end")
    if only == "k":
        A.e("s_cmp_lt_u32 s2, 192"); A.e("s_cbranch_scc1 l1_kernel_end")
    A.e(f"s_cmp_ge_u32 s2, {L1_WGS}")
    A.e("s_cbranch_scc1 l1_kernel_end")
    A.e("s_cmp_ge_u32 s2, 192")
    A.e("s_cbranch_scc1 l1k")
    nv = gen_gemm_role(A, "l1g")
    A.label("l1k")
    nv = max(nv, gen_ssm_role(A, "l1k", 192, "l1_idxtab"))
    A.label("l1_kernel_end")
    A.e("s_endpgm")
    emit_idx_table(A, "l1_idxtab")
    kernel_end(A, "l1_kernel", nv)
if __name__ == "__main__":
    hdr = open("concat_heads__ssm_conv_s4__softmax_full_mha__prompt.s.ref").read().split("; Override")[0]
    A = Asm()
    A.raw(hdr.rstrip())
    A.raw(f"; @launch kernel=l1_kernel grid=({L1_WGS},1,1) block=(256,1,1) lds={L1_LDS}")
    A.raw('.amdgcn_target "amdgcn-amd-amdhsa--gfx950"')
    import asmlib, l1gemm
    import ssm
    for k in sys.argv[4:]:
        if k.startswith('exit='): ssm.SOPT['exit'] = int(k[5:])
        else: l1gemm.OPT[k] = True
    if len(sys.argv) > 3: asmlib.STAMPS["on"] = True
    gen_l1(A, sys.argv[2] if len(sys.argv) > 2 and sys.argv[2] != "all" else None)
    open(sys.argv[1], "w").write(A.text())
```

```python
import sys; sys.path.insert(0, "work")
from asmlib import *
import layout as LY

COPT = {}
def conv_tail(A, name, prio=None):
    LANE = 127
    ACC0, ACC1 = 0, 16
    SETS = [32, 44, 56, 68]
    VA, VB, T0, T1, T2 = 80, 81, 82, 83, 84
    A.e("s_lshl_b32 s40, s10, 8")
    A.e("s_add_u32 s40, s40, s2")
    A.e("s_cmp_ge_u32 s40, 576")
    A.e(f"s_cbranch_scc1 {name}_cend")
    if prio is not None: A.e(f"s_setprio {prio}")
    A.e(f"s_mul_i32 s41, s40, {LY.KR_ROW}")
    A.e(f"s_add_u32 s41, s41, {LY.KR_OFF}")
    make_srd(A, 44, 4, 5, "s41", LY.KR_ROW)
    A.e(f"s_mul_i32 s41, s40, {LY.UT_ROW}")
    A.e(f"s_add_u32 s41, s41, {LY.UT_OFF}")
    make_srd(A, 48, 4, 5, "s41", LY.UT_ROW)
    A.e("s_lshl_b32 s41, s40, 12")
    A.e(f"s_add_u32 s41, s41, {LY.YT_OFF}")
    make_srd(A, 52, 4, 5, "s41", 4096)
    A.e(f"v_and_b32 v{T0}, 31, v{LANE}")
    A.e(f"v_lshrrev_b32 v{T1}, 5, v{LANE}")
    A.e(f"v_lshlrev_b32 v{VB}, 5, v{T0}")
    A.e(f"v_lshl_add_u32 v{VB}, v{T1}, 4, v{VB}")
    A.e(f"v_lshlrev_b32 v{T2}, 3, v{T1}")
    A.e(f"v_sub_u32 v{T2}, v{T2}, v{T0}")
    A.e(f"v_add_u32 v{T2}, 32, v{T2}")
    A.e(f"v_lshlrev_b32 v{VA}, 1, v{T2}")
    A.e(f"v_and_b32 v{T2}, 1, v{T0}")
    A.e(f"v_mul_u32_u24 v{T2}, {LY.KRLEN*2+2}, v{T2}")
    A.e(f"v_add_u32 v{VA}, v{VA}, v{T2}")
    for r in range(32): A.e(f"v_mov_b32 v{r}, 0")
    A.e("s_movk_i32 s56, 4064"); A.e("s_movk_i32 s57, 2048")
    cnt = [0]
    def load(set_, b0):
        v = cnt[0]; cnt[0] += 1
        kh = 1 - (v % 2)
        if COPT.get("noload"): return
        A.e(f"buffer_load_dwordx4 {vr(set_,4)}, v{VA}, s[44:47], s56 offen")
        A.e(f"buffer_load_dwordx4 {vr(set_+4,4)}, v{VB}, s[48:51], s57 offen offset:{3072*kh}")
        if b0:
            A.e("s_sub_i32 s58, s57, 1024"); A.e("s_max_i32 s58, s58, 0")
            A.e(f"buffer_load_dwordx4 {vr(set_+8,4)}, v{VB}, s[48:51], s58 offen offset:{3072*kh}")
        A.e("s_sub_i32 s56, s56, 32"); A.e("s_max_i32 s56, s56, 0")
        if kh == 0:
            A.e("s_sub_i32 s57, s57, 32"); A.e("s_max_i32 s57, s57, 0")
    for u in range(3): load(SETS[u], True)
    for ph in range(2):
        A.e("s_mov_b32 s59, 0")
        A.label(f"{name}_cl{ph}")
        for u in range(4):
            load(SETS[(u+3) % 4], ph == 0)
            A.e(f"s_waitcnt vmcnt({9 if ph == 0 else 6})")
            s = SETS[u]
            if COPT.get("nomfma"): continue
            A.e(f"v_mfma_f32_32x32x16_bf16 {vr(ACC1,16)}, {vr(s,4)}, {vr(s+4,4)}, {vr(ACC1,16)}")
            if ph == 0:
                A.e(f"v_mfma_f32_32x32x16_bf16 {vr(ACC0,16)}, {vr(s,4)}, {vr(s+8,4)}, {vr(ACC0,16)}")
        A.e("s_add_u32 s59, s59, 1")
        A.e("s_cmp_lt_u32 s59, 16")
        A.e(f"s_cbranch_scc1 {name}_cl{ph}")
    A.e(f"v_lshlrev_b32 v{VB}, 6, v{T0}")
    A.e(f"v_lshl_add_u32 v{VB}, v{T1}, 3, v{VB}")
    A.e("s_waitcnt vmcnt(0)")
    A.e("s_nop 15")
    for n, acc in ((0, ACC0), (1, ACC1)):
        for g in range(4):
            A.e(f"v_cvt_pk_bf16_f32 v{32+2*g}, v{acc+4*g}, v{acc+4*g+1}")
            A.e(f"v_cvt_pk_bf16_f32 v{33+2*g}, v{acc+4*g+2}, v{acc+4*g+3}")
            A.e(f"buffer_store_dwordx2 {vr(32+2*g,2)}, v{VB}, s[52:55], 0 offen offset:{2048*n+16*g}")
        A.e("s_nop 1")
    A.label(f"{name}_cend")
```

```python
import sys; sys.path.insert(0, "work")
from asmlib import *
import layout as LY

XSLOT = 16384; WSLOT = 10240; WROW = 320
WBASE = 3*XSLOT
SCR = WBASE + 3*WSLOT
GEMM_LDS = SCR + 1024
NST = 18
OPT = {}
def f32bits(x):
    import struct
    return struct.unpack("<I", struct.pack("<f", x))[0]

def gen_gemm_role(A, name):
    ACC = [0, 16, 32, 48]; ACL = 64
    XF = [[80, 84, 88, 92], [96, 100, 104, 108]]
    WM = [112, 116]; WL = [120, 124]
    AX = [156, 157]
    BX = [132, 133, 134, 135]
    BWM, BWL = 136, 137
    VXO = 138; VW = [139, 140, 141]
    LANE, T0, T1, T2, T3, T4 = 142, 143, 144, 145, 146, 147
    XL = [148, 152]
    A.e("s_load_dwordx4 s[4:7], s[0:1], 72")
    A.e("s_load_dwordx2 s[8:9], s[0:1], 112")
    stamp(A, 0); stamp_rt0(A)
    A.e("s_and_b32 s10, s2, 7")
    A.e("s_lshr_b32 s11, s2, 3")
    A.e("s_lshr_b32 s24, s10, 1")
    A.e("s_lshl_b32 s24, s24, 2")
    A.e("s_and_b32 s25, s11, 3")
    A.e("s_add_u32 s24, s24, s25")
    A.e("s_and_b32 s25, s10, 1")
    A.e("s_mul_i32 s25, s25, 6")
    A.e("s_lshr_b32 s26, s11, 2")
    A.e("s_add_u32 s25, s25, s26")
    A.e("s_lshr_b32 s26, s25, 2")
    A.e("s_and_b32 s27, s25, 3")
    A.e(f"v_and_b32 v{LANE}, 63, v0")
    A.e(f"v_lshrrev_b32 v{T0}, 6, v0")
    A.e("s_mul_i32 s29, s25, 288")
    A.e(f"v_readfirstlane_b32 s28, v{T0}")
    A.e(f"s_mul_i32 s30, s24, {128*1152}")
    A.e(f"v_lshrrev_b32 v{T0}, 3, v{LANE}")
    A.e(f"v_mul_u32_u24 v{VXO}, 1152, v{T0}")
    A.e(f"v_lshrrev_b32 v{T1}, 4, v{LANE}")
    A.e(f"v_and_b32 v{T2}, 7, v{LANE}")
    A.e(f"v_xor_b32 v{T1}, v{T1}, v{T2}")
    A.e(f"v_xor_b32 v{T2}, 4, v{T1}")
    VXO2 = T4 + 0
    A.e(f"v_lshl_add_u32 v{158}, v{T2}, 4, v{VXO}")
    A.e(f"v_lshl_add_u32 v{VXO}, v{T1}, 4, v{VXO}")
    VXE, VXD = VXO, 158
    for i in range(3):
        A.e(f"s_add_u32 s31, s28, {4*i}")
        A.e("s_lshl_b32 s31, s31, 6")
        A.e(f"v_add_u32 v{T0}, s31, v{LANE}")
        A.e(f"v_mul_u32_u24 v{T1}, 3277, v{T0}")
        A.e(f"v_lshrrev_b32 v{T1}, 16, v{T1}")
        A.e(f"v_mul_u32_u24 v{T2}, 20, v{T1}")
        A.e(f"v_sub_u32 v{T2}, v{T0}, v{T2}")
        A.e(f"v_mul_u32_u24 v{T1}, 3456, v{T1}")
        A.e(f"v_lshl_add_u32 v{VW[i]}, v{T2}, 4, v{T1}")
        A.e(f"v_cmp_gt_u32 vcc, 18, v{T2}")
        A.e("s_movk_i32 s38, 640")
        A.e(f"v_cmp_gt_u32 s[32:33], s38, v{T0}")
        A.e(f"v_mov_b32 v{T3}, 0x7ffffff0")
        A.e("s_nop 0")
        A.e("s_and_b64 vcc, vcc, s[32:33]")
        A.e("s_nop 0")
        A.e(f"v_cndmask_b32 v{VW[i]}, v{T3}, v{VW[i]}, vcc")
    A.e("s_waitcnt lgkmcnt(0)")
    make_srd(A, 12, 4, 5, "s30", 128*1152)
    A.e("s_add_u32 s16, s6, s29")
    A.e("s_addc_u32 s17, s7, 0")
    A.e(f"s_sub_u32 s18, {576*3456}, s29")
    A.e("s_mov_b32 s19, 0x00020000")
    A.e(f"s_mul_i32 s34, s28, {32*1152}")
    A.e("s_lshl_b32 s35, s28, 12")
    A.e("s_lshl_b32 s36, s28, 10")
    A.e("s_cmp_lt_u32 s28, 2")
    A.e(f"s_cselect_b32 s37, 1, 0")
    A.e(f"s_add_u32 s36, s36, {WBASE}")
    def xd(sb, soff, slot, j2, maybe_invalid=False):
        ld = f"buffer_load_dwordx4 v{VXD if j2 % 2 else VXE}, s[12:15], s44 offen lds"
        if maybe_invalid:
            return [f"s_add_u32 s44, {sb}, {soff + j2*8*1152}", f"s_add_u32 s45, s35, {slot*XSLOT + j2*1024}",
                    "s_cmp_eq_u32 s56, 0", "s_cselect_b32 m0, s45, s55", ld]
        return [f"s_add_u32 s44, {sb}, {soff + j2*8*1152}", f"s_add_u32 m0, s35, {slot*XSLOT + j2*1024}", ld]
    def wd(sb, soff, slot, i, maybe_invalid=False):
        src = f"v{VW[i]}"
        if i < 2: m0 = [f"s_add_u32 s45, s36, {slot*WSLOT + 4096*i}"]; m0r = "s45"
        else: m0 = []; m0r = f"s{60+slot}"
        if maybe_invalid:
            return [f"s_add_u32 s57, {sb}, {soff}"] + m0 + ["s_cmp_eq_u32 s56, 0", f"s_cselect_b32 m0, {m0r}, s55",
                    f"buffer_load_dwordx4 {src}, s[16:19], s57 offen lds"]
        if i < 2:
            return [f"s_add_u32 s57, {sb}, {soff}", f"s_add_u32 m0, s36, {slot*WSLOT + 4096*i}",
                    f"buffer_load_dwordx4 {src}, s[16:19], s57 offen lds"]
        return [f"s_add_u32 s57, {sb}, {soff}", f"s_mov_b32 m0, {m0r}",
                f"buffer_load_dwordx4 {src}, s[16:19], s57 offen lds"]
    for sl in range(3):
        A.e(f"s_add_u32 s{60+sl}, s36, {sl*WSLOT + 8192}")
        A.e("s_cmp_eq_u32 s37, 1")
        A.e(f"s_mov_b32 s56, {SCR}")
        A.e(f"s_cselect_b32 s{60+sl}, s{60+sl}, s56")
    def emit_dma(l, mid=None):
        if mid and OPT.get("nodma"):
            A.e(mid); return
        for x in l[:-1]: A.e(x)
        A.e(mid if mid else "s_nop 0")
        A.e(l[-1])
    A.e("s_mov_b32 s41, 0")
    for j2 in range(4): emit_dma(xd("s34", 0, 0, j2))
    for i in range(3): emit_dma(wd("s41", 0, 0, i))
    for i in range(3): emit_dma(wd("s41", 32*3456, 1, i))
    for j2 in range(4): emit_dma(xd("s34", 128, 1, j2))
    for i in range(3): emit_dma(wd("s41", 2*32*3456, 2, i))
    stamp(A, 1)
    A.e(f"v_and_b32 v{T0}, 31, v{LANE}")
    A.e(f"v_lshrrev_b32 v{T1}, 5, v{LANE}")
    A.e(f"v_lshrrev_b32 v{T2}, 1, v{T0}")
    A.e(f"v_and_b32 v{T2}, 7, v{T2}")
    A.e(f"v_xor_b32 v{T2}, v{T2}, v{T1}")
    A.e(f"v_lshlrev_b32 v{BX[0]}, 7, v{T0}")
    A.e(f"v_lshl_add_u32 v{BX[0]}, v{T2}, 4, v{BX[0]}")
    for kq in range(1, 4): A.e(f"v_xor_b32 v{BX[kq]}, {32*kq}, v{BX[0]}")
    BXL = [128, 129, 130, 131]
    A.e("s_lshl_b32 s39, s28, 12")
    for kq in range(4): A.e(f"v_add_u32 v{BXL[kq]}, s39, v{BX[kq]}")
    A.e(f"v_lshrrev_b32 v{T2}, 2, v{LANE}")
    A.e(f"v_and_b32 v{T2}, 3, v{T2}")
    A.e(f"v_lshl_add_u32 v{T2}, v{T1}, 3, v{T2}")
    A.e(f"v_mul_u32_u24 v{T2}, {WROW}, v{T2}")
    A.e(f"v_add_u32 v{T2}, {WBASE}, v{T2}")
    A.e(f"v_lshrrev_b32 v{T3}, 4, v{LANE}")
    A.e(f"v_and_b32 v{T3}, 1, v{T3}")
    A.e(f"v_and_b32 v{T4}, 3, v{LANE}")
    A.e(f"v_lshl_add_u32 v{T3}, v{T3}, 2, v{T4}")
    A.e("s_cmp_eq_u32 s26, 2")
    A.e(f"s_cbranch_scc1 {name}_vaddr")
    A.e(f"v_lshlrev_b32 v{T0}, 2, v{T3}")
    A.e(f"v_mov_b32 v{BWM}, 0x86753120")
    A.e(f"v_lshrrev_b32 v{BWM}, v{T0}, v{BWM}")
    A.e(f"v_and_b32 v{BWM}, 15, v{BWM}")
    A.e("s_mul_i32 s31, s28, 9")
    A.e(f"v_add_u32 v{BWM}, s31, v{BWM}")
    A.e(f"v_lshl_add_u32 v{BWM}, v{BWM}, 3, v{T2}")
    A.e(f"v_mul_u32_u24 v{BWL}, 9, v{T4}")
    A.e(f"v_add_u32 v{BWL}, 4, v{BWL}")
    A.e(f"v_lshl_add_u32 v{BWL}, v{BWL}, 3, v{T2}")
    A.e(f"s_branch {name}_addr_done")
    A.label(f"{name}_vaddr")
    A.e("s_lshl_b32 s31, s28, 3")
    A.e(f"v_add_u32 v{BWM}, s31, v{T3}")
    A.e(f"v_lshl_add_u32 v{BWM}, v{BWM}, 3, v{T2}")
    A.e(f"v_add_u32 v{BWL}, 32, v{T4}")
    A.e(f"v_lshl_add_u32 v{BWL}, v{BWL}, 3, v{T2}")
    A.label(f"{name}_addr_done")
    for r in range(80): A.e(f"v_mov_b32 v{r}, 0")

    def read_list(buf, st, ks):
        if OPT.get("noread"): return []
        xs = (st//2) % 3; ws = st % 3; kq = 2*(st % 2) + ks
        L = []
        for q in range(2):
            L.append(f"ds_read_b64_tr_b16 {vr(WM[buf]+2*q,2)}, v{BWM} offset:{ws*WSLOT + ks*16*WROW + q*4*WROW}")
        for T in range(4):
            L.append(f"ds_read_b128 {vr(XF[buf][T],4)}, v{BX[kq]} offset:{xs*XSLOT + 4096*T}")
        for q in range(2):
            L.append(f"ds_read_b64_tr_b16 {vr(WL[buf]+2*q,2)}, v{BWL} offset:{ws*WSLOT + ks*16*WROW + q*4*WROW}")
        L.append(f"ds_read_b128 {vr(XL[buf],4)}, v{BXL[kq]} offset:{xs*XSLOT}")
        return L
    def mfma_list(buf, vtype):
        L = []
        for T in range(4):
            if vtype: L.append(f"v_mfma_f32_32x32x16_bf16 {vr(ACC[T],16)}, {vr(XF[buf][T],4)}, {vr(WM[buf],4)}, {vr(ACC[T],16)}")
            else:     L.append(f"v_mfma_f32_32x32x16_bf16 {vr(ACC[T],16)}, {vr(WM[buf],4)}, {vr(XF[buf][T],4)}, {vr(ACC[T],16)}")
        if vtype: L.append(f"v_mfma_f32_32x32x16_bf16 {vr(ACL,16)}, {vr(XL[buf],4)}, {vr(WL[buf],4)}, {vr(ACL,16)}")
        else:     L.append(f"v_mfma_f32_32x32x16_bf16 {vr(ACL,16)}, {vr(WL[buf],4)}, {vr(XL[buf],4)}, {vr(ACL,16)}")
        if OPT.get("nomfma"): L = ["s_nop 0"]*5
        return L
    def interleave(m, r, d):
        r = list(r); dd = dict(d)
        need = [3, 4, 5, 6, 9]
        for i in range(5):
            A.e(f"s_waitcnt lgkmcnt({9 - need[i] + min(3*i, 9)})")
            if i in dd: emit_dma(dd[i], m[i])
            else: A.e(m[i])
            for _ in range(3):
                if r: A.e(r.pop(0))
        for x in r: A.e(x)
    A.e(f"s_add_u32 s40, s34, {2*128}")
    A.e(f"s_mov_b32 s41, {3*32*3456}")
    A.e("s_mov_b32 s58, s40"); A.e("s_mov_b32 s59, s41")
    A.e("s_mov_b32 s56, 0"); A.e(f"s_mov_b32 s55, {SCR}")
    A.e("s_mov_b32 s47, 0")
    A.e("s_waitcnt vmcnt(10)")
    A.e("s_barrier")
    stamp(A, 2)
    for x in read_list(0, 0, 0): A.e(x)
    A.e("s_cmp_eq_u32 s26, 2")
    A.e(f"s_cbranch_scc1 {name}_vloop")
    for vtype in (0, 1):
        L = f"{name}_{'v' if vtype else 'q'}loop"
        A.raw(".p2align 3")
        A.label(L)
        for st in range(6):
            c = st // 2; sub = st % 2
            xb = "s40" if c == 0 else "s58"
            wb = "s41" if st < 3 else "s59"
            interleave(mfma_list(0, vtype), read_list(1, st, 1),
                       [(1, xd(xb, c*128, (c+2) % 3, 2*sub, c >= 1)), (3, xd(xb, c*128, (c+2) % 3, 2*sub+1, c >= 1))])
            A.e("s_waitcnt vmcnt(7) lgkmcnt(0)")
            A.e("s_barrier")
            interleave(mfma_list(1, vtype), read_list(0, st+1, 0),
                       [(0, wd(wb, st*32*3456, st % 3, 0, st >= 3)), (2, wd(wb, st*32*3456, st % 3, 1, st >= 3)), (4, wd(wb, st*32*3456, st % 3, 2, st >= 3))])
        A.e(f"s_add_u32 s40, s40, {3*128}")
        A.e(f"s_add_u32 s41, s41, {6*32*3456}")
        A.e("s_add_u32 s47, s47, 1")
        A.e("s_cmp_eq_u32 s47, 2")
        A.e("s_cselect_b32 s56, 0x7ff00000, 0")
        A.e("s_add_u32 s58, s40, s56"); A.e("s_add_u32 s59, s41, s56")
        A.e("s_cmp_lt_u32 s47, 3")
        A.e(f"s_cbranch_scc1 {L}")
        A.e(f"s_branch {name}_epi_{'v' if vtype else 'q'}")
    A.label(f"{name}_epi_q")
    stamp(A, 3)
    A.e("s_waitcnt lgkmcnt(0)")
    A.e("s_cmp_eq_u32 s26, 0")
    def csel(d, a, b):
        A.e(f"s_mov_b32 s55, {a}"); A.e(f"s_mov_b32 s56, {b}"); A.e(f"s_cselect_b32 s{d}, s55, s56")
    csel(30, LY.Q_OFF, LY.KV_OFF); csel(31, LY.Q_BYTES, LY.KV_BYTES)
    csel(48, 64*1152, 64*LY.KVTILE); csel(49, 1152, LY.KVTILE); csel(50, f32bits(LY.QSCALE), f32bits(1.0))
    A.e("s_add_u32 s20, s8, s30")
    A.e("s_addc_u32 s21, s9, 0")
    A.e("s_mov_b32 s22, s31")
    A.e("s_mov_b32 s23, 0x00020000")
    A.e("s_lshl_b32 s51, s27, 3")
    A.e("s_lshl_b32 s52, s28, 1")
    A.e("s_add_u32 s52, s52, s51")
    A.e("s_mul_i32 s52, s52, s48")
    A.e("s_lshl_b32 s53, s24, 2")
    A.e("s_mul_i32 s53, s53, s49")
    A.e("s_add_u32 s52, s52, s53")
    A.e(f"v_lshlrev_b32 v{T0}, 4, v{LANE}")
    for T in range(4):
        a = ACC[T]
        for r in range(16): A.e(f"v_mul_f32 v{a+r}, s50, v{a+r}")
        for i in range(8): A.e(f"v_cvt_pk_bf16_f32 v{a+i}, v{a+2*i}, v{a+2*i+1}")
        A.e(f"buffer_store_dwordx4 {vr(a,4)}, v{T0}, s[20:23], s52 offen")
        A.e("s_add_u32 s54, s52, s48")
        A.e(f"buffer_store_dwordx4 {vr(a+4,4)}, v{T0}, s[20:23], s54 offen")
        A.e("s_add_u32 s52, s52, s49")
    for r in range(8): A.e(f"v_mul_f32 v{ACL+r}, s50, v{ACL+r}")
    for i in range(4): A.e(f"v_cvt_pk_bf16_f32 v{ACL+i}, v{ACL+2*i}, v{ACL+2*i+1}")
    A.e("s_mul_i32 s52, s51, s48")
    A.e("s_lshl_b32 s53, s24, 2")
    A.e("s_add_u32 s53, s53, s28")
    A.e("s_mul_i32 s53, s53, s49")
    A.e("s_add_u32 s52, s52, s53")
    A.e("s_add_u32 s52, s52, 1024")
    A.e(f"v_lshrrev_b32 v{T1}, 5, v{LANE}")
    A.e("s_lshl_b32 s53, s48, 1")
    A.e(f"v_mul_lo_u32 v{T1}, v{T1}, s53")
    A.e(f"v_and_b32 v{T2}, 31, v{LANE}")
    A.e(f"v_lshl_add_u32 v{T1}, v{T2}, 2, v{T1}")
    for i in range(4):
        A.e(f"s_mul_i32 s53, s48, {4*(i//2) + (i%2)}")
        A.e("s_add_u32 s53, s53, s52")
        A.e(f"buffer_store_dword v{ACL+i}, v{T1}, s[20:23], s53 offen")
    stamp(A, 4)
    stamp_dump(A, 8, 28, 4)
    A.e("s_endpgm")
    A.label(f"{name}_epi_v")
    stamp(A, 3)
    A.e("s_waitcnt lgkmcnt(0)")
    make_srd(A, 20, 8, 9, str(LY.KV_OFF), LY.KV_BYTES)
    HS = 64*LY.KVTILE
    def voff(dst):
        A.e(f"v_mul_u32_u24 v{T1}, 3641, v{T0}")
        A.e(f"v_lshrrev_b32 v{T1}, 16, v{T1}")
        A.e(f"v_mul_u32_u24 v{T2}, 18, v{T1}")
        A.e(f"v_sub_u32 v{T2}, v{T0}, v{T2}")
        A.e(f"v_lshrrev_b32 v{T3}, 5, v{LANE}")
        A.e(f"v_mul_u32_u24 v{T3}, 18, v{T3}")
        A.e(f"v_add_u32 v{T2}, v{T2}, v{T3}")
        A.e(f"v_add_u32 v{T1}, s51, v{T1}")
        A.e(f"s_mov_b32 s53, {HS}")
        A.e(f"v_mul_lo_u32 v{T1}, v{T1}, s53")
        A.e(f"v_lshl_add_u32 v{dst}, v{T2}, 4, v{T1}")
    A.e("s_lshl_b32 s51, s27, 3")
    A.e(f"v_and_b32 v{T0}, 31, v{LANE}")
    A.e("s_lshl_b32 s31, s28, 5")
    A.e(f"v_add_u32 v{T0}, s31, v{T0}")
    voff(AX[0])
    A.e("s_lshl_b32 s53, s24, 2")
    A.e(f"s_mul_i32 s52, s53, {LY.KVTILE}")
    A.e("s_add_u32 s52, s52, 1152")
    for T in range(4):
        a = ACC[T]
        for i in range(8): A.e(f"v_cvt_pk_bf16_f32 v{a+i}, v{a+2*i}, v{a+2*i+1}")
        A.e(f"buffer_store_dwordx4 {vr(a,4)}, v{AX[0]}, s[20:23], s52 offen")
        A.e(f"buffer_store_dwordx4 {vr(a+4,4)}, v{AX[0]}, s[20:23], s52 offen offset:592")
        A.e(f"s_add_u32 s52, s52, {LY.KVTILE}")
    A.e(f"v_and_b32 v{T0}, 31, v{LANE}")
    A.e(f"v_add_u32 v{T0}, 128, v{T0}")
    voff(AX[1])
    A.e(f"v_and_b32 v{T0}, 16, v{LANE}")
    A.e(f"v_cmp_eq_u32 vcc, 0, v{T0}")
    A.e(f"v_mov_b32 v{T3}, 0x7ffffff0")
    A.e("s_nop 0")
    A.e(f"v_cndmask_b32 v{AX[1]}, v{T3}, v{AX[1]}, vcc")
    for i in range(8): A.e(f"v_cvt_pk_bf16_f32 v{ACL+i}, v{ACL+2*i}, v{ACL+2*i+1}")
    A.e("s_lshl_b32 s53, s24, 2")
    A.e("s_add_u32 s53, s53, s28")
    A.e(f"s_mul_i32 s52, s53, {LY.KVTILE}")
    A.e("s_add_u32 s52, s52, 1152")
    A.e(f"buffer_store_dwordx4 {vr(ACL,4)}, v{AX[1]}, s[20:23], s52 offen")
    A.e(f"buffer_store_dwordx4 {vr(ACL+4,4)}, v{AX[1]}, s[20:23], s52 offen offset:592")
    A.e(f"v_lshrrev_b32 v{T0}, 1, v{LANE}")
    A.e(f"v_add_u32 v{T0}, s51, v{T0}")
    A.e(f"s_mov_b32 s53, {HS}")
    A.e(f"v_mul_lo_u32 v{T0}, v{T0}, s53")
    A.e(f"v_and_b32 v{T1}, 1, v{LANE}")
    A.e(f"v_mul_u32_u24 v{T1}, 592, v{T1}")
    A.e(f"v_add3_u32 v{T0}, v{T0}, v{T1}, 0")
    A.e(f"v_add_u32 v{T0}, 576, v{T0}")
    A.e(f"v_cmp_gt_u32 vcc, 16, v{LANE}")
    for r in range(4): A.e(f"v_mov_b32 v{r}, 0x3f803f80")
    A.e(f"v_cndmask_b32 v{T0}, v{T3}, v{T0}, vcc")
    A.e(f"buffer_store_dwordx4 v[0:3], v{T0}, s[20:23], s52 offen")
    stamp(A, 4)
    stamp_dump(A, 8, 28, 4)
    A.e("s_endpgm")
    return 160
```

```python
import sys; sys.path.insert(0, "work")
from asmlib import *
import layout as LY

def gen_outproj_role(A, name):
    ACC = [0, 16, 32]
    OF = 48
    OL = 112
    WF = [[120, 124, 128], [132, 136, 140]]
    AW, AWL = 144, 145
    LANE, T0, T1, T2, T3, T4 = 146, 147, 148, 149, 150, 151
    VW = [152, 153, 154]
    A.e("s_load_dwordx4 s[4:7], s[0:1], 88")
    A.e("s_load_dwordx2 s[8:9], s[0:1], 112")
    stamp(A, 0); stamp_rt0(A)
    A.e("s_and_b32 s10, s2, 7")
    A.e("s_lshr_b32 s11, s2, 3")
    A.e("s_lshl_b32 s24, s10, 2")
    A.e("s_and_b32 s25, s11, 3")
    A.e("s_add_u32 s24, s24, s25")
    A.e("s_lshr_b32 s25, s11, 2")
    A.e(f"v_and_b32 v{LANE}, 63, v0")
    A.e(f"v_lshrrev_b32 v{T0}, 6, v0")
    A.e("s_nop 0")
    A.e(f"v_readfirstlane_b32 s28, v{T0}")
    A.e("s_mul_i32 s29, s25, 192")
    for i in range(3):
        A.e(f"v_add_u32 v{T0}, {64*i}, v{LANE}")
        A.e(f"v_mul_u32_u24 v{T1}, 5462, v{T0}")
        A.e(f"v_lshrrev_b32 v{T1}, 16, v{T1}")
        A.e(f"v_mul_u32_u24 v{T2}, 12, v{T1}")
        A.e(f"v_sub_u32 v{T2}, v{T0}, v{T2}")
        A.e(f"v_mul_u32_u24 v{T1}, 1152, v{T1}")
        A.e(f"v_lshl_add_u32 v{VW[i]}, v{T2}, 4, v{T1}")
    A.e("s_and_b32 s30, s28, 1")
    A.e("s_lshr_b32 s31, s28, 1")
    A.e("s_lshl_b32 s32, s24, 1")
    A.e("s_add_u32 s32, s32, s30")
    A.e("s_waitcnt lgkmcnt(0)")
    A.e("s_add_u32 s12, s4, s29")
    A.e("s_addc_u32 s13, s5, 0")
    A.e(f"s_sub_u32 s14, {576*1152}, s29")
    A.e("s_mov_b32 s15, 0x00020000")
    make_srd(A, 16, 8, 9, str(LY.O_OFF), LY.O_BYTES)
    make_srd(A, 20, 6, 7, "0", 2048*2304)
    A.e(f"v_lshlrev_b32 v{T0}, 4, v{LANE}")
    A.e("s_lshl_b32 s33, s31, 4")
    A.e("s_lshl_b32 s34, s33, 6")
    A.e("s_add_u32 s34, s34, s32")
    A.e("s_lshl_b32 s34, s34, 10")
    def wdma(g):
        A.e(f"s_add_u32 s36, s28, {4*g}")
        A.e(f"s_mul_i32 s37, s36, {16*1152}")
        A.e("s_mul_i32 s38, s36, 3072")
        for i in range(3):
            if i: A.e("s_add_u32 s38, s38, 1024")
            A.e("s_mov_b32 m0, s38")
            A.e("s_nop 0")
            A.e(f"buffer_load_dwordx4 v{VW[i]}, s[12:15], s37 offen lds")
    for g in range(2): wdma(g)
    for h in range(16):
        A.e(f"buffer_load_dwordx4 {vr(OF+4*h,4)}, v{T0}, s[16:19], s34 offen")
        A.e(f"s_add_u32 s34, s34, {64*1024}")
    A.e(f"v_lshrrev_b32 v{T1}, 5, v{LANE}")
    A.e(f"v_lshlrev_b32 v{T1}, 15, v{T1}")
    A.e(f"v_and_b32 v{T2}, 31, v{LANE}")
    A.e(f"v_lshl_add_u32 v{T1}, v{T2}, 2, v{T1}")
    A.e("s_lshl_b32 s35, s33, 13")
    A.e("s_lshl_b32 s36, s32, 7")
    A.e("s_add_u32 s35, s35, s36")
    A.e(f"s_add_u32 s35, s35, {LY.O1_BYTES}")
    for m in range(2):
        for x in range(4):
            A.e(f"buffer_load_dword v{OL+4*m+x}, v{T1}, s[16:19], s35 offen")
            A.e(f"s_add_u32 s35, s35, 8192")
        A.e(f"s_add_u32 s35, s35, {4*8192}")
    for g in range(2, 9): wdma(g)
    A.e(f"v_lshrrev_b32 v{T1}, 5, v{LANE}")
    A.e(f"v_lshrrev_b32 v{T2}, 2, v{LANE}")
    A.e(f"v_and_b32 v{T2}, 3, v{T2}")
    A.e(f"v_lshrrev_b32 v{T3}, 4, v{LANE}")
    A.e(f"v_and_b32 v{T3}, 1, v{T3}")
    A.e(f"v_and_b32 v{T4}, 3, v{LANE}")
    A.e(f"v_lshl_add_u32 v{T3}, v{T3}, 2, v{T4}")
    A.e(f"v_lshlrev_b32 v{T3}, 2, v{T3}")
    A.e(f"v_mov_b32 v{T4}, 0x75643120")
    A.e(f"v_lshrrev_b32 v{T4}, v{T3}, v{T4}")
    A.e(f"v_and_b32 v{T4}, 15, v{T4}")
    A.e(f"v_lshlrev_b32 v{T4}, 3, v{T4}")
    A.e(f"v_lshl_add_u32 v{T0}, v{T1}, 2, v{T2}")
    A.e(f"v_mul_u32_u24 v{AW}, 192, v{T0}")
    A.e(f"v_add_u32 v{AW}, v{AW}, v{T4}")
    A.e(f"s_mul_i32 s36, s31, {16*18*192}")
    A.e(f"v_add_u32 v{AW}, s36, v{AW}")
    A.e(f"v_lshrrev_b32 v{T0}, 1, v{T2}")
    A.e(f"v_lshl_add_u32 v{T0}, v{T1}, 2, v{T0}")
    A.e(f"v_mul_u32_u24 v{T0}, 18, v{T0}")
    A.e(f"v_and_b32 v{T2}, 1, v{T2}")
    A.e(f"v_add3_u32 v{T0}, v{T0}, v{T2}, 16")
    A.e(f"v_mul_u32_u24 v{AWL}, 192, v{T0}")
    A.e(f"v_add_u32 v{AWL}, v{AWL}, v{T4}")
    A.e(f"v_add_u32 v{AWL}, s36, v{AWL}")
    for r in range(48): A.e(f"v_mov_b32 v{r}, 0")
    stamp(A, 1)
    A.e("s_waitcnt vmcnt(0)")
    A.e("s_barrier")
    stamp(A, 2)
    steps = [("m", h) for h in range(16)] + [("l", m) for m in range(2)]
    def rd(buf, st):
        kind, x = st
        for ft in range(3):
            for q in range(2):
                if kind == "m": A.e(f"ds_read_b64_tr_b16 {vr(WF[buf][ft]+2*q,2)}, v{AW} offset:{(18*x + 8*q)*192 + 64*ft}")
                else:           A.e(f"ds_read_b64_tr_b16 {vr(WF[buf][ft]+2*q,2)}, v{AWL} offset:{(18*(8*x + 2*q))*192 + 64*ft}")
    def rdl(buf, st):
        kind, x = st
        L = []
        for ft in range(3):
            for q in range(2):
                if kind == "m": L.append(f"ds_read_b64_tr_b16 {vr(WF[buf][ft]+2*q,2)}, v{AW} offset:{(18*x + 8*q)*192 + 64*ft}")
                else:           L.append(f"ds_read_b64_tr_b16 {vr(WF[buf][ft]+2*q,2)}, v{AWL} offset:{(18*(8*x + 2*q))*192 + 64*ft}")
        return L
    rd(0, steps[0])
    for i, st in enumerate(steps):
        buf = i % 2
        A.e("s_waitcnt lgkmcnt(0)")
        nxt = rdl(1-buf, steps[i+1]) if i + 1 < len(steps) else []
        o = OF + 4*st[1] if st[0] == "m" else OL + 4*st[1]
        for ft in range(3):
            A.e(f"v_mfma_f32_32x32x16_bf16 {vr(ACC[ft],16)}, {vr(WF[buf][ft],4)}, {vr(o,4)}, {vr(ACC[ft],16)}")
            for x in nxt[2*ft:2*ft+2]: A.e(x)
    stamp(A, 3)
    A.e("s_barrier")
    A.e(f"v_lshlrev_b32 v{T0}, 4, v{LANE}")
    A.e(f"s_mul_i32 s36, s30, {12*1024}")
    A.e(f"v_add_u32 v{T0}, s36, v{T0}")
    A.e("s_nop 7")
    A.e("s_cmp_eq_u32 s31, 0")
    A.e(f"s_cbranch_scc1 {name}_recv")
    for i in range(12): A.e(f"ds_write_b128 v{T0}, {vr(4*i,4)} offset:{1024*i}")
    A.e("s_waitcnt lgkmcnt(0)")
    A.e("s_barrier")
    RT["wave"]=28; rt_exit(A, 2, 4); A.e("s_endpgm")
    A.label(f"{name}_recv")
    A.e("s_barrier")
    for i in range(12): A.e(f"ds_read_b128 {vr(48+4*i,4)}, v{T0} offset:{1024*i}")
    A.e(f"v_and_b32 v{T1}, 31, v{LANE}")
    A.e("s_lshl_b32 s36, s32, 5")
    A.e(f"v_add_u32 v{T1}, s36, v{T1}")
    A.e("s_movk_i32 s37, 2304")
    A.e(f"v_mul_lo_u32 v{T1}, v{T1}, s37")
    A.e(f"v_lshrrev_b32 v{T2}, 5, v{LANE}")
    A.e(f"v_lshl_add_u32 v{T1}, v{T2}, 4, v{T1}")
    A.e("s_add_u32 s36, s29, 1152")
    A.e("s_waitcnt lgkmcnt(0)")
    for r in range(48): A.e(f"v_add_f32 v{r}, v{r}, v{48+r}")
    for ft in range(3):
        a = ACC[ft]
        for i in range(8): A.e(f"v_cvt_pk_bf16_f32 v{a+i}, v{a+2*i}, v{a+2*i+1}")
        A.e(f"buffer_store_dwordx4 {vr(a,4)}, v{T1}, s[20:23], s36 offen offset:{64*ft}")
        A.e(f"buffer_store_dwordx4 {vr(a+4,4)}, v{T1}, s[20:23], s36 offen offset:{64*ft+32}")
    stamp(A, 4)
    stamp_dump(A, 8, 28, 4)
    RT["wave"]=28; rt_exit(A, 2, 4); A.e("s_endpgm")
    return 156

def gen_final_role(A, name, first_wg):
    LANE, T0, T1, T2, T3, T4 = 0, 1, 2, 3, 4, 5
    VY, VU, VA = 6, 7, 8
    Y = 16
    A.e("s_load_dwordx2 s[4:5], s[0:1], 0")
    A.e("s_load_dwordx2 s[6:7], s[0:1], 64")
    A.e("s_load_dwordx2 s[8:9], s[0:1], 96")
    A.e("s_load_dwordx2 s[10:11], s[0:1], 112")
    stamp(A, 0); stamp_rt0(A)
    A.e(f"v_lshrrev_b32 v{T0}, 6, v0")
    A.e(f"v_and_b32 v{LANE}, 63, v0")
    A.e(f"v_readfirstlane_b32 s28, v{T0}")
    A.e(f"s_sub_u32 s29, s2, {first_wg}")
    A.e("s_lshl_b32 s29, s29, 2")
    A.e("s_add_u32 s29, s29, s28")
    A.e("s_lshl_b32 s29, s29, 1")
    A.e("s_lshl_b32 s30, s28, 14")
    A.e(f"v_lshrrev_b32 v{T0}, 3, v{LANE}")
    A.e(f"v_lshlrev_b32 v{VY}, 12, v{T0}")
    A.e(f"v_and_b32 v{T1}, 7, v{LANE}")
    A.e(f"v_lshl_add_u32 v{VY}, v{T1}, 4, v{VY}")
    A.e(f"v_and_b32 v{T0}, 15, v{LANE}")
    A.e(f"v_lshrrev_b32 v{T1}, 4, v{LANE}")
    A.e(f"v_mul_u32_u24 v{VU}, 1152, v{T0}")
    A.e(f"v_lshl_add_u32 v{VU}, v{T1}, 4, v{VU}")
    A.e(f"v_mul_u32_u24 v{VA}, 2304, v{T0}")
    A.e(f"v_lshl_add_u32 v{VA}, v{T1}, 4, v{VA}")
    A.e(f"v_lshrrev_b32 v{T2}, 2, v{LANE}")
    A.e(f"v_and_b32 v{T2}, 3, v{T2}")
    A.e(f"v_lshl_add_u32 v{T2}, v{T1}, 3, v{T2}")
    A.e(f"v_lshlrev_b32 v{T2}, 7, v{T2}")
    A.e(f"v_and_b32 v{T3}, 3, v{LANE}")
    A.e(f"v_lshl_add_u32 v{T2}, v{T3}, 3, v{T2}")
    A.e(f"v_add_u32 v{T2}, s30, v{T2}")
    A.e(f"v_lshlrev_b32 v{T4}, 4, v{T1}")
    A.e("s_waitcnt lgkmcnt(0)")
    make_srd(A, 12, 4, 5, "0", 2048*1152)
    make_srd(A, 16, 6, 7, "0", 1152)
    make_srd(A, 20, 8, 9, "0", 2048*2304)
    make_srd(A, 24, 10, 11, str(LY.YT_OFF), LY.YT_BYTES)
    U = 16
    DS = 80
    for k in range(2):
        A.e(f"s_add_u32 s31, s29, {k}")
        A.e("s_mul_i32 s33, s31, 7282")
        A.e("s_lshr_b32 s33, s33, 16")
        A.e("s_mul_i32 s34, s33, 9")
        A.e("s_sub_u32 s34, s31, s34")
        A.e(f"s_lshl_b32 s{40+4*k}, s33, 6")
        A.e(f"s_lshl_b32 s{41+4*k}, s34, 6")
        A.e(f"s_lshl_b32 s35, s{41+4*k}, 12")
        A.e(f"s_lshl_b32 s36, s{40+4*k}, 1")
        A.e("s_add_u32 s35, s35, s36")
        A.e(f"s_add_u32 s36, s30, {8192*k}")
        for n in range(8):
            if n:
                A.e(f"s_add_u32 s35, s35, {8*4096}"); A.e("s_add_u32 s36, s36, 1024")
            A.e("s_mov_b32 m0, s36"); A.e("s_nop 0")
            A.e(f"buffer_load_dwordx4 v{VY}, s[24:27], s35 offen lds")
        A.e(f"s_mul_i32 s35, s{40+4*k}, 1152")
        A.e(f"s_lshl_b32 s36, s{41+4*k}, 1")
        A.e("s_add_u32 s35, s35, s36")
        for it in range(4):
            for hf in range(2):
                A.e(f"buffer_load_dwordx4 {vr(U+32*k+8*it+4*hf,4)}, v{VU}, s[12:15], s35 offen offset:{64*hf}")
            A.e(f"s_add_u32 s35, s35, {16*1152}")
        for hf in range(2):
            A.e(f"buffer_load_dwordx4 {vr(DS+8*k+4*hf,4)}, v{T4}, s[16:19], s36 offen offset:{64*hf}")
    YR = 96; DF = 100; W0 = 116
    for k in range(2):
        A.e(f"s_waitcnt vmcnt({18 if k == 0 else 8})")
        A.e(f"s_mul_i32 s35, s{40+4*k}, 2304")
        A.e(f"s_lshl_b32 s36, s{41+4*k}, 1")
        A.e("s_add_u32 s35, s35, s36")
        for hf in range(2):
            d = DS + 8*k + 4*hf
            for i in range(4):
                A.e(f"v_lshlrev_b32 v{DF+2*i}, 16, v{d+i}")
                A.e(f"v_and_b32 v{DF+2*i+1}, 0xffff0000, v{d+i}")
            for it in range(4):
                A.e(f"ds_read_b64_tr_b16 {vr(YR,2)}, v{T2} offset:{8192*k + hf*32*128 + it*32}")
                A.e(f"ds_read_b64_tr_b16 {vr(YR+2,2)}, v{T2} offset:{8192*k + hf*32*128 + 4*128 + it*32}")
                u = U + 32*k + 8*it + 4*hf
                for i in range(4):
                    A.e(f"v_lshlrev_b32 v{W0}, 16, v{u+i}")
                    A.e(f"v_and_b32 v{W0+1}, 0xffff0000, v{u+i}")
                    A.e(f"v_mul_f32 v{W0}, v{W0}, v{DF+2*i}")
                    A.e(f"v_mul_f32 v{W0+1}, v{W0+1}, v{DF+2*i+1}")
                    A.e(f"v_cvt_pk_bf16_f32 v{u+i}, v{W0}, v{W0+1}")
                A.e("s_waitcnt lgkmcnt(0)")
                for i in range(4):
                    A.e(f"v_lshlrev_b32 v{W0}, 16, v{u+i}")
                    A.e(f"v_and_b32 v{W0+1}, 0xffff0000, v{u+i}")
                    A.e(f"v_lshlrev_b32 v{W0+2}, 16, v{YR+i}")
                    A.e(f"v_and_b32 v{W0+3}, 0xffff0000, v{YR+i}")
                    A.e(f"v_add_f32 v{W0}, v{W0}, v{W0+2}")
                    A.e(f"v_add_f32 v{W0+1}, v{W0+1}, v{W0+3}")
                    A.e(f"v_cvt_pk_bf16_f32 v{u+i}, v{W0}, v{W0+1}")
                A.e(f"s_add_u32 s37, s35, {it*16*2304 + hf*64}")
                A.e(f"buffer_store_dwordx4 {vr(u,4)}, v{VA}, s[20:23], s37 offen")
        stamp(A, 1+k)
    stamp_dump(A, 10, 28, 4)
    RT["wave"]=28; rt_exit(A, 2, 4); A.e("s_endpgm")
    return 124
```

```python
import sys; sys.path.insert(0, "work")
from asmlib import *
import layout as LY
import numpy as np, math, struct
def f32bits(x): return struct.unpack("<I", struct.pack("<f", x))[0]
def rnd_bf16_int(l):
    u = struct.unpack("<I", struct.pack("<f", float(l)))[0]
    u = (u + 0x7FFF + ((u >> 16) & 1)) & 0xFFFF0000
    return int(struct.unpack("<f", struct.pack("<I", u))[0])
def rowcol(lp):
    if lp < 256: return lp % 8, lp // 8
    if lp < 512: return 8 + (lp % 8)//2, (lp-256)//8
    if lp < 1024: return 12 + 2*((lp-512)//256) + (lp % 8)//4, ((lp-512) % 256)//8
    return 16 + (lp-1024)//256, ((lp-1024) % 256)//8
TZERO = 24*64
NIT = 5
def idx_table():
    t = []
    for cp in range(2):
        for x in range(NIT*512):
            idx = LY.KRC + cp - x
            if x < LY.KRLEN and 0 <= idx <= 2047:
                r, c = rowcol(rnd_bf16_int(idx)); t.append((r*32 + c)*2)
            else: t.append(TZERO)
    return t
def emit_idx_table(A, tabname):
    t = idx_table()
    A.raw(".p2align 4")
    A.raw(f".type {tabname},@object")
    A.label(tabname)
    for i in range(0, len(t), 16):
        A.raw("  .short " + ", ".join(str(x) for x in t[i:i+16]))
    A.raw(f".size {tabname}, {len(t)*2}")

NSTR = 240; TBL = 64*NSTR
TOFF = 0
STG = 4*TBL
TT = STG + 8192
SSM_LDS = TT + 4096
SOPT = {}

def gen_ssm_role(A, name, first_wg, tabname):
    def maybe_exit(i):
        if SOPT.get('exit') == i: A.e('s_endpgm')
    LANE, T0, T1, T2, T3 = 0, 1, 2, 3, 4
    RAW = 8; DT = 14; UR = 16; IDX = 24
    G1, G2, G4, G8, H, W, CA, CB, EA, EB, TMP, TMP2 = 56, 58, 60, 62, 64, 66, 68, 70, 72, 74, 76, 78
    S0, S1, S2, S3 = 80, 81, 82, 83
    AWR, AA, AB = 84, 85, 86
    PX = 88; PE = 96
    FA, FB, FA2, FB2 = 104, 108, 112, 116
    ACC = 120
    A.e("s_load_dwordx8 s[4:11], s[0:1], 8")
    A.e("s_load_dwordx4 s[12:15], s[0:1], 40")
    A.e("s_load_dwordx2 s[16:17], s[0:1], 56")
    A.e("s_load_dwordx2 s[18:19], s[0:1], 112")
    A.e("s_load_dwordx2 s[64:65], s[0:1], 0")
    stamp(A, 0); stamp_rt0(A)
    A.e(f"v_lshrrev_b32 v{T0}, 6, v0")
    A.e(f"v_and_b32 v{LANE}, 63, v0")
    A.e(f"v_readfirstlane_b32 s28, v{T0}")
    A.e(f"s_sub_u32 s68, s2, {first_wg}")
    A.e("s_lshl_b32 s29, s68, 1")
    A.e("s_lshr_b32 s26, s28, 1")
    A.e("s_and_b32 s27, s28, 1")
    A.e("s_add_u32 s25, s29, s26")
    A.e("s_getpc_b64 s[20:21]")
    A.label(f"{name}_pc")
    A.e(f"s_add_u32 s20, s20, {tabname}-{name}_pc")
    A.e("s_addc_u32 s21, s21, 0")
    A.e(f"v_lshlrev_b32 v{T0}, 1, v{LANE}")
    A.e("s_lshl_b32 s31, s25, 8")
    A.e("s_lshl_b32 s22, s27, 7")
    A.e("s_add_u32 s31, s31, s22")
    A.e("s_mul_i32 s69, s68, 7282")
    A.e("s_lshr_b32 s69, s69, 16")
    A.e("s_mul_i32 s70, s69, 9")
    A.e("s_sub_u32 s70, s68, s70")
    A.e("s_waitcnt lgkmcnt(0)")
    for i, p in enumerate((4, 6, 8, 10, 12, 14)):
        A.e(f"s_mov_b32 s{32+4*i}, s{p}")
        A.e(f"s_mov_b32 s{33+4*i}, s{p+1}")
        A.e(f"s_mov_b32 s{34+4*i}, {576*256}")
        A.e(f"s_mov_b32 s{35+4*i}, 0x00020000")
        A.e(f"buffer_load_ushort v{RAW+i}, v{T0}, s[{32+4*i}:{35+4*i}], s31 offen")
    make_srd(A, 56, 16, 17, "0", 1152)
    A.e("s_lshl_b32 s22, s25, 1")
    A.e(f"v_mov_b32 v{T2}, s22")
    A.e(f"buffer_load_ushort v{DT}, v{T2}, s[56:59], 0 offen")
    make_srd(A, 60, 64, 65, "0", 2048*1152)
    A.e(f"v_lshrrev_b32 v{T1}, 3, v{LANE}")
    A.e(f"v_mul_u32_u24 v{T1}, 1152, v{T1}")
    A.e(f"v_and_b32 v{T2}, 7, v{LANE}")
    A.e(f"v_lshl_add_u32 v{T1}, v{T2}, 4, v{T1}")
    A.e("s_lshl_b32 s22, s69, 6")
    A.e("s_lshl_b32 s23, s28, 4")
    A.e("s_add_u32 s22, s22, s23")
    A.e("s_mul_i32 s22, s22, 1152")
    A.e("s_lshl_b32 s23, s70, 7")
    A.e("s_add_u32 s22, s22, s23")
    A.e("s_lshl_b32 s23, s28, 11")
    A.e(f"s_add_u32 s23, s23, {STG}")
    A.e("s_mov_b32 m0, s23")
    A.e("s_nop 0")
    A.e(f"buffer_load_dwordx4 v{T1}, s[60:63], s22 offen lds")
    A.e(f"s_add_u32 s22, s22, {8*1152}")
    A.e("s_add_u32 m0, s23, 1024")
    A.e("s_nop 0")
    A.e(f"buffer_load_dwordx4 v{T1}, s[60:63], s22 offen lds")
    A.e(f"s_mul_i32 s30, s28, {TBL}")
    A.e(f"v_mul_u32_u24 v{AWR}, {NSTR}, v{LANE}")
    A.e(f"v_add_u32 v{AWR}, s30, v{AWR}")
    A.e(f"v_lshrrev_b32 v{T1}, 5, v{LANE}")
    A.e(f"v_lshrrev_b32 v{T2}, 2, v{LANE}")
    A.e(f"v_and_b32 v{T2}, 3, v{T2}")
    A.e(f"v_lshrrev_b32 v{T3}, 1, v{T2}")
    A.e(f"v_lshl_add_u32 v{T3}, v{T1}, 2, v{T3}")
    A.e(f"v_mul_u32_u24 v{AA}, {NSTR}, v{T3}")
    A.e(f"v_add_u32 v{AA}, s30, v{AA}")
    A.e(f"v_lshrrev_b32 v{T3}, 4, v{LANE}")
    A.e(f"v_and_b32 v{T3}, 1, v{T3}")
    A.e(f"v_lshlrev_b32 v{T3}, 5, v{T3}")
    A.e(f"v_and_b32 v{T1}, 3, v{LANE}")
    A.e(f"v_lshl_add_u32 v{T3}, v{T1}, 3, v{T3}")
    A.e(f"v_add_u32 v{AA}, v{AA}, v{T3}")
    A.e(f"v_and_b32 v{T2}, 1, v{T2}")
    A.e(f"v_mul_u32_u24 v{T1}, 64, v{T2}")
    A.e(f"v_add3_u32 v{AB}, v{AA}, v{T1}, 0")
    A.e(f"v_add_u32 v{AB}, 96, v{AB}")
    A.e(f"v_mul_u32_u24 v{T1}, 48, v{T2}")
    A.e(f"v_add_u32 v{AA}, v{AA}, v{T1}")
    for r in range(16): A.e(f"v_mov_b32 v{ACC+r}, 0")
    stamp(A, 1)
    maybe_exit(1)
    A.e("s_waitcnt vmcnt(2)")
    stamp(A, 2)
    L_hi = float(np.float32(math.log2(math.e))); L_lo = math.log2(math.e) - L_hi
    A.e(f"v_lshlrev_b32 v{DT}, 16, v{DT}")
    A.e(f"s_mov_b32 s22, 0x{f32bits(L_hi):x}")
    A.e(f"s_mov_b32 s23, 0x{f32bits(L_lo):x}")
    A.e(f"v_mul_f32 v{S0}, s22, v{DT}")
    A.e(f"v_fma_f32 v{S1}, v{DT}, s22, -v{S0}")
    A.e(f"v_fma_f32 v{S1}, v{DT}, s23, v{S1}")
    A.e(f"v_exp_f32 v{S0}, v{S0}")
    A.e(f"v_mul_f32 v{S1}, 0x{f32bits(math.log(2.0)):x}, v{S1}")
    A.e(f"v_fma_f32 v{S0}, v{S0}, v{S1}, v{S0}")
    A.e(f"v_cvt_pk_bf16_f32 v{S0}, v{S0}, v{S0}")
    A.e(f"v_and_b32 v{DT}, 0xffff0000, v{S0}")
    for i in range(6): A.e(f"v_lshlrev_b32 v{RAW+i}, 16, v{RAW+i}")
    def cmul(D, X, G, TM=TMP):
        A.e(f"v_pk_mul_f32 {vr(TM,2)}, {vr(X,2)}, {vr(G,2)} op_sel_hi:[1,0]")
        A.e(f"v_pk_fma_f32 {vr(D,2)}, {vr(X,2)}, {vr(G,2)}, {vr(TM,2)} op_sel:[1,1,0] op_sel_hi:[0,1,1] neg_lo:[0,1,0]")
    A.e(f"v_mul_f32 v{S0}, v{DT}, v{RAW+0}")
    A.e(f"v_mul_f32 v{S1}, v{DT}, v{RAW+1}")
    A.e(f"v_mul_f32 v{S2}, 0x{f32bits(math.log2(math.e)):x}, v{S0}")
    A.e(f"v_mul_f32 v{S3}, 0x{f32bits(1.0/(2*math.pi)):x}, v{S1}")
    for (G, m) in ((G1, 1.0), (G8, 8.0), (H, 256.0)):
        A.e(f"v_mul_f32 v{S0}, 0x{f32bits(m):x}, v{S2}")
        A.e(f"v_mul_f32 v{S1}, 0x{f32bits(m):x}, v{S3}")
        A.e(f"v_exp_f32 v{S0}, v{S0}")
        A.e(f"v_fract_f32 v{S1}, v{S1}")
        A.e("s_nop 0")
        A.e(f"v_cos_f32 v{G}, v{S1}")
        A.e(f"v_sin_f32 v{G+1}, v{S1}")
        A.e("s_nop 0")
        A.e(f"v_mul_f32 v{G}, v{G}, v{S0}")
        A.e(f"v_mul_f32 v{G+1}, v{G+1}, v{S0}")
    A.e(f"v_mul_f32 v{CA}, v{DT}, v{RAW+2}")
    A.e(f"v_mul_f32 v{CA+1}, v{DT}, v{RAW+3}")
    cmul(W, CA, RAW+4)
    cmul(G2, G1, G1, TMP2)
    cmul(G4, G2, G2)
    A.e(f"v_lshlrev_b32 v{T1}, 4, v{LANE}")
    A.e(f"s_mul_i32 s22, s27, {NIT*1024}")
    A.e(f"v_add_u32 v{T1}, s22, v{T1}")
    for k in range(NIT):
        if k == 4: A.e(f"v_add_u32 v{T1}, 4096, v{T1}")
        A.e(f"global_load_dwordx4 {vr(IDX+4*k,4)}, v{T1}, s[20:21] offset:{1024*(k%4)}")
    def packX(p, a, b):
        A.e(f"v_cvt_pk_bf16_f32 v{PX+p}, v{a}, v{b}")
        A.e(f"v_cvt_pk_bf16_f32 v{PX+4+p}, -v{a+1}, -v{b+1}")
    def packE(p, a, b):
        A.e(f"v_cvt_pk_bf16_f32 v{PE+p}, v{a}, v{b}")
        A.e(f"v_cvt_pk_bf16_f32 v{PE+4+p}, v{a+1}, v{b+1}")
    def flushX(g):
        A.e(f"ds_write_b128 v{AWR}, {vr(PX,4)} offset:{16*g}")
        A.e(f"ds_write_b128 v{AWR}, {vr(PX+4,4)} offset:{48+16*g}")
    def flushE(g):
        A.e(f"ds_write_b128 v{AWR}, {vr(PE,4)} offset:{96+16*g}")
        A.e(f"ds_write_b128 v{AWR}, {vr(PE+4,4)} offset:{160+16*g}")
    xs = []
    xs.append(lambda: (cmul(CB, W, G1), packX(0, W, CB)))
    xs.append(lambda: (cmul(CA, CB, G1), cmul(CB, CA, G1), packX(1, CA, CB)))
    xs.append(lambda: (cmul(CA, CB, G1), cmul(CB, CA, G1), packX(2, CA, CB)))
    xs.append(lambda: (cmul(CA, CB, G1), cmul(CB, CA, G1), packX(3, CA, CB), flushX(0)))
    xs.append(lambda: (cmul(W, W, H), cmul(CB, W, G2), packX(0, W, CB)))
    xs.append(lambda: (cmul(CA, CB, G2), cmul(CB, CA, G2), packX(1, CA, CB)))
    xs.append(lambda: (cmul(W, W, H), cmul(CB, W, G4), packX(2, W, CB)))
    xs.append(lambda: (cmul(W, W, H), cmul(CB, W, G4), packX(3, W, CB), flushX(1)))
    xs.append(lambda: (cmul(CA, W, H), cmul(CB, CA, H), packX(0, CA, CB)))
    xs.append(lambda: (cmul(CA, CB, H), cmul(CB, CA, H), packX(1, CA, CB)))
    xs.append(lambda: (cmul(CA, CB, H), packX(2, CA, CA), packX(3, CA, CA), flushX(2)))
    es = []
    def e01():
        A.e(f"v_mov_b32 v{EA}, 1.0"); A.e(f"v_mov_b32 v{EA+1}, 0")
        packE(0, EA, G8)
        cmul(EA, G8, G8, TMP2); cmul(EB, EA, G8, TMP2); packE(1, EA, EB)
    es.append(e01)
    for p in range(2, 16):
        def f(p=p):
            cmul(EA, EB, G8, TMP2); cmul(EB, EA, G8, TMP2); packE(p % 4, EA, EB)
            if p % 4 == 3: flushE(p//4)
        es.append(f)
    for i in range(15):
        es[i]()
        if i < len(xs): xs[i]()
    A.e("s_waitcnt lgkmcnt(0)")
    stamp(A, 3)
    maybe_exit(3)
    def frd(fa, fb, s):
        for q in range(2):
            A.e(f"ds_read_b64_tr_b16 {vr(fa+2*q,2)}, v{AA} offset:{(8*s+2*q)*NSTR}")
            A.e(f"ds_read_b64_tr_b16 {vr(fb+2*q,2)}, v{AB} offset:{(8*s+2*q)*NSTR}")
    frd(FA, FB, 0)
    for s in range(8):
        fa, fb = (FA, FB) if s % 2 == 0 else (FA2, FB2)
        na, nb = (FA2, FB2) if s % 2 == 0 else (FA, FB)
        if s < 7:
            frd(na, nb, s+1); A.e("s_waitcnt lgkmcnt(4)")
        else: A.e("s_waitcnt lgkmcnt(0)")
        A.e(f"v_mfma_f32_32x32x16_bf16 {vr(ACC,16)}, {vr(fa,4)}, {vr(fb,4)}, {vr(ACC,16)}")
    A.e(f"v_lshlrev_b32 v{T1}, 4, v{LANE}")
    A.e(f"s_mul_i32 s22, s26, {2*TBL}")
    A.e(f"s_add_u32 s22, s22, {TBL}")
    A.e(f"v_add_u32 v{T1}, s22, v{T1}")
    A.e("s_waitcnt vmcnt(5)")
    A.e("s_nop 7")
    A.e("s_cmp_eq_u32 s27, 0")
    A.e(f"s_cbranch_scc1 {name}_c0")
    for g in range(3): A.e(f"ds_write_b128 v{T1}, {vr(ACC+4*g,4)} offset:{1024*g}")
    A.e("s_waitcnt lgkmcnt(0)")
    A.e("s_barrier")
    A.e(f"s_branch {name}_c1")
    A.label(f"{name}_c0")
    A.e("s_barrier")
    for g in range(3): A.e(f"ds_read_b128 {vr(FA+4*g,4)}, v{T1} offset:{1024*g}")
    A.e(f"v_and_b32 v{T2}, 31, v{LANE}")
    A.e(f"v_lshrrev_b32 v{T3}, 5, v{LANE}")
    A.e(f"v_lshlrev_b32 v{T2}, 1, v{T2}")
    A.e(f"v_lshl_add_u32 v{T2}, v{T3}, 8, v{T2}")
    A.e("s_lshl_b32 s22, s26, 11")
    A.e(f"s_add_u32 s22, s22, {TT}")
    A.e(f"v_add_u32 v{T2}, s22, v{T2}")
    A.e(f"v_mov_b32 v{T3}, s22")
    A.e(f"v_mov_b32 v{S0}, 0")
    A.e(f"ds_write_b32 v{T3}, v{S0} offset:{TZERO}")
    A.e("s_waitcnt lgkmcnt(1)")
    for g in range(3):
        for r in range(4): A.e(f"v_add_f32 v{ACC+4*g+r}, v{ACC+4*g+r}, v{FA+4*g+r}")
        A.e(f"v_cvt_pk_bf16_f32 v{S0}, v{ACC+4*g}, v{ACC+4*g+1}")
        A.e(f"v_cvt_pk_bf16_f32 v{S1}, v{ACC+4*g+2}, v{ACC+4*g+3}")
        A.e(f"ds_write_b16 v{T2}, v{S0} offset:{(8*g+0)*64}")
        A.e(f"ds_write_b16_d16_hi v{T2}, v{S0} offset:{(8*g+1)*64}")
        A.e(f"ds_write_b16 v{T2}, v{S1} offset:{(8*g+2)*64}")
        A.e(f"ds_write_b16_d16_hi v{T2}, v{S1} offset:{(8*g+3)*64}")
    A.label(f"{name}_c1")
    A.e(f"v_lshrrev_b32 v{T1}, 4, v{LANE}")
    A.e(f"v_lshrrev_b32 v{T2}, 2, v{LANE}")
    A.e(f"v_and_b32 v{T2}, 3, v{T2}")
    A.e(f"v_lshl_add_u32 v{T2}, v{T1}, 3, v{T2}")
    A.e(f"v_lshlrev_b32 v{T2}, 7, v{T2}")
    A.e(f"v_and_b32 v{T3}, 3, v{LANE}")
    A.e(f"v_lshl_add_u32 v{T2}, v{T3}, 3, v{T2}")
    A.e("s_lshl_b32 s22, s28, 5")
    A.e(f"s_add_u32 s22, s22, {STG}")
    A.e(f"v_add_u32 v{T2}, s22, v{T2}")
    for hf in range(2):
        A.e(f"ds_read_b64_tr_b16 {vr(UR+4*hf,2)}, v{T2} offset:{hf*32*128}")
        A.e(f"ds_read_b64_tr_b16 {vr(UR+4*hf+2,2)}, v{T2} offset:{hf*32*128+4*128}")
    A.e(f"v_and_b32 v{T3}, 15, v{LANE}")
    A.e(f"v_mul_u32_u24 v{T3}, {LY.UT_ROW}, v{T3}")
    A.e(f"v_lshrrev_b32 v{T2}, 1, v{T1}")
    A.e(f"v_mul_u32_u24 v{T2}, 3072, v{T2}")
    A.e(f"v_add_u32 v{T3}, v{T3}, v{T2}")
    A.e(f"v_and_b32 v{T2}, 1, v{T1}")
    A.e(f"v_lshl_add_u32 v{T3}, v{T2}, 4, v{T3}")
    make_srd(A, 72, 18, 19, str(LY.UT_OFF), LY.UT_BYTES)
    A.e("s_lshl_b32 s22, s70, 6")
    A.e("s_lshl_b32 s23, s28, 4")
    A.e("s_add_u32 s22, s22, s23")
    A.e(f"s_mul_i32 s22, s22, {LY.UT_ROW}")
    A.e("s_lshl_b32 s23, s69, 6")
    A.e("s_add_u32 s23, s23, s22")
    A.e("s_add_u32 s23, s23, 1024")
    A.e("s_waitcnt lgkmcnt(0)")
    A.e(f"buffer_store_dwordx4 {vr(UR,4)}, v{T3}, s[72:75], s23 offen")
    A.e(f"buffer_store_dwordx4 {vr(UR+4,4)}, v{T3}, s[72:75], s23 offen offset:32")
    A.e("s_cmp_ge_u32 s69, 16")
    A.e(f"s_cbranch_scc1 {name}_nz")
    A.e(f"v_lshrrev_b32 v{T1}, 3, v{LANE}")
    A.e(f"v_mul_u32_u24 v{T1}, {LY.UT_ROW}, v{T1}")
    A.e(f"v_and_b32 v{T2}, 7, v{LANE}")
    A.e(f"v_lshl_add_u32 v{T1}, v{T2}, 4, v{T1}")
    A.e("s_and_b32 s23, s69, 7")
    A.e("s_lshl_b32 s23, s23, 7")
    A.e("s_add_u32 s22, s22, s23")
    A.e("s_lshr_b32 s23, s69, 3")
    A.e("s_mul_i32 s23, s23, 3072")
    A.e("s_add_u32 s22, s22, s23")
    for r in range(4): A.e(f"v_mov_b32 v{S0+r}, 0")
    A.e(f"buffer_store_dwordx4 {vr(S0,4)}, v{T1}, s[72:75], s22 offen")
    A.e(f"s_add_u32 s22, s22, {8*LY.UT_ROW}")
    A.e(f"buffer_store_dwordx4 {vr(S0,4)}, v{T1}, s[72:75], s22 offen")
    A.label(f"{name}_nz")
    A.e("s_waitcnt lgkmcnt(0)")
    A.e("s_barrier")
    stamp(A, 4)
    maybe_exit(4)
    A.e("s_lshl_b32 s22, s26, 11")
    A.e(f"s_add_u32 s22, s22, {TT}")
    A.e(f"v_mov_b32 v{T3}, s22")
    A.e(f"s_mul_i32 s31, s25, {LY.KR_ROW}")
    A.e(f"s_mul_i32 s22, s27, {LY.KRLEN*2}")
    A.e("s_add_u32 s31, s31, s22")
    A.e(f"s_add_u32 s31, s31, {LY.KR_OFF}")
    make_srd(A, 56, 18, 19, "s31", LY.KRLEN*2)
    A.e(f"v_lshlrev_b32 v{T1}, 4, v{LANE}")
    ADS = [56, 64]; OUTS = [72, 76]
    def gath(k):
        ad = ADS[k % 2]
        for e in range(8):
            A.e(f"v_add_u32_sdwa v{ad+e}, v{T3}, v{IDX+4*k+e//2} dst_sel:DWORD dst_unused:UNUSED_PAD src0_sel:DWORD src1_sel:WORD_{e%2}")
        for e in range(8): A.e(f"ds_read_u16 v{ad+e}, v{ad+e}")
    A.e("s_waitcnt vmcnt(2)")
    gath(0)
    for k in range(NIT):
        ad = ADS[k % 2]; o = OUTS[k % 2]
        if k < NIT-1:
            gath(k+1); A.e("s_waitcnt lgkmcnt(8)")
        else: A.e("s_waitcnt lgkmcnt(0)")
        for i in range(4): A.e(f"v_lshl_or_b32 v{o+i}, v{ad+2*i+1}, 16, v{ad+2*i}")
        if k < 4: A.e(f"buffer_store_dwordx4 {vr(o,4)}, v{T1}, s[56:59], 0 offen offset:{1024*k}")
        else:
            A.e("s_movk_i32 s22, 4096")
            A.e(f"buffer_store_dwordx4 {vr(o,4)}, v{T1}, s[56:59], s22 offen")
    stamp(A, 5)
    stamp_dump(A, 18, 28, 4)
    RT["wave"]=28; rt_exit(A, 0, 4); A.e("s_endpgm")
    return 136
```

```python
STMOD = {}
class Asm:
    def __init__(self):
        self.lines = []
    def e(self, s):
        for l in s.strip("\n").split("\n"):
            l = l.strip()
            if l.startswith("buffer_store") and STMOD.get("cur") and " sc1" not in l and " nt" not in l: l += " " + STMOD["cur"]
            self.lines.append("  " + l)
    def label(self, n): self.lines.append(n + ":")
    def c(self, s): self.lines.append("  ; " + s)
    def raw(self, s): self.lines.append(s)
    def text(self): return "\n".join(self.lines) + "\n"

def vr(a, n=1):
    return f"v{a}" if n == 1 else f"v[{a}:{a+n-1}]"
def sr(a, n=1):
    return f"s{a}" if n == 1 else f"s[{a}:{a+n-1}]"

def kernel_begin(A, name):
    A.raw(".text"); A.raw(f".globl {name}"); A.raw(".p2align 8"); A.raw(f".type {name},@function"); A.label(name)

def kernel_end(A, name, vgpr, sgpr=102, accum=None):
    if accum is None: accum = (vgpr + 3)//4*4
    A.raw(f""".section .rodata,"a"
.p2align 6
.amdhsa_kernel {name}
  .amdhsa_next_free_vgpr {vgpr}
  .amdhsa_next_free_sgpr {sgpr}
  .amdhsa_accum_offset {accum}
  .amdhsa_group_segment_fixed_size 0
  .amdhsa_kernarg_size 120
  .amdhsa_user_sgpr_count 2
  .amdhsa_user_sgpr_kernarg_segment_ptr 1
  .amdhsa_system_sgpr_workgroup_id_x 1
.end_amdhsa_kernel""")

def make_srd(A, d, base_lo, base_hi, off, size):
    A.e(f"s_add_u32 s{d}, s{base_lo}, {off}")
    A.e(f"s_addc_u32 s{d+1}, s{base_hi}, 0")
    A.e(f"s_mov_b32 s{d+2}, {size}")
    A.e(f"s_mov_b32 s{d+3}, 0x00020000")

STAMPS = {"on": False}
def stamp(A, i):
    if STAMPS["on"]: A.e(f"s_memtime s[{80+2*i}:{81+2*i}]")
def stamp_rt0(A):
    if STAMPS["on"]: A.e("s_memrealtime s[96:97]")
def stamp_dump(A, wssgpr, wave_sgpr, waves_per_wg, vbase=0):
    if not STAMPS["on"]: return
    A.e("s_mov_b64 exec, -1")
    A.e("s_waitcnt lgkmcnt(0) vmcnt(0)")
    A.e("s_memtime s[92:93]")
    A.e("s_memrealtime s[98:99]")
    A.e("s_waitcnt lgkmcnt(0)")
    A.e("s_sub_u32 s94, s98, s96")
    A.e("s_mov_b32 s95, 0")
    A.e("s_add_u32 s94, s94, s80")
    A.e("s_addc_u32 s95, s81, 0")
    A.e(f"s_add_u32 s76, s{wssgpr}, {64<<20}")
    A.e(f"s_addc_u32 s77, s{wssgpr+1}, 0")
    A.e(f"s_mov_b32 s78, {1<<20}")
    A.e("s_mov_b32 s79, 0x00020000")
    A.e(f"s_mul_i32 s98, s2, {waves_per_wg}")
    A.e(f"s_add_u32 s98, s98, s{wave_sgpr}")
    A.e("s_lshl_b32 s98, s98, 6")
    for i in range(16): A.e(f"v_mov_b32 v{vbase+i}, s{80+i}")
    A.e(f"v_mov_b32 v{vbase+16}, s98")
    A.e("s_mov_b64 exec, 1")
    for i in range(4):
        A.e(f"buffer_store_dwordx4 v[{vbase+4*i}:{vbase+4*i+3}], v{vbase+16}, s[76:79], 0 offen offset:{16*i}")

RT = {"on": False}
def rt_entry(A):
    if RT["on"]: A.e("s_memrealtime s[100:101]")
def rt_exit(A, kid, wpw):
    if not RT["on"]: return
    A.e("s_mov_b64 exec, -1")
    A.e("s_waitcnt vmcnt(0) lgkmcnt(0)")
    A.e("s_memrealtime s[98:99]")
    A.e("s_load_dwordx2 s[92:93], s[0:1], 112")
    A.e("s_waitcnt lgkmcnt(0)")
    A.e(f"s_add_u32 s92, s92, {(64+kid)<<20}")
    A.e("s_addc_u32 s93, s93, 0")
    A.e(f"s_mov_b32 s94, {1<<20}")
    A.e("s_mov_b32 s95, 0x00020000")
    A.e(f"s_mul_i32 s91, s2, {wpw}")
    A.e(f"s_add_u32 s91, s91, s{RT['wave']}")
    A.e("s_lshl_b32 s91, s91, 4")
    A.e("v_mov_b32 v0, s100"); A.e("v_mov_b32 v1, s101"); A.e("v_mov_b32 v2, s98"); A.e("v_mov_b32 v3, s99")
    A.e("v_mov_b32 v4, s91")
    A.e("s_mov_b64 exec, 1")
    A.e("buffer_store_dwordx4 v[0:3], v4, s[92:95], 0 offen")
```

```python
import sys; sys.path.insert(0, "work")
from asmlib import *
import layout as LY

def gen_attn(A, name, stamps=False, opt=None, helper_tail=None):
    opt = opt or {}
    def stamp(i):
        if stamps: A.e(f"s_memtime s[{60+2*i}:{61+2*i}]")
    SA, SB, OA, OB = 0, 16, 32, 48
    P0, P1 = 64, 68
    Q1A, Q2A, Q1B, Q2B = 72, 76, 80, 84
    K1 = [88, 96]; K2 = [92, 100]
    V0 = [104, 112]; V1 = [108, 116]
    AK1, AK2, AV = 120, 121, 122
    T0, T1, T2, T3, LANE = 123, 124, 125, 126, 127
    NV = 128
    TILE = LY.KVTILE; VOFF = 1152; VSZ = LY.VSZ
    def mf(D, Aop, Bop, C):
        c = "0" if C is None else vr(C, 16)
        return f"v_mfma_f32_32x32x16_bf16 {vr(D,16)}, {vr(Aop,4)}, {vr(Bop,4)}, {c}"
    kernel_begin(A, name)
    A.e("s_cmp_ge_u32 s2, 256")
    A.e(f"s_cbranch_scc1 {name}_end")
    A.e("s_load_dwordx2 s[4:5], s[0:1], 112")
    rt_entry(A)
    stamp(0)
    if stamps: A.e("s_memrealtime s[76:77]")
    A.e("s_and_b32 s6, s2, 7")
    A.e("s_lshl_b32 s6, s6, 2")
    A.e("s_lshr_b32 s7, s2, 3")
    A.e("s_and_b32 s8, s7, 3")
    A.e("s_add_u32 s6, s6, s8")
    A.e("s_lshr_b32 s7, s2, 5")
    A.e(f"v_and_b32 v{LANE}, 63, v0")
    A.e(f"v_lshrrev_b32 v{T0}, 6, v0")
    A.e(f"v_and_b32 v{T1}, 31, v{LANE}")
    A.e(f"v_readfirstlane_b32 s9, v{T0}")
    A.e(f"v_lshlrev_b32 v{T0}, 4, v{LANE}")
    A.e(f"v_lshlrev_b32 v{T2}, 2, v{T1}")
    A.e("s_cmp_ge_u32 s9, 4")
    A.e(f"s_cbranch_scc1 {name}_helper")
    A.e(f"s_mul_i32 s13, s6, {64*1152}")
    A.e("s_lshl_b32 s14, s7, 3")
    A.e("s_lshl_b32 s15, s9, 1")
    A.e("s_add_u32 s14, s14, s15")
    A.e("s_mul_i32 s15, s14, 1152")
    A.e("s_add_u32 s13, s13, s15")
    A.e(f"s_add_u32 s13, s13, {LY.Q_OFF}")
    A.e("s_mov_b32 s36, 9")
    A.e("s_waitcnt lgkmcnt(0)")
    make_srd(A, 20, 4, 5, "s13", 2*1152)
    A.e(f"buffer_load_dwordx4 {vr(Q1A,4)}, v{T0}, s[20:23], 0 offen")
    A.e(f"buffer_load_dwordx4 {vr(Q1B,4)}, v{T0}, s[20:23], 0 offen offset:1152")
    A.e(f"buffer_load_dword v{Q2A}, v{T2}, s[20:23], 0 offen offset:1024")
    A.e(f"buffer_load_dword v{Q2B}, v{T2}, s[20:23], 0 offen offset:{1152+1024}")
    make_srd(A, 24, 4, 5, str(LY.O_OFF), LY.O_BYTES)
    A.e(f"v_lshrrev_b32 v{T3}, 5, v{LANE}")
    A.e(f"v_cmp_gt_u32 s[34:35], 32, v{LANE}")
    ones = 0x3F803F80
    for b in range(2):
        A.e(f"v_mov_b32 v{K2[b]+1}, 0x{ones:x}")
        A.e(f"v_mov_b32 v{K2[b]+2}, 0")
        A.e(f"v_mov_b32 v{K2[b]+3}, 0")
    for qq in (Q2A, Q2B):
        for r in (1, 2, 3): A.e(f"v_mov_b32 v{qq+r}, 0")
    A.label(f"{name}_rerun")
    A.e(f"v_and_b32 v{T1}, 31, v{LANE}")
    A.e(f"v_lshlrev_b32 v{AK1}, 4, v{LANE}")
    A.e(f"v_lshlrev_b32 v{AK2}, 2, v{T1}")
    A.e(f"v_lshrrev_b32 v{T3}, 5, v{LANE}")
    A.e(f"v_mul_u32_u24 v{AV}, 18, v{T3}")
    A.e(f"v_add_u32 v{AV}, v{AV}, v{T1}")
    A.e(f"v_cmp_gt_u32 vcc, 18, v{T1}")
    for r in range(4): A.e(f"v_mov_b32 v{V1[1]+r}, 0")
    A.e(f"v_min_u32 v{T1}, 19, v{T1}")
    A.e(f"v_add_u32 v{T1}, 18, v{T1}")
    A.e(f"v_cndmask_b32 v{AV}, v{T1}, v{AV}, vcc")
    A.e(f"v_lshlrev_b32 v{AV}, 4, v{AV}")
    for r in range(16):
        A.e(f"v_mov_b32 v{OA+r}, 0"); A.e(f"v_mov_b32 v{OB+r}, 0")
    for r in range(4): A.e(f"v_mov_b32 v{P1+r}, 0")
    A.e("s_cmp_eq_u32 s36, 0")
    A.e(f"s_cbranch_scc1 {name}_pipe_start")
    A.e("s_waitcnt vmcnt(0)")
    A.e("s_barrier")
    stamp(2)
    A.e(f"ds_read_b128 {vr(K1[0],4)}, v{AK1}")
    A.e(f"ds_read_b32 v{K2[0]}, v{AK2} offset:1024")
    A.e(f"v_cndmask_b32 v{Q2A}, 0, v{Q2A}, s[34:35]")
    A.e(f"v_cndmask_b32 v{Q2B}, 0, v{Q2B}, s[34:35]")
    A.e("s_waitcnt lgkmcnt(0)")
    A.e(mf(SA, K1[0], Q1A, None))
    A.e(mf(SB, K1[0], Q1B, None))
    A.e(mf(SA, K2[0], Q2A, SA))
    A.e(mf(SB, K2[0], Q2B, SB))
    A.e("s_nop 9")
    def setM(S, Q2, have_max=False):
        if not have_max:
            A.e(f"v_max3_f32 v{T0}, v{S}, v{S+1}, v{S+2}")
            for r in range(3, 15, 2):
                A.e(f"v_max3_f32 v{T0}, v{T0}, v{S+r}, v{S+r+1}")
            A.e(f"v_max_f32 v{T0}, v{T0}, v{S+15}")
        else:
            A.e(f"v_mov_b32 v{T0}, v{S}")
        A.e(f"v_cvt_pk_bf16_f32 v{T1}, v{T0}, v{T0}")
        A.e(f"v_and_b32 v{T1}, 0xffff0000, v{T1}")
        A.e(f"v_sub_f32 v{T2}, v{T0}, v{T1}")
        A.e(f"v_cvt_pk_bf16_f32 v{T1}, -v{T1}, -v{T2}")
        A.e(f"v_cndmask_b32 v{Q2+1}, 0, v{T1}, s[34:35]")
    setM(SA, Q2A); setM(SB, Q2B)
    A.label(f"{name}_pipe_start")
    A.e(f"ds_read_b128 {vr(K1[0],4)}, v{AK1}")
    A.e(f"ds_read_b32 v{K2[0]}, v{AK2} offset:1024")
    A.e(f"ds_read_b128 {vr(K1[1],4)}, v{AK1} offset:{TILE}")
    A.e(f"ds_read_b32 v{K2[1]}, v{AK2} offset:{TILE+1024}")
    A.e(f"ds_read_b128 {vr(V0[0],4)}, v{AV} offset:{VOFF}")
    A.e(f"ds_read_b128 {vr(V1[0],4)}, v{AV} offset:{VOFF+VSZ}")
    for r in range(16): A.e(f"v_mov_b32 v{SB+r}, 0")
    A.e("s_waitcnt lgkmcnt(4)")
    A.e(mf(SA, K1[0], Q1A, None))
    A.e(mf(SA, K2[0], Q2A, SA))
    A.e("s_mov_b32 s31, 0")
    A.e("s_nop 7")
    stamp(3)
    A.raw(".p2align 3")
    A.label(f"{name}_loop")
    A.e("s_bitcmp1_b32 s36, s31")
    A.e(f"s_cbranch_scc1 {name}_dobar")
    A.label(f"{name}_body")
    for tt in range(4):
        b = tt % 2; nb = 1 - b
        off = tt*TILE
        def E(S, r): return f"v_exp_f32 v{S+r}, v{S+r}"
        def C(P, S, r): return f"v_cvt_pk_bf16_f32 v{P}, v{S+r}, v{S+r+1}"
        lds = not opt.get("nolds")
        if opt.get("sameaddr"): off = 0
        slots = [
            ([C(P1+2, SB, 12), C(P1+3, SB, 14)], (SA, 0),  mf(SB, K1[b], Q1B, None), None),
            ([C(P0+0, SA, 0),  C(P0+1, SA, 2)],  (SA, 4),  mf(SB, K2[b], Q2B, SB), None),
            ([C(P0+2, SA, 4),  C(P0+3, SA, 6)],  (SA, 8),  mf(OB, V1[nb], P1, OB),
                 f"ds_read_b128 {vr(K1[b],4)}, v{AK1} offset:{off+2*TILE}"),
            ([C(P1+0, SA, 8),  C(P1+1, SA, 10)], (SA, 12), mf(OA, V0[b], P0, OA),
                 f"ds_read_b32 v{K2[b]}, v{AK2} offset:{off+2*TILE+1024}"),
            ([C(P1+2, SA, 12), C(P1+3, SA, 14)], (SB, 0),  mf(SA, K1[nb], Q1A, None),
                 f"ds_read_b128 {vr(V0[nb],4)}, v{AV} offset:{off+TILE+VOFF}"),
            ([C(P0+0, SB, 0),  C(P0+1, SB, 2)],  (SB, 4),  mf(SA, K2[nb], Q2A, SA),
                 f"ds_read_b128 {vr(V1[nb],4)}, v{AV} offset:{off+TILE+VOFF+VSZ}"),
            ([C(P0+2, SB, 4),  C(P0+3, SB, 6)],  (SB, 8),  mf(OA, V1[b], P1, OA), None),
            ([C(P1+0, SB, 8),  C(P1+1, SB, 10)], (SB, 12), mf(OB, V0[b], P0, OB), None),
        ]
        for si, (cv, (S, r0), m, ex) in enumerate(slots):
            A.e(cv[0]); A.e(cv[1])
            if opt.get("pairm") and si % 2 == 1:
                A.e(m)
                if ex and lds: A.e(ex)
                for r in range(4): A.e(E(S, r0+r))
                continue
            if si == 2 and lds:
                A.e(E(S, r0)); A.e("s_waitcnt lgkmcnt(0)"); A.e(E(S, r0+1).replace("v_exp_f32", "v_exp_f32_e64"))
            else:
                A.e(E(S, r0)); A.e(E(S, r0+1))
            A.e(m)
            if ex and lds: A.e(ex)
            A.e(E(S, r0+2))
            A.e(E(S, r0+3))
    if not opt.get("sameaddr"):
        A.e(f"v_add_u32 v{AK1}, {4*TILE}, v{AK1}")
        A.e(f"v_add_u32 v{AK2}, {4*TILE}, v{AK2}")
        A.e(f"v_add_u32 v{AV}, {4*TILE}, v{AV}")
    A.e("s_add_u32 s31, s31, 1")
    A.e(f"s_cmp_lt_u32 s31, {opt.get('nit', 16)}")
    A.e(f"s_cbranch_scc1 {name}_loop")
    stamp(4)
    A.e(f"v_cvt_pk_bf16_f32 v{P1+2}, v{SB+12}, v{SB+13}")
    A.e(f"v_cvt_pk_bf16_f32 v{P1+3}, v{SB+14}, v{SB+15}")
    A.e("s_mov_b32 s40, 0x53800000")
    A.e(f"v_mov_b32 v{OA+11}, v{OA+10}")
    A.e(mf(OB, V1[1], P1, OB))
    A.e("s_nop 0")
    A.e(f"v_permlane32_swap_b32 v{OA+10}, v{OA+11}")
    A.e("s_nop 1")
    A.e(f"v_rcp_f32 v{T2}, v{OA+10}")
    A.e(f"v_cmp_ge_f32 vcc, s40, v{OA+10}")
    for r in range(10): A.e(f"v_mul_f32 v{SA+r}, v{OA+r}, v{T2}")
    for i in range(5): A.e(f"v_cvt_pk_bf16_f32 v{SA+i}, v{SA+2*i}, v{SA+2*i+1}")
    A.e("s_lshl_b32 s41, s6, 6")
    A.e("s_add_u32 s41, s41, s14")
    A.e("s_lshl_b32 s42, s41, 10")
    A.e("s_lshl_b32 s43, s41, 7")
    A.e(f"s_add_u32 s43, s43, {LY.O1_BYTES}")
    A.e(f"v_lshlrev_b32 v{T0}, 4, v{LANE}")
    A.e(f"v_lshlrev_b32 v{T1}, 2, v{LANE}")
    A.e(f"v_mov_b32 v{OB+11}, v{OB+10}")
    A.e("s_nop 1")
    A.e(f"v_permlane32_swap_b32 v{OB+10}, v{OB+11}")
    A.e("s_nop 1")
    A.e(f"v_cmp_ge_f32 s[44:45], s40, v{OB+10}")
    A.e(f"v_rcp_f32 v{T2}, v{OB+10}")
    A.e("s_nop 1")
    A.e("s_and_b64 vcc, vcc, s[44:45]")
    A.e("s_cmp_eq_u32 s36, 0")
    A.e(f"s_cbranch_scc1 {name}_fin")
    A.e("s_cmp_eq_u64 vcc, -1")
    A.e(f"s_cbranch_scc0 {name}_fallback")
    A.label(f"{name}_fin")
    A.e(f"buffer_store_dwordx4 {vr(SA,4)}, v{T0}, s[24:27], s42 offen")
    for r in range(10): A.e(f"v_mul_f32 v{SB+r}, v{OB+r}, v{T2}")
    for i in range(5): A.e(f"v_cvt_pk_bf16_f32 v{SB+i}, v{SB+2*i}, v{SB+2*i+1}")
    A.e(f"buffer_store_dwordx4 {vr(SB,4)}, v{T0}, s[24:27], s42 offen offset:1024")
    A.e("s_mov_b64 exec, s[34:35]")
    A.e(f"buffer_store_dword v{SA+4}, v{T1}, s[24:27], s43 offen")
    A.e(f"buffer_store_dword v{SB+4}, v{T1}, s[24:27], s43 offen offset:128")
    def dump():
        stamp(6)
        A.e("s_mov_b64 exec, -1")
        A.e("s_waitcnt lgkmcnt(0) vmcnt(0)")
        stamp(7)
        A.e("s_memrealtime s[78:79]")
        A.e("s_waitcnt lgkmcnt(0)")
        A.e("s_sub_u32 s72, s78, s76")
        A.e("s_mov_b32 s73, 0")
        A.e("s_add_u32 s72, s72, s60")
        A.e("s_addc_u32 s73, s61, 0")
        make_srd(A, 44, 4, 5, str(64<<20), 1<<20)
        A.e("s_lshl_b32 s48, s2, 3")
        A.e("s_add_u32 s48, s48, s9")
        A.e("s_lshl_b32 s48, s48, 6")
        for i in range(16): A.e(f"v_mov_b32 v{i}, s{60+i}")
        A.e("v_mov_b32 v16, s48")
        A.e("s_mov_b64 exec, 1")
        for i in range(4):
            A.e(f"buffer_store_dwordx4 v[{4*i}:{4*i+3}], v16, s[44:47], 0 offen offset:{16*i}")
    if stamps: dump()
    RT["wave"]=9; rt_exit(A, 1, 8)
    A.label(f"{name}_end")
    A.e("s_endpgm")
    A.label(f"{name}_dobar")
    A.e("s_barrier")
    A.e(f"s_branch {name}_body")
    A.label(f"{name}_fallback")
    MA, MB = P0, P0+1
    A.e(f"v_mov_b32 v{MA}, 0xff7fffff")
    A.e(f"v_mov_b32 v{MB}, 0xff7fffff")
    for qq in (Q2A, Q2B): A.e(f"v_mov_b32 v{qq+1}, 0")
    A.e(f"v_and_b32 v{T1}, 31, v{LANE}")
    A.e(f"v_lshlrev_b32 v{T0}, 4, v{LANE}")
    A.e(f"v_lshlrev_b32 v{T2}, 2, v{T1}")
    A.e("s_mov_b32 s31, 0")
    A.label(f"{name}_mloop")
    A.e(f"ds_read_b128 {vr(K1[1],4)}, v{T0}")
    A.e(f"ds_read_b32 v{K2[1]}, v{T2} offset:1024")
    A.e("s_waitcnt lgkmcnt(0)")
    A.e(mf(SA, K1[1], Q1A, None))
    A.e(mf(SB, K1[1], Q1B, None))
    A.e(mf(SA, K2[1], Q2A, SA))
    A.e(mf(SB, K2[1], Q2B, SB))
    A.e("s_nop 15")
    for S, M in ((SA, MA), (SB, MB)):
        for r in range(0, 16, 2):
            A.e(f"v_max3_f32 v{M}, v{M}, v{S+r}, v{S+r+1}")
    A.e(f"v_add_u32 v{T0}, {TILE}, v{T0}")
    A.e(f"v_add_u32 v{T2}, {TILE}, v{T2}")
    A.e("s_add_u32 s31, s31, 1")
    A.e("s_cmp_lt_u32 s31, 64")
    A.e(f"s_cbranch_scc1 {name}_mloop")
    for M, S in ((MA, SA), (MB, SB)):
        A.e(f"v_mov_b32 v{T1}, v{M}")
        A.e("s_nop 1")
        A.e(f"v_permlane32_swap_b32 v{M}, v{T1}")
        A.e("s_nop 1")
        A.e(f"v_max_f32 v{S}, v{M}, v{T1}")
    setM(SA, Q2A, True); setM(SB, Q2B, True)
    A.e("s_mov_b32 s36, 0")
    A.e(f"s_branch {name}_rerun")
    A.label(f"{name}_helper")
    A.e(f"s_mul_i32 s12, s6, {64*TILE}")
    A.e(f"s_add_u32 s12, s12, {LY.KV_OFF}")
    A.e("s_sub_u32 s10, s9, 4")
    A.e("s_lshl_b32 s28, s10, 10")
    A.e("s_waitcnt lgkmcnt(0)")
    make_srd(A, 16, 4, 5, "s12", 64*TILE)
    def dma(s):
        A.e(f"s_add_u32 s29, s28, {4096*s}")
        A.e("s_mov_b32 m0, s29")
        A.e("s_nop 0")
        A.e(f"buffer_load_dwordx4 v{T0}, s[16:19], s29 offen lds")
    for s in range(12): dma(s)
    A.e("s_waitcnt vmcnt(10)")
    A.e("s_barrier")
    for s in range(12, 20): dma(s)
    A.e("s_waitcnt vmcnt(12)")
    A.e("s_barrier")
    for s in range(20, 37): dma(s)
    A.e("s_waitcnt vmcnt(0)")
    A.e("s_barrier")
    stamp(3)
    if helper_tail: helper_tail(A, name)
    if stamps:
        stamp(2); stamp(4); stamp(5); stamp(1)
        dump()
    RT["wave"]=9; rt_exit(A, 1, 8)
    A.e("s_endpgm")
    kernel_end(A, name, NV)
```

```python
import sys; sys.path.insert(0,"gen")
from asmlib import *
from l1gemm import gen_gemm_role, GEMM_LDS
from ssm import *
L1_LDS = max(GEMM_LDS, SSM_LDS)
NPF = 16
L1_WGS = 192 + 288 + NPF
PF = {"on": True}
def gen_l1(A, only=None):
    kernel_begin(A, "l1_kernel")
    A.e(f"s_cmp_lt_u32 s2, {NPF}")
    A.e("s_cbranch_scc1 l1_pf")
    A.e(f"s_sub_u32 s2, s2, {NPF}")
    A.e("s_cmp_ge_u32 s2, 480")
    A.e("s_cbranch_scc1 l1_kernel_end")
    if only == "g":
        A.e("s_cmp_ge_u32 s2, 192"); A.e("s_cbranch_scc1 l1_kernel_end")
    if only == "k":
        A.e("s_cmp_lt_u32 s2, 192"); A.e("s_cbranch_scc1 l1_kernel_end")
    rt_entry(A)
    A.e("s_cmp_ge_u32 s2, 192")
    A.e("s_cbranch_scc1 l1k")
    nv = gen_gemm_role(A, "l1g")
    A.label("l1k")
    import asmlib
    old = asmlib.STMOD.get("cur")
    if asmlib.STMOD.get("ssm"): asmlib.STMOD["cur"] = asmlib.STMOD["ssm"]
    nv = max(nv, gen_ssm_role(A, "l1k", 192, "l1_idxtab"))
    asmlib.STMOD["cur"] = old
    A.label("l1_pf")
    if PF["on"]:
        A.e("s_getpc_b64 s[4:5]")
        A.label("l1_pf_pc")
        A.e("s_sub_u32 s4, s4, l1_pf_pc-l1_kernel")
        A.e("s_subb_u32 s5, s5, 0")
        A.e("v_lshlrev_b32 v1, 7, v0")
        A.e("s_mov_b32 s6, text_end-l1_kernel")
        A.e("s_mov_b32 s7, 0x00020000")
        A.e("s_mov_b32 s8, s4"); A.e("s_mov_b32 s9, s5"); A.e("s_mov_b32 s10, s6"); A.e("s_mov_b32 s11, 0x00020000")
        A.e("buffer_load_dword v2, v1, s[8:11], 0 offen")
        A.e("s_mov_b32 s12, 32768")
        A.e("buffer_load_dword v3, v1, s[8:11], s12 offen")
        A.e("s_waitcnt vmcnt(0)")
    A.label("l1_kernel_end")
    A.e("s_endpgm")
    emit_idx_table(A, "l1_idxtab")
    kernel_end(A, "l1_kernel", nv)
if __name__ == "__main__":
    hdr = open("concat_heads__ssm_conv_s4__softmax_full_mha__prompt.s.ref").read().split("; Override")[0]
    A = Asm()
    A.raw(hdr.rstrip())
    A.raw(f"; @launch kernel=l1_kernel grid=({L1_WGS},1,1) block=(256,1,1) lds={L1_LDS}")
    A.raw('.amdgcn_target "amdgcn-amd-amdhsa--gfx950"')
    import asmlib, l1gemm
    import ssm
    for k in sys.argv[4:]:
        if k.startswith('exit='): ssm.SOPT['exit'] = int(k[5:])
        else: l1gemm.OPT[k] = True
    if len(sys.argv) > 3: asmlib.STAMPS["on"] = True
    gen_l1(A, sys.argv[2] if len(sys.argv) > 2 and sys.argv[2] != "all" else None)
    A.raw(".text"); A.label("text_end")
    open(sys.argv[1], "w").write(A.text())
```

```python
import sys; sys.path.insert(0, "work")
from asmlib import *
import layout as LY

XSLOT = 16384; WSLOT = 10240; WROW = 320
WBASE = 3*XSLOT
SCR = WBASE + 3*WSLOT
GEMM_LDS = SCR + 1024
NST = 18
OPT = {}
def f32bits(x):
    import struct
    return struct.unpack("<I", struct.pack("<f", x))[0]

def gen_gemm_role(A, name):
    ACC = [0, 16, 32, 48]; ACL = 64
    XF = [[80, 84, 88, 92], [96, 100, 104, 108]]
    WM = [112, 116]; WL = [120, 124]
    AX = [156, 157]
    BX = [132, 133, 134, 135]
    BWM, BWL = 136, 137
    VXO = 138; VW = [139, 140, 141]
    LANE, T0, T1, T2, T3, T4 = 142, 143, 144, 145, 146, 147
    XL = [148, 152]
    A.e("s_load_dwordx4 s[4:7], s[0:1], 72")
    A.e("s_load_dwordx2 s[8:9], s[0:1], 112")
    stamp(A, 0); stamp_rt0(A)
    if OPT.get("prio"): A.e("s_setprio 3")
    A.e("s_and_b32 s10, s2, 7")
    A.e("s_lshr_b32 s11, s2, 3")
    A.e("s_lshr_b32 s24, s10, 1")
    A.e("s_lshl_b32 s24, s24, 2")
    A.e("s_and_b32 s25, s11, 3")
    A.e("s_add_u32 s24, s24, s25")
    A.e("s_and_b32 s25, s10, 1")
    A.e("s_mul_i32 s25, s25, 6")
    A.e("s_lshr_b32 s26, s11, 2")
    A.e("s_add_u32 s25, s25, s26")
    A.e("s_lshr_b32 s26, s25, 2")
    A.e("s_and_b32 s27, s25, 3")
    A.e(f"v_and_b32 v{LANE}, 63, v0")
    A.e(f"v_lshrrev_b32 v{T0}, 6, v0")
    A.e("s_mul_i32 s29, s25, 288")
    A.e(f"v_readfirstlane_b32 s28, v{T0}")
    A.e(f"s_mul_i32 s30, s24, {128*1152}")
    A.e(f"v_lshrrev_b32 v{T0}, 3, v{LANE}")
    A.e(f"v_mul_u32_u24 v{VXO}, 1152, v{T0}")
    A.e(f"v_lshrrev_b32 v{T1}, 4, v{LANE}")
    A.e(f"v_and_b32 v{T2}, 7, v{LANE}")
    A.e(f"v_xor_b32 v{T1}, v{T1}, v{T2}")
    A.e(f"v_xor_b32 v{T2}, 4, v{T1}")
    VXO2 = T4 + 0
    A.e(f"v_lshl_add_u32 v{158}, v{T2}, 4, v{VXO}")
    A.e(f"v_lshl_add_u32 v{VXO}, v{T1}, 4, v{VXO}")
    VXE, VXD = VXO, 158
    for i in range(3):
        A.e(f"s_add_u32 s31, s28, {4*i}")
        A.e("s_lshl_b32 s31, s31, 6")
        A.e(f"v_add_u32 v{T0}, s31, v{LANE}")
        A.e(f"v_mul_u32_u24 v{T1}, 3277, v{T0}")
        A.e(f"v_lshrrev_b32 v{T1}, 16, v{T1}")
        A.e(f"v_mul_u32_u24 v{T2}, 20, v{T1}")
        A.e(f"v_sub_u32 v{T2}, v{T0}, v{T2}")
        A.e(f"v_mul_u32_u24 v{T1}, 3456, v{T1}")
        A.e(f"v_lshl_add_u32 v{VW[i]}, v{T2}, 4, v{T1}")
        A.e(f"v_cmp_gt_u32 vcc, 18, v{T2}")
        A.e("s_movk_i32 s38, 640")
        A.e(f"v_cmp_gt_u32 s[32:33], s38, v{T0}")
        A.e(f"v_mov_b32 v{T3}, 0x7ffffff0")
        A.e("s_nop 0")
        A.e("s_and_b64 vcc, vcc, s[32:33]")
        A.e("s_nop 0")
        A.e(f"v_cndmask_b32 v{VW[i]}, v{T3}, v{VW[i]}, vcc")
    A.e("s_waitcnt lgkmcnt(0)")
    make_srd(A, 12, 4, 5, "s30", 128*1152)
    A.e("s_add_u32 s16, s6, s29")
    A.e("s_addc_u32 s17, s7, 0")
    A.e(f"s_sub_u32 s18, {576*3456}, s29")
    A.e("s_mov_b32 s19, 0x00020000")
    A.e(f"s_mul_i32 s34, s28, {32*1152}")
    A.e("s_lshl_b32 s35, s28, 12")
    A.e("s_lshl_b32 s36, s28, 10")
    A.e("s_cmp_lt_u32 s28, 2")
    A.e(f"s_cselect_b32 s37, 1, 0")
    A.e(f"s_add_u32 s36, s36, {WBASE}")
    def xd(sb, soff, slot, j2, maybe_invalid=False):
        ld = f"buffer_load_dwordx4 v{VXD if j2 % 2 else VXE}, s[12:15], s44 offen lds"
        if maybe_invalid:
            return [f"s_add_u32 s44, {sb}, {soff + j2*8*1152}", f"s_add_u32 s45, s35, {slot*XSLOT + j2*1024}",
                    "s_cmp_eq_u32 s56, 0", "s_cselect_b32 m0, s45, s55", ld]
        return [f"s_add_u32 s44, {sb}, {soff + j2*8*1152}", f"s_add_u32 m0, s35, {slot*XSLOT + j2*1024}", ld]
    def wd(sb, soff, slot, i, maybe_invalid=False):
        src = f"v{VW[i]}"
        if i < 2: m0 = [f"s_add_u32 s45, s36, {slot*WSLOT + 4096*i}"]; m0r = "s45"
        else: m0 = []; m0r = f"s{60+slot}"
        if maybe_invalid:
            return [f"s_add_u32 s57, {sb}, {soff}"] + m0 + ["s_cmp_eq_u32 s56, 0", f"s_cselect_b32 m0, {m0r}, s55",
                    f"buffer_load_dwordx4 {src}, s[16:19], s57 offen lds"]
        if i < 2:
            return [f"s_add_u32 s57, {sb}, {soff}", f"s_add_u32 m0, s36, {slot*WSLOT + 4096*i}",
                    f"buffer_load_dwordx4 {src}, s[16:19], s57 offen lds"]
        return [f"s_add_u32 s57, {sb}, {soff}", f"s_mov_b32 m0, {m0r}",
                f"buffer_load_dwordx4 {src}, s[16:19], s57 offen lds"]
    for sl in range(3):
        A.e(f"s_add_u32 s{60+sl}, s36, {sl*WSLOT + 8192}")
        A.e("s_cmp_eq_u32 s37, 1")
        A.e(f"s_mov_b32 s56, {SCR}")
        A.e(f"s_cselect_b32 s{60+sl}, s{60+sl}, s56")
    def emit_dma(l, mid=None):
        if mid and OPT.get("nodma"):
            A.e(mid); return
        for x in l[:-1]: A.e(x)
        A.e(mid if mid else "s_nop 0")
        A.e(l[-1])
    A.e("s_mov_b32 s41, 0")
    for j2 in range(4): emit_dma(xd("s34", 0, 0, j2))
    for i in range(3): emit_dma(wd("s41", 0, 0, i))
    for i in range(3): emit_dma(wd("s41", 32*3456, 1, i))
    for j2 in range(4): emit_dma(xd("s34", 128, 1, j2))
    for i in range(3): emit_dma(wd("s41", 2*32*3456, 2, i))
    stamp(A, 1)
    A.e(f"v_and_b32 v{T0}, 31, v{LANE}")
    A.e(f"v_lshrrev_b32 v{T1}, 5, v{LANE}")
    A.e(f"v_lshrrev_b32 v{T2}, 1, v{T0}")
    A.e(f"v_and_b32 v{T2}, 7, v{T2}")
    A.e(f"v_xor_b32 v{T2}, v{T2}, v{T1}")
    A.e(f"v_lshlrev_b32 v{BX[0]}, 7, v{T0}")
    A.e(f"v_lshl_add_u32 v{BX[0]}, v{T2}, 4, v{BX[0]}")
    for kq in range(1, 4): A.e(f"v_xor_b32 v{BX[kq]}, {32*kq}, v{BX[0]}")
    BXL = [128, 129, 130, 131]
    A.e("s_lshl_b32 s39, s28, 12")
    for kq in range(4): A.e(f"v_add_u32 v{BXL[kq]}, s39, v{BX[kq]}")
    A.e(f"v_lshrrev_b32 v{T2}, 2, v{LANE}")
    A.e(f"v_and_b32 v{T2}, 3, v{T2}")
    A.e(f"v_lshl_add_u32 v{T2}, v{T1}, 3, v{T2}")
    A.e(f"v_mul_u32_u24 v{T2}, {WROW}, v{T2}")
    A.e(f"v_add_u32 v{T2}, {WBASE}, v{T2}")
    A.e(f"v_lshrrev_b32 v{T3}, 4, v{LANE}")
    A.e(f"v_and_b32 v{T3}, 1, v{T3}")
    A.e(f"v_and_b32 v{T4}, 3, v{LANE}")
    A.e(f"v_lshl_add_u32 v{T3}, v{T3}, 2, v{T4}")
    A.e("s_cmp_eq_u32 s26, 2")
    A.e(f"s_cbranch_scc1 {name}_vaddr")
    A.e(f"v_lshlrev_b32 v{T0}, 2, v{T3}")
    A.e(f"v_mov_b32 v{BWM}, 0x86753120")
    A.e(f"v_lshrrev_b32 v{BWM}, v{T0}, v{BWM}")
    A.e(f"v_and_b32 v{BWM}, 15, v{BWM}")
    A.e("s_mul_i32 s31, s28, 9")
    A.e(f"v_add_u32 v{BWM}, s31, v{BWM}")
    A.e(f"v_lshl_add_u32 v{BWM}, v{BWM}, 3, v{T2}")
    A.e(f"v_mul_u32_u24 v{BWL}, 9, v{T4}")
    A.e(f"v_add_u32 v{BWL}, 4, v{BWL}")
    A.e(f"v_lshl_add_u32 v{BWL}, v{BWL}, 3, v{T2}")
    A.e(f"s_branch {name}_addr_done")
    A.label(f"{name}_vaddr")
    A.e("s_lshl_b32 s31, s28, 3")
    A.e(f"v_add_u32 v{BWM}, s31, v{T3}")
    A.e(f"v_lshl_add_u32 v{BWM}, v{BWM}, 3, v{T2}")
    A.e(f"v_add_u32 v{BWL}, 32, v{T4}")
    A.e(f"v_lshl_add_u32 v{BWL}, v{BWL}, 3, v{T2}")
    A.label(f"{name}_addr_done")
    for r in range(80): A.e(f"v_mov_b32 v{r}, 0")

    def read_list(buf, st, ks):
        if OPT.get("noread"): return []
        xs = (st//2) % 3; ws = st % 3; kq = 2*(st % 2) + ks
        L = []
        for q in range(2):
            L.append(f"ds_read_b64_tr_b16 {vr(WM[buf]+2*q,2)}, v{BWM} offset:{ws*WSLOT + ks*16*WROW + q*4*WROW}")
        for T in range(4):
            L.append(f"ds_read_b128 {vr(XF[buf][T],4)}, v{BX[kq]} offset:{xs*XSLOT + 4096*T}")
        for q in range(2):
            L.append(f"ds_read_b64_tr_b16 {vr(WL[buf]+2*q,2)}, v{BWL} offset:{ws*WSLOT + ks*16*WROW + q*4*WROW}")
        L.append(f"ds_read_b128 {vr(XL[buf],4)}, v{BXL[kq]} offset:{xs*XSLOT}")
        return L
    def mfma_list(buf, vtype):
        L = []
        for T in range(4):
            if vtype: L.append(f"v_mfma_f32_32x32x16_bf16 {vr(ACC[T],16)}, {vr(XF[buf][T],4)}, {vr(WM[buf],4)}, {vr(ACC[T],16)}")
            else:     L.append(f"v_mfma_f32_32x32x16_bf16 {vr(ACC[T],16)}, {vr(WM[buf],4)}, {vr(XF[buf][T],4)}, {vr(ACC[T],16)}")
        if vtype: L.append(f"v_mfma_f32_32x32x16_bf16 {vr(ACL,16)}, {vr(XL[buf],4)}, {vr(WL[buf],4)}, {vr(ACL,16)}")
        else:     L.append(f"v_mfma_f32_32x32x16_bf16 {vr(ACL,16)}, {vr(WL[buf],4)}, {vr(XL[buf],4)}, {vr(ACL,16)}")
        if OPT.get("nomfma"): L = ["s_nop 0"]*5
        return L
    def interleave(m, r, d):
        r = list(r); dd = dict(d)
        need = [3, 4, 5, 6, 9]
        for i in range(5):
            A.e(f"s_waitcnt lgkmcnt({9 - need[i] + min(3*i, 9)})")
            if i in dd: emit_dma(dd[i], m[i])
            else: A.e(m[i])
            for _ in range(3):
                if r: A.e(r.pop(0))
        for x in r: A.e(x)
    A.e(f"s_add_u32 s40, s34, {2*128}")
    A.e(f"s_mov_b32 s41, {3*32*3456}")
    A.e("s_mov_b32 s58, s40"); A.e("s_mov_b32 s59, s41")
    A.e("s_mov_b32 s56, 0"); A.e(f"s_mov_b32 s55, {SCR}")
    A.e("s_mov_b32 s47, 0")
    A.e("s_waitcnt vmcnt(10)")
    A.e("s_barrier")
    stamp(A, 2)
    for x in read_list(0, 0, 0): A.e(x)
    A.e("s_cmp_eq_u32 s26, 2")
    A.e(f"s_cbranch_scc1 {name}_vloop")
    for vtype in (0, 1):
        L = f"{name}_{'v' if vtype else 'q'}loop"
        A.raw(".p2align 3")
        A.label(L)
        for st in range(6):
            c = st // 2; sub = st % 2
            xb = "s40" if c == 0 else "s58"
            wb = "s41" if st < 3 else "s59"
            interleave(mfma_list(0, vtype), read_list(1, st, 1),
                       [(1, xd(xb, c*128, (c+2) % 3, 2*sub, c >= 1)), (3, xd(xb, c*128, (c+2) % 3, 2*sub+1, c >= 1))])
            A.e("s_waitcnt vmcnt(7) lgkmcnt(0)")
            A.e("s_barrier")
            interleave(mfma_list(1, vtype), read_list(0, st+1, 0),
                       [(0, wd(wb, st*32*3456, st % 3, 0, st >= 3)), (2, wd(wb, st*32*3456, st % 3, 1, st >= 3)), (4, wd(wb, st*32*3456, st % 3, 2, st >= 3))])
        A.e(f"s_add_u32 s40, s40, {3*128}")
        A.e(f"s_add_u32 s41, s41, {6*32*3456}")
        A.e("s_add_u32 s47, s47, 1")
        A.e("s_cmp_eq_u32 s47, 2")
        A.e("s_cselect_b32 s56, 0x7ff00000, 0")
        A.e("s_add_u32 s58, s40, s56"); A.e("s_add_u32 s59, s41, s56")
        A.e("s_cmp_lt_u32 s47, 3")
        A.e(f"s_cbranch_scc1 {L}")
        A.e(f"s_branch {name}_epi_{'v' if vtype else 'q'}")
    A.label(f"{name}_epi_q")
    stamp(A, 3)
    A.e("s_waitcnt lgkmcnt(0)")
    A.e("s_cmp_eq_u32 s26, 0")
    def csel(d, a, b):
        A.e(f"s_mov_b32 s55, {a}"); A.e(f"s_mov_b32 s56, {b}"); A.e(f"s_cselect_b32 s{d}, s55, s56")
    csel(30, LY.Q_OFF, LY.KV_OFF); csel(31, LY.Q_BYTES, LY.KV_BYTES)
    csel(48, 64*1152, 64*LY.KVTILE); csel(49, 1152, LY.KVTILE); csel(50, f32bits(LY.QSCALE), f32bits(1.0))
    A.e("s_add_u32 s20, s8, s30")
    A.e("s_addc_u32 s21, s9, 0")
    A.e("s_mov_b32 s22, s31")
    A.e("s_mov_b32 s23, 0x00020000")
    A.e("s_lshl_b32 s51, s27, 3")
    A.e("s_lshl_b32 s52, s28, 1")
    A.e("s_add_u32 s52, s52, s51")
    A.e("s_mul_i32 s52, s52, s48")
    A.e("s_lshl_b32 s53, s24, 2")
    A.e("s_mul_i32 s53, s53, s49")
    A.e("s_add_u32 s52, s52, s53")
    A.e(f"v_lshlrev_b32 v{T0}, 4, v{LANE}")
    for T in range(4):
        a = ACC[T]
        for r in range(16): A.e(f"v_mul_f32 v{a+r}, s50, v{a+r}")
        for i in range(8): A.e(f"v_cvt_pk_bf16_f32 v{a+i}, v{a+2*i}, v{a+2*i+1}")
        A.e(f"buffer_store_dwordx4 {vr(a,4)}, v{T0}, s[20:23], s52 offen")
        A.e("s_add_u32 s54, s52, s48")
        A.e(f"buffer_store_dwordx4 {vr(a+4,4)}, v{T0}, s[20:23], s54 offen")
        A.e("s_add_u32 s52, s52, s49")
    for r in range(8): A.e(f"v_mul_f32 v{ACL+r}, s50, v{ACL+r}")
    for i in range(4): A.e(f"v_cvt_pk_bf16_f32 v{ACL+i}, v{ACL+2*i}, v{ACL+2*i+1}")
    A.e("s_mul_i32 s52, s51, s48")
    A.e("s_lshl_b32 s53, s24, 2")
    A.e("s_add_u32 s53, s53, s28")
    A.e("s_mul_i32 s53, s53, s49")
    A.e("s_add_u32 s52, s52, s53")
    A.e("s_add_u32 s52, s52, 1024")
    A.e(f"v_lshrrev_b32 v{T1}, 5, v{LANE}")
    A.e("s_lshl_b32 s53, s48, 1")
    A.e(f"v_mul_lo_u32 v{T1}, v{T1}, s53")
    A.e(f"v_and_b32 v{T2}, 31, v{LANE}")
    A.e(f"v_lshl_add_u32 v{T1}, v{T2}, 2, v{T1}")
    for i in range(4):
        A.e(f"s_mul_i32 s53, s48, {4*(i//2) + (i%2)}")
        A.e("s_add_u32 s53, s53, s52")
        A.e(f"buffer_store_dword v{ACL+i}, v{T1}, s[20:23], s53 offen")
    stamp(A, 4)
    stamp_dump(A, 8, 28, 4)
    RT["wave"]=28; rt_exit(A, 0, 4); A.e("s_endpgm")
    A.label(f"{name}_epi_v")
    stamp(A, 3)
    A.e("s_waitcnt lgkmcnt(0)")
    make_srd(A, 20, 8, 9, str(LY.KV_OFF), LY.KV_BYTES)
    HS = 64*LY.KVTILE
    def voff(dst):
        A.e(f"v_mul_u32_u24 v{T1}, 3641, v{T0}")
        A.e(f"v_lshrrev_b32 v{T1}, 16, v{T1}")
        A.e(f"v_mul_u32_u24 v{T2}, 18, v{T1}")
        A.e(f"v_sub_u32 v{T2}, v{T0}, v{T2}")
        A.e(f"v_lshrrev_b32 v{T3}, 5, v{LANE}")
        A.e(f"v_mul_u32_u24 v{T3}, 18, v{T3}")
        A.e(f"v_add_u32 v{T2}, v{T2}, v{T3}")
        A.e(f"v_add_u32 v{T1}, s51, v{T1}")
        A.e(f"s_mov_b32 s53, {HS}")
        A.e(f"v_mul_lo_u32 v{T1}, v{T1}, s53")
        A.e(f"v_lshl_add_u32 v{dst}, v{T2}, 4, v{T1}")
    A.e("s_lshl_b32 s51, s27, 3")
    A.e(f"v_and_b32 v{T0}, 31, v{LANE}")
    A.e("s_lshl_b32 s31, s28, 5")
    A.e(f"v_add_u32 v{T0}, s31, v{T0}")
    voff(AX[0])
    A.e("s_lshl_b32 s53, s24, 2")
    A.e(f"s_mul_i32 s52, s53, {LY.KVTILE}")
    A.e("s_add_u32 s52, s52, 1152")
    for T in range(4):
        a = ACC[T]
        for i in range(8): A.e(f"v_cvt_pk_bf16_f32 v{a+i}, v{a+2*i}, v{a+2*i+1}")
        A.e(f"buffer_store_dwordx4 {vr(a,4)}, v{AX[0]}, s[20:23], s52 offen")
        A.e(f"buffer_store_dwordx4 {vr(a+4,4)}, v{AX[0]}, s[20:23], s52 offen offset:{LY.VSZ}")
        A.e(f"s_add_u32 s52, s52, {LY.KVTILE}")
    A.e(f"v_and_b32 v{T0}, 31, v{LANE}")
    A.e(f"v_add_u32 v{T0}, 128, v{T0}")
    voff(AX[1])
    A.e(f"v_and_b32 v{T0}, 16, v{LANE}")
    A.e(f"v_cmp_eq_u32 vcc, 0, v{T0}")
    A.e(f"v_mov_b32 v{T3}, 0x7ffffff0")
    A.e("s_nop 0")
    A.e(f"v_cndmask_b32 v{AX[1]}, v{T3}, v{AX[1]}, vcc")
    for i in range(8): A.e(f"v_cvt_pk_bf16_f32 v{ACL+i}, v{ACL+2*i}, v{ACL+2*i+1}")
    A.e("s_lshl_b32 s53, s24, 2")
    A.e("s_add_u32 s53, s53, s28")
    A.e(f"s_mul_i32 s52, s53, {LY.KVTILE}")
    A.e("s_add_u32 s52, s52, 1152")
    A.e(f"buffer_store_dwordx4 {vr(ACL,4)}, v{AX[1]}, s[20:23], s52 offen")
    A.e(f"buffer_store_dwordx4 {vr(ACL+4,4)}, v{AX[1]}, s[20:23], s52 offen offset:{LY.VSZ}")
    A.e(f"v_lshrrev_b32 v{T0}, 2, v{LANE}")
    A.e(f"v_add_u32 v{T0}, s51, v{T0}")
    A.e(f"s_mov_b32 s53, {HS}")
    A.e(f"v_mul_lo_u32 v{T0}, v{T0}, s53")
    A.e(f"v_bfe_u32 v{T1}, v{LANE}, 1, 1")
    A.e(f"v_mul_u32_u24 v{T1}, {LY.VSZ}, v{T1}")
    A.e(f"v_and_b32 v{T2}, 1, v{LANE}")
    A.e(f"v_lshl_add_u32 v{T1}, v{T2}, 4, v{T1}")
    A.e(f"v_add3_u32 v{T0}, v{T0}, v{T1}, 0")
    A.e(f"v_add_u32 v{T0}, 576, v{T0}")
    A.e(f"v_cmp_eq_u32 vcc, 0, v{T2}")
    A.e(f"v_mov_b32 v4, 0x3f803f80")
    A.e("v_cndmask_b32 v0, 0, v4, vcc")
    A.e(f"v_cmp_gt_u32 vcc, 32, v{LANE}")
    for r in range(1, 4): A.e(f"v_mov_b32 v{r}, v0")
    A.e(f"v_cndmask_b32 v{T0}, v{T3}, v{T0}, vcc")
    A.e(f"buffer_store_dwordx4 v[0:3], v{T0}, s[20:23], s52 offen")
    stamp(A, 4)
    stamp_dump(A, 8, 28, 4)
    RT["wave"]=28; rt_exit(A, 0, 4); A.e("s_endpgm")
    return 160
```

```python
import sys; sys.path.insert(0,"gen")
from asmlib import *
from attn import gen_attn
from conv import conv_tail
from build_l1_only import gen_l1, L1_WGS, L1_LDS
from l3 import *
def gen_l3(A):
    kernel_begin(A, "l3_kernel")
    A.e("s_cmp_ge_u32 s2, 256")
    A.e("s_cbranch_scc1 l3_kernel_end")
    rt_entry(A)
    A.e("s_cmp_ge_u32 s2, 192")
    A.e("s_cbranch_scc1 l3f")
    nv = gen_outproj_role(A, "l3o")
    A.label("l3f")
    nv = max(nv, gen_final_role(A, "l3f", 192))
    A.label("l3_kernel_end")
    A.e("s_endpgm")
    kernel_end(A, "l3_kernel", nv)
def build(path, stamps=False, opt=None):
    opt = opt or {}
    hdr = open("concat_heads__ssm_conv_s4__softmax_full_mha__prompt.s.ref").read().split("; Override")[0]
    A = Asm()
    A.raw(hdr.rstrip())
    A.raw(f"; @launch kernel=l1_kernel grid=({L1_WGS},1,1) block=(256,1,1) lds={L1_LDS}")
    A.raw("; @launch kernel=attn_kernel grid=(256,1,1) block=(512,1,1) lds=155648")
    A.raw("; @launch kernel=l3_kernel grid=(256,1,1) block=(256,1,1) lds=110592")
    A.raw('.amdgcn_target "amdgcn-amd-amdhsa--gfx950"')
    import asmlib
    import l1gemm, conv, build_l1_only
    if opt.get('nopf'): build_l1_only.PF['on'] = False
    for k in ('noload','nomfma','wopf'):
        if opt.get('c'+k): conv.COPT[k] = True
    if opt.get("gprio"): l1gemm.OPT["prio"] = True
    if opt.get("gpf"): l1gemm.OPT["pf"] = True
    if opt.get("norot"): l1gemm.OPT["norot"] = True
    asmlib.STMOD["cur"] = opt.get("st1")
    asmlib.STMOD["ssm"] = opt.get("stssm")
    gen_l1(A)
    asmlib.STMOD["cur"] = opt.get("st2")
    gen_attn(A, "attn_kernel", stamps=stamps, opt=opt, helper_tail=(None if opt.get('noconv') else (lambda A, n, b3=False: conv_tail(A, n, opt.get("cprio"), b3))))
    asmlib.STMOD["cur"] = opt.get("st3")
    gen_l3(A)
    A.raw(".text")
    A.label("text_end")
    asmlib.STMOD["cur"] = None
    open(path, "w").write(A.text())
if __name__ == "__main__":
    opt = {}
    for k in sys.argv[2:]:
        if '=' in k:
            a, b = k.split('=')
            opt[a] = int(b) if b.lstrip('-').isdigit() else b.replace('+',' ')
        else: opt[k] = True
    import asmlib
    if opt.get("rt"): asmlib.RT["on"] = True
    if opt.get("gst"): asmlib.STAMPS["on"] = True
    build(sys.argv[1], stamps=opt.get("stamps", False), opt=opt)
```

```python
import sys; sys.path.insert(0, "work")
from asmlib import *
import layout as LY
COPT = {}
def conv_tail(A, name, prio=None):
    LANE = 127
    ACC = 0
    BFS = [32, 64]
    AFS = [96, 100, 104, 108]
    VA, VB, T0, T1, T2 = 112, 113, 114, 115, 116
    A.e("s_lshl_b32 s40, s10, 8")
    A.e("s_add_u32 s40, s40, s2")
    A.e("s_cmp_ge_u32 s40, 576")
    A.e(f"s_cbranch_scc1 {name}_cend")
    if prio is not None: A.e(f"s_setprio {prio}")
    A.e("s_load_dwordx2 s[60:61], s[0:1], 64")
    A.e(f"s_mul_i32 s41, s40, {LY.KR_ROW}")
    A.e(f"s_add_u32 s41, s41, {LY.KR_OFF}")
    make_srd(A, 44, 4, 5, "s41", LY.KR_ROW)
    A.e(f"s_mul_i32 s41, s40, {LY.UT_ROW}")
    A.e(f"s_add_u32 s41, s41, {LY.UT_OFF}")
    make_srd(A, 48, 4, 5, "s41", LY.UT_ROW)
    A.e("s_lshl_b32 s41, s40, 12")
    A.e(f"s_add_u32 s41, s41, {LY.YT_OFF}")
    make_srd(A, 52, 4, 5, "s41", 4096)
    A.e(f"v_and_b32 v{T0}, 15, v{LANE}")
    A.e(f"v_lshrrev_b32 v{T1}, 4, v{LANE}")
    A.e(f"v_lshlrev_b32 v{VB}, 5, v{T0}")
    A.e(f"v_lshl_add_u32 v{VB}, v{T1}, 4, v{VB}")
    A.e(f"v_add_u32 v{VB}, 32, v{VB}")
    A.e(f"v_lshlrev_b32 v{T2}, 3, v{T1}")
    A.e(f"v_sub_u32 v{T2}, v{T2}, v{T0}")
    A.e(f"v_add_u32 v{T2}, 16, v{T2}")
    A.e(f"v_lshlrev_b32 v{VA}, 1, v{T2}")
    A.e(f"v_and_b32 v{T2}, 1, v{T0}")
    A.e(f"v_mul_u32_u24 v{T2}, {LY.KRLEN*2+2}, v{T2}")
    A.e(f"v_add_u32 v{VA}, v{VA}, v{T2}")
    for r in range(32): A.e(f"v_mov_b32 v{r}, 0")
    issued = []
    def bload(set_, rho_off, k):
        return f"buffer_load_dwordx4 {vr(BFS[set_]+4*k,4)}, v{VB}, s[48:51], s{58+rho_off} offen offset:{512*k}"
    def aload(buf, rho_off, mu):
        return [f"s_sub_u32 s62, s{64+rho_off}, {512*mu}", f"buffer_load_dwordx4 {vr(AFS[buf],4)}, v{VA}, s[44:47], s62 offen"]
    BS = {0: 58, 1: 59, 2: 67}; AS = {0: 64, 1: 65, 2: 66}
    def bload(set_, ro, k): return f"buffer_load_dwordx4 {vr(BFS[set_]+4*k,4)}, v{VB}, s[48:51], s{BS[ro]} offen offset:{512*k}"
    def aload(buf, ro, mu): return [f"s_sub_u32 s62, s{AS[ro]}, {512*mu}", f"buffer_load_dwordx4 {vr(AFS[buf],4)}, v{VA}, s[44:47], s62 offen"]
    def setrho():
        A.e("s_sub_u32 s58, 448, s56"); A.e("s_sub_u32 s59, 384, s56"); A.e("s_sub_i32 s67, 320, s56"); A.e("s_max_i32 s67, s67, 0")
        A.e("s_sub_u32 s64, 4032, s56"); A.e("s_sub_u32 s65, 3968, s56"); A.e("s_sub_u32 s66, 3904, s56")
    A.e("s_mov_b32 s56, 0")
    setrho()
    for k in range(8): A.e(bload(0, 0, k))
    for mu in range(3):
        for l in aload(mu, 0, mu): A.e(l)
    A.e("s_mov_b32 s63, 0")
    A.label(f"{name}_cl")
    q = [("B", 0)]*8 + [("A", 0), ("A", 1), ("A", 2)]
    for x in range(2):
        for mu in range(8):
            si = 8*x + mu
            last = max(i for i, t in enumerate(q) if t == ("A", si) or t == ("B", x))
            A.e(f"s_waitcnt vmcnt({len(q) - 1 - last})")
            q = q[last+1:]
            pend = []
            nsi = si + 3
            if nsi < 16: pend.append((aload(nsi % 4, nsi // 8, nsi % 8), ("A", nsi)))
            else: pend.append((aload(nsi % 4, 2, nsi - 16), ("A", nsi - 16)))
            if 2 <= mu <= 5:
                for k in (2*(mu-2), 2*(mu-2)+1):
                    if x == 0: pend.append(([bload(1, 1, k)], ("B", 1)))
                    else: pend.append(([bload(0, 2, k)], ("Bn", 0)))
            ab = AFS[si % 4]
            for k in range(8-mu):
                if not COPT.get("nomfma"):
                    A.e(f"v_mfma_f32_16x16x32_bf16 {vr(ACC+4*(mu+k),4)}, {vr(ab,4)}, {vr(BFS[x]+4*k,4)}, {vr(ACC+4*(mu+k),4)}")
                if pend:
                    l, t = pend.pop(0)
                    for y in l: A.e(y)
                    q.append(t)
            for l, t in pend:
                for y in l: A.e(y)
                q.append(t)
    tags = [("B", 0) if t == ("Bn", 0) else t for t in q]
    assert tags[-2:] == [("A", 1), ("A", 2)] and all(t in (("B", 0), ("A", 0)) for t in tags[:-2]), tags
    COPT["order"] = tags
    A.e("s_add_u32 s56, s56, 128")
    setrho()
    A.e("s_add_u32 s63, s63, 1")
    A.e("s_cmp_lt_u32 s63, 4")
    A.e(f"s_cbranch_scc1 {name}_cl")
    A.e("s_waitcnt vmcnt(0) lgkmcnt(0)")
    make_srd(A, 44, 60, 61, "0", 1152)
    A.e("s_lshl_b32 s41, s40, 1")
    A.e(f"v_mov_b32 v{T2}, s41")
    A.e(f"buffer_load_ushort v{T2}, v{T2}, s[44:47], 0 offen")
    A.e(f"v_lshlrev_b32 v{VB}, 5, v{T0}")
    A.e(f"v_lshl_add_u32 v{VB}, v{T1}, 3, v{VB}")
    A.e("s_movk_i32 s41, 512")
    for c in range(8): A.e(f"buffer_load_dwordx2 {vr(32+2*c,2)}, v{VB}, s[48:51], s41 offen offset:{512*c}")
    A.e("s_waitcnt vmcnt(0)")
    A.e(f"v_lshlrev_b32 v{T2}, 16, v{T2}")
    W = 64
    for c in range(8):
        a = ACC + 4*c; u = 32 + 2*c
        A.e(f"v_cvt_pk_bf16_f32 v{a}, v{a}, v{a+1}")
        A.e(f"v_cvt_pk_bf16_f32 v{a+1}, v{a+2}, v{a+3}")
        for k in range(2):
            A.e(f"v_lshlrev_b32 v{W}, 16, v{u+k}")
            A.e(f"v_and_b32 v{W+1}, 0xffff0000, v{u+k}")
            A.e(f"v_mul_f32 v{W}, v{W}, v{T2}")
            A.e(f"v_mul_f32 v{W+1}, v{W+1}, v{T2}")
            A.e(f"v_cvt_pk_bf16_f32 v{W}, v{W}, v{W+1}")
            A.e(f"v_lshlrev_b32 v{W+2}, 16, v{a+k}")
            A.e(f"v_and_b32 v{W+3}, 0xffff0000, v{a+k}")
            A.e(f"v_and_b32 v{W+1}, 0xffff0000, v{W}")
            A.e(f"v_lshlrev_b32 v{W}, 16, v{W}")
            A.e(f"v_add_f32 v{W}, v{W}, v{W+2}")
            A.e(f"v_add_f32 v{W+1}, v{W+1}, v{W+3}")
            A.e(f"v_cvt_pk_bf16_f32 v{a+k}, v{W}, v{W+1}")
        A.e(f"buffer_store_dwordx2 {vr(a,2)}, v{VB}, s[52:55], 0 offen offset:{512*c}")
    A.label(f"{name}_cend")
```

```python
import sys; sys.path.insert(0, "work")
from asmlib import *
import layout as LY

XSLOT = 16384; WSLOT = 10240; WROW = 320
WBASE = 3*XSLOT
SCR = WBASE + 3*WSLOT
GEMM_LDS = SCR + 1024
NST = 18
OPT = {}
def f32bits(x):
    import struct
    return struct.unpack("<I", struct.pack("<f", x))[0]

def gen_gemm_role(A, name):
    ACC = [0, 16, 32, 48]; ACL = 64
    XF = [[80, 84, 88, 92], [96, 100, 104, 108]]
    WM = [112, 116]; WL = [120, 124]
    AX = [156, 157]
    BX = [132, 133, 134, 135]
    BWM, BWL = 136, 137
    VXO = 138; VW = [139, 140, 141]
    LANE, T0, T1, T2, T3, T4 = 142, 143, 144, 145, 146, 147
    XL = [148, 152]
    A.e("s_load_dwordx4 s[4:7], s[0:1], 72")
    A.e("s_load_dwordx2 s[8:9], s[0:1], 112")
    stamp(A, 0); stamp_rt0(A)
    if OPT.get("prio"): A.e("s_setprio 3")
    A.e("s_and_b32 s10, s2, 7")
    A.e("s_lshr_b32 s11, s2, 3")
    A.e("s_lshr_b32 s24, s10, 1")
    A.e("s_lshl_b32 s24, s24, 2")
    A.e("s_and_b32 s25, s11, 3")
    A.e("s_add_u32 s24, s24, s25")
    A.e("s_and_b32 s25, s10, 1")
    A.e("s_mul_i32 s25, s25, 6")
    A.e("s_lshr_b32 s26, s11, 2")
    A.e("s_add_u32 s25, s25, s26")
    A.e("s_lshr_b32 s26, s25, 2")
    A.e("s_and_b32 s27, s25, 3")
    A.e(f"v_and_b32 v{LANE}, 63, v0")
    A.e(f"v_lshrrev_b32 v{T0}, 6, v0")
    A.e("s_mul_i32 s29, s25, 288")
    A.e(f"v_readfirstlane_b32 s28, v{T0}")
    A.e(f"s_mul_i32 s30, s24, {128*1152}")
    A.e(f"v_lshrrev_b32 v{T0}, 3, v{LANE}")
    A.e(f"v_mul_u32_u24 v{VXO}, 1152, v{T0}")
    A.e(f"v_lshrrev_b32 v{T1}, 4, v{LANE}")
    A.e(f"v_and_b32 v{T2}, 7, v{LANE}")
    A.e(f"v_xor_b32 v{T1}, v{T1}, v{T2}")
    A.e(f"v_xor_b32 v{T2}, 4, v{T1}")
    VXO2 = T4 + 0
    A.e(f"v_lshl_add_u32 v{158}, v{T2}, 4, v{VXO}")
    A.e(f"v_lshl_add_u32 v{VXO}, v{T1}, 4, v{VXO}")
    VXE, VXD = VXO, 158
    for i in range(3):
        A.e(f"s_add_u32 s31, s28, {4*i}")
        A.e("s_lshl_b32 s31, s31, 6")
        A.e(f"v_add_u32 v{T0}, s31, v{LANE}")
        A.e(f"v_mul_u32_u24 v{T1}, 3277, v{T0}")
        A.e(f"v_lshrrev_b32 v{T1}, 16, v{T1}")
        A.e(f"v_mul_u32_u24 v{T2}, 20, v{T1}")
        A.e(f"v_sub_u32 v{T2}, v{T0}, v{T2}")
        A.e(f"v_mul_u32_u24 v{T1}, 3456, v{T1}")
        A.e(f"v_lshl_add_u32 v{VW[i]}, v{T2}, 4, v{T1}")
        A.e(f"v_cmp_gt_u32 vcc, 18, v{T2}")
        A.e("s_movk_i32 s38, 640")
        A.e(f"v_cmp_gt_u32 s[32:33], s38, v{T0}")
        A.e(f"v_mov_b32 v{T3}, 0x7ffffff0")
        A.e("s_nop 0")
        A.e("s_and_b64 vcc, vcc, s[32:33]")
        A.e("s_nop 0")
        A.e(f"v_cndmask_b32 v{VW[i]}, v{T3}, v{VW[i]}, vcc")
    A.e("s_waitcnt lgkmcnt(0)")
    make_srd(A, 12, 4, 5, "s30", 128*1152)
    A.e("s_add_u32 s16, s6, s29")
    A.e("s_addc_u32 s17, s7, 0")
    A.e(f"s_sub_u32 s18, {576*3456}, s29")
    A.e("s_mov_b32 s19, 0x00020000")
    A.e(f"s_mul_i32 s34, s28, {32*1152}")
    A.e("s_lshl_b32 s35, s28, 12")
    A.e("s_lshl_b32 s36, s28, 10")
    A.e("s_cmp_lt_u32 s28, 2")
    A.e(f"s_cselect_b32 s37, 1, 0")
    A.e(f"s_add_u32 s36, s36, {WBASE}")
    def xd(sb, soff, slot, j2, maybe_invalid=False):
        ld = f"buffer_load_dwordx4 v{VXD if j2 % 2 else VXE}, s[12:15], s44 offen lds"
        if maybe_invalid:
            return [f"s_add_u32 s44, {sb}, {soff + j2*8*1152}", f"s_add_u32 s45, s35, {slot*XSLOT + j2*1024}",
                    "s_cmp_eq_u32 s56, 0", "s_cselect_b32 m0, s45, s55", ld]
        return [f"s_add_u32 s44, {sb}, {soff + j2*8*1152}", f"s_add_u32 m0, s35, {slot*XSLOT + j2*1024}", ld]
    def wd(sb, soff, slot, i, maybe_invalid=False):
        src = f"v{VW[i]}"
        if i < 2: m0 = [f"s_add_u32 s45, s36, {slot*WSLOT + 4096*i}"]; m0r = "s45"
        else: m0 = []; m0r = f"s{60+slot}"
        if maybe_invalid:
            return [f"s_add_u32 s57, {sb}, {soff}"] + m0 + ["s_cmp_eq_u32 s56, 0", f"s_cselect_b32 m0, {m0r}, s55",
                    f"buffer_load_dwordx4 {src}, s[16:19], s57 offen lds"]
        if i < 2:
            return [f"s_add_u32 s57, {sb}, {soff}", f"s_add_u32 m0, s36, {slot*WSLOT + 4096*i}",
                    f"buffer_load_dwordx4 {src}, s[16:19], s57 offen lds"]
        return [f"s_add_u32 s57, {sb}, {soff}", f"s_mov_b32 m0, {m0r}",
                f"buffer_load_dwordx4 {src}, s[16:19], s57 offen lds"]
    for sl in range(3):
        A.e(f"s_add_u32 s{60+sl}, s36, {sl*WSLOT + 8192}")
        A.e("s_cmp_eq_u32 s37, 1")
        A.e(f"s_mov_b32 s56, {SCR}")
        A.e(f"s_cselect_b32 s{60+sl}, s{60+sl}, s56")
    def emit_dma(l, mid=None):
        if mid and OPT.get("nodma"):
            A.e(mid); return
        for x in l[:-1]: A.e(x)
        A.e(mid if mid else "s_nop 0")
        A.e(l[-1])
    A.e("s_mov_b32 s41, 0")
    for j2 in range(4): emit_dma(xd("s34", 0, 0, j2))
    for i in range(3): emit_dma(wd("s41", 0, 0, i))
    for i in range(3): emit_dma(wd("s41", 32*3456, 1, i))
    for j2 in range(4): emit_dma(xd("s34", 128, 1, j2))
    for i in range(3): emit_dma(wd("s41", 2*32*3456, 2, i))
    if OPT.get("pf"):
        PF = 159
        A.e("s_lshl_b32 s31, s11, 2")
        A.e("s_add_u32 s31, s31, s28")
        make_srd(A, 64, 4, 5, "0", 2048*1152)
        make_srd(A, 68, 6, 7, "0", 576*3456)
        A.e("s_mul_i32 s38, s31, 38")
        A.e(f"v_add_u32 v{T0}, s38, v{LANE}")
        A.e(f"v_and_b32 v{T1}, 511, v{T0}")
        A.e(f"v_lshrrev_b32 v{T2}, 9, v{T0}")
        A.e(f"v_add_u32 v{T2}, 2, v{T2}")
        A.e(f"v_mul_u32_u24 v{T1}, 1152, v{T1}")
        A.e(f"v_lshl_add_u32 v{T1}, v{T2}, 7, v{T1}")
        A.e("s_lshr_b32 s38, s10, 1")
        A.e(f"s_mul_i32 s38, s38, {512*1152}")
        A.e(f"v_cmp_gt_u32 vcc, 38, v{LANE}")
        A.e(f"v_mov_b32 v{T3}, 0x7ffffff0")
        A.e("s_nop 0")
        A.e(f"v_cndmask_b32 v{T1}, v{T3}, v{T1}, vcc")
        A.e(f"buffer_load_dword v{PF}, v{T1}, s[64:67], s38 offen")
        A.e("s_and_b32 s38, s10, 1")
        A.e("s_mul_i32 s38, s38, 1664")
        A.e(f"s_add_u32 s38, s38, {96*3456}")
        A.e("s_mul_i32 s39, s31, 70")
        for j in range(2):
            A.e(f"v_add_u32 v{T0}, {64*j}, v{LANE}")
            A.e(f"v_cmp_gt_u32 vcc, 70, v{T0}")
            A.e(f"v_add_u32 v{T0}, s39, v{T0}")
            A.e(f"v_mul_u32_u24 v{T1}, 4682, v{T0}")
            A.e(f"v_lshrrev_b32 v{T1}, 16, v{T1}")
            A.e(f"v_mul_u32_u24 v{T2}, 14, v{T1}")
            A.e(f"v_sub_u32 v{T2}, v{T0}, v{T2}")
            A.e(f"v_mul_u32_u24 v{T1}, 3456, v{T1}")
            A.e(f"v_lshl_add_u32 v{T1}, v{T2}, 7, v{T1}")
            A.e(f"v_cndmask_b32 v{T1}, v{T3}, v{T1}, vcc")
            A.e(f"buffer_load_dword v{PF+1+j}, v{T1}, s[68:71], s38 offen")
    stamp(A, 1)
    A.e(f"v_and_b32 v{T0}, 31, v{LANE}")
    A.e(f"v_lshrrev_b32 v{T1}, 5, v{LANE}")
    A.e(f"v_lshrrev_b32 v{T2}, 1, v{T0}")
    A.e(f"v_and_b32 v{T2}, 7, v{T2}")
    A.e(f"v_xor_b32 v{T2}, v{T2}, v{T1}")
    A.e(f"v_lshlrev_b32 v{BX[0]}, 7, v{T0}")
    A.e(f"v_lshl_add_u32 v{BX[0]}, v{T2}, 4, v{BX[0]}")
    for kq in range(1, 4): A.e(f"v_xor_b32 v{BX[kq]}, {32*kq}, v{BX[0]}")
    BXL = [128, 129, 130, 131]
    A.e("s_lshl_b32 s39, s28, 12")
    for kq in range(4): A.e(f"v_add_u32 v{BXL[kq]}, s39, v{BX[kq]}")
    A.e(f"v_lshrrev_b32 v{T2}, 2, v{LANE}")
    A.e(f"v_and_b32 v{T2}, 3, v{T2}")
    A.e(f"v_lshl_add_u32 v{T2}, v{T1}, 3, v{T2}")
    A.e(f"v_mul_u32_u24 v{T2}, {WROW}, v{T2}")
    A.e(f"v_add_u32 v{T2}, {WBASE}, v{T2}")
    A.e(f"v_lshrrev_b32 v{T3}, 4, v{LANE}")
    A.e(f"v_and_b32 v{T3}, 1, v{T3}")
    A.e(f"v_and_b32 v{T4}, 3, v{LANE}")
    A.e(f"v_lshl_add_u32 v{T3}, v{T3}, 2, v{T4}")
    A.e("s_cmp_eq_u32 s26, 2")
    A.e(f"s_cbranch_scc1 {name}_vaddr")
    A.e(f"v_lshlrev_b32 v{T0}, 2, v{T3}")
    A.e(f"v_mov_b32 v{BWM}, 0x86753120")
    A.e(f"v_lshrrev_b32 v{BWM}, v{T0}, v{BWM}")
    A.e(f"v_and_b32 v{BWM}, 15, v{BWM}")
    A.e("s_mul_i32 s31, s28, 9")
    A.e(f"v_add_u32 v{BWM}, s31, v{BWM}")
    A.e(f"v_lshl_add_u32 v{BWM}, v{BWM}, 3, v{T2}")
    A.e(f"v_mul_u32_u24 v{BWL}, 9, v{T4}")
    A.e(f"v_add_u32 v{BWL}, 4, v{BWL}")
    A.e(f"v_lshl_add_u32 v{BWL}, v{BWL}, 3, v{T2}")
    A.e(f"s_branch {name}_addr_done")
    A.label(f"{name}_vaddr")
    A.e("s_lshl_b32 s31, s28, 3")
    A.e(f"v_add_u32 v{BWM}, s31, v{T3}")
    A.e(f"v_lshl_add_u32 v{BWM}, v{BWM}, 3, v{T2}")
    A.e(f"v_add_u32 v{BWL}, 32, v{T4}")
    A.e(f"v_lshl_add_u32 v{BWL}, v{BWL}, 3, v{T2}")
    A.label(f"{name}_addr_done")
    for r in range(80): A.e(f"v_mov_b32 v{r}, 0")

    def read_list(buf, st, ks):
        if OPT.get("noread"): return []
        xs = (st//2) % 3; ws = st % 3; kq = 2*(st % 2) + ks
        L = []
        for q in range(2):
            L.append(f"ds_read_b64_tr_b16 {vr(WM[buf]+2*q,2)}, v{BWM} offset:{ws*WSLOT + ks*16*WROW + q*4*WROW}")
        for T in range(4):
            L.append(f"ds_read_b128 {vr(XF[buf][T],4)}, v{BX[kq]} offset:{xs*XSLOT + 4096*T}")
        for q in range(2):
            L.append(f"ds_read_b64_tr_b16 {vr(WL[buf]+2*q,2)}, v{BWL} offset:{ws*WSLOT + ks*16*WROW + q*4*WROW}")
        L.append(f"ds_read_b128 {vr(XL[buf],4)}, v{BXL[kq]} offset:{xs*XSLOT}")
        return L
    def mfma_list(buf, vtype):
        L = []
        for T in range(4):
            if vtype: L.append(f"v_mfma_f32_32x32x16_bf16 {vr(ACC[T],16)}, {vr(XF[buf][T],4)}, {vr(WM[buf],4)}, {vr(ACC[T],16)}")
            else:     L.append(f"v_mfma_f32_32x32x16_bf16 {vr(ACC[T],16)}, {vr(WM[buf],4)}, {vr(XF[buf][T],4)}, {vr(ACC[T],16)}")
        if vtype: L.append(f"v_mfma_f32_32x32x16_bf16 {vr(ACL,16)}, {vr(XL[buf],4)}, {vr(WL[buf],4)}, {vr(ACL,16)}")
        else:     L.append(f"v_mfma_f32_32x32x16_bf16 {vr(ACL,16)}, {vr(WL[buf],4)}, {vr(XL[buf],4)}, {vr(ACL,16)}")
        if OPT.get("nomfma"): L = ["s_nop 0"]*5
        return L
    def interleave(m, r, d):
        r = list(r); dd = dict(d)
        need = [3, 4, 5, 6, 9]
        for i in range(5):
            A.e(f"s_waitcnt lgkmcnt({9 - need[i] + min(3*i, 9)})")
            if i in dd: emit_dma(dd[i], m[i])
            else: A.e(m[i])
            for _ in range(3):
                if r: A.e(r.pop(0))
        for x in r: A.e(x)
    A.e(f"s_add_u32 s40, s34, {2*128}")
    A.e(f"s_mov_b32 s41, {3*32*3456}")
    A.e("s_mov_b32 s58, s40"); A.e("s_mov_b32 s59, s41")
    A.e("s_mov_b32 s56, 0"); A.e(f"s_mov_b32 s55, {SCR}")
    A.e("s_mov_b32 s47, 0")
    A.e(f"s_waitcnt vmcnt({13 if OPT.get('pf') else 10})")
    A.e("s_barrier")
    stamp(A, 2)
    for x in read_list(0, 0, 0): A.e(x)
    A.e("s_cmp_eq_u32 s26, 2")
    A.e(f"s_cbranch_scc1 {name}_vloop")
    for vtype in (0, 1):
        L = f"{name}_{'v' if vtype else 'q'}loop"
        A.raw(".p2align 3")
        A.label(L)
        for st in range(6):
            c = st // 2; sub = st % 2
            xb = "s40" if c == 0 else "s58"
            wb = "s41" if st < 3 else "s59"
            interleave(mfma_list(0, vtype), read_list(1, st, 1),
                       [(1, xd(xb, c*128, (c+2) % 3, 2*sub, c >= 1)), (3, xd(xb, c*128, (c+2) % 3, 2*sub+1, c >= 1))])
            A.e("s_waitcnt vmcnt(7) lgkmcnt(0)")
            A.e("s_barrier")
            interleave(mfma_list(1, vtype), read_list(0, st+1, 0),
                       [(0, wd(wb, st*32*3456, st % 3, 0, st >= 3)), (2, wd(wb, st*32*3456, st % 3, 1, st >= 3)), (4, wd(wb, st*32*3456, st % 3, 2, st >= 3))])
        A.e(f"s_add_u32 s40, s40, {3*128}")
        A.e(f"s_add_u32 s41, s41, {6*32*3456}")
        A.e("s_add_u32 s47, s47, 1")
        A.e("s_cmp_eq_u32 s47, 2")
        A.e("s_cselect_b32 s56, 0x7ff00000, 0")
        A.e("s_add_u32 s58, s40, s56"); A.e("s_add_u32 s59, s41, s56")
        A.e("s_cmp_lt_u32 s47, 3")
        A.e(f"s_cbranch_scc1 {L}")
        A.e(f"s_branch {name}_epi_{'v' if vtype else 'q'}")
    A.label(f"{name}_epi_q")
    stamp(A, 3)
    A.e("s_waitcnt lgkmcnt(0)")
    A.e("s_cmp_eq_u32 s26, 0")
    def csel(d, a, b):
        A.e(f"s_mov_b32 s55, {a}"); A.e(f"s_mov_b32 s56, {b}"); A.e(f"s_cselect_b32 s{d}, s55, s56")
    csel(30, LY.Q_OFF, LY.KV_OFF); csel(31, LY.Q_BYTES, LY.KV_BYTES)
    csel(48, 64*1152, 64*LY.KVTILE); csel(49, 1152, LY.KVTILE); csel(50, f32bits(LY.QSCALE), f32bits(1.0))
    A.e("s_add_u32 s20, s8, s30")
    A.e("s_addc_u32 s21, s9, 0")
    A.e("s_mov_b32 s22, s31")
    A.e("s_mov_b32 s23, 0x00020000")
    A.e("s_lshl_b32 s51, s27, 3")
    A.e("s_lshl_b32 s52, s28, 1")
    A.e("s_add_u32 s52, s52, s51")
    A.e("s_mul_i32 s52, s52, s48")
    A.e("s_lshl_b32 s53, s24, 2")
    A.e("s_mul_i32 s53, s53, s49")
    A.e("s_add_u32 s52, s52, s53")
    A.e(f"v_lshlrev_b32 v{T0}, 4, v{LANE}")
    for T in range(4):
        a = ACC[T]
        for r in range(16): A.e(f"v_mul_f32 v{a+r}, s50, v{a+r}")
        for i in range(8): A.e(f"v_cvt_pk_bf16_f32 v{a+i}, v{a+2*i}, v{a+2*i+1}")
        A.e(f"buffer_store_dwordx4 {vr(a,4)}, v{T0}, s[20:23], s52 offen")
        A.e("s_add_u32 s54, s52, s48")
        A.e(f"buffer_store_dwordx4 {vr(a+4,4)}, v{T0}, s[20:23], s54 offen")
        A.e("s_add_u32 s52, s52, s49")
    for r in range(8): A.e(f"v_mul_f32 v{ACL+r}, s50, v{ACL+r}")
    for i in range(4): A.e(f"v_cvt_pk_bf16_f32 v{ACL+i}, v{ACL+2*i}, v{ACL+2*i+1}")
    A.e("s_mul_i32 s52, s51, s48")
    A.e("s_lshl_b32 s53, s24, 2")
    A.e("s_add_u32 s53, s53, s28")
    A.e("s_mul_i32 s53, s53, s49")
    A.e("s_add_u32 s52, s52, s53")
    A.e("s_add_u32 s52, s52, 1024")
    A.e(f"v_lshrrev_b32 v{T1}, 5, v{LANE}")
    A.e("s_lshl_b32 s53, s48, 1")
    A.e(f"v_mul_lo_u32 v{T1}, v{T1}, s53")
    A.e(f"v_and_b32 v{T2}, 31, v{LANE}")
    A.e(f"v_lshl_add_u32 v{T1}, v{T2}, 2, v{T1}")
    for i in range(4):
        A.e(f"s_mul_i32 s53, s48, {4*(i//2) + (i%2)}")
        A.e("s_add_u32 s53, s53, s52")
        A.e(f"buffer_store_dword v{ACL+i}, v{T1}, s[20:23], s53 offen")
    stamp(A, 4)
    stamp_dump(A, 8, 28, 4)
    RT["wave"]=28; rt_exit(A, 0, 4); A.e("s_endpgm")
    A.label(f"{name}_epi_v")
    stamp(A, 3)
    A.e("s_waitcnt lgkmcnt(0)")
    make_srd(A, 20, 8, 9, str(LY.KV_OFF), LY.KV_BYTES)
    HS = 64*LY.KVTILE
    def voff(dst):
        A.e(f"v_mul_u32_u24 v{T1}, 3641, v{T0}")
        A.e(f"v_lshrrev_b32 v{T1}, 16, v{T1}")
        A.e(f"v_mul_u32_u24 v{T2}, 18, v{T1}")
        A.e(f"v_sub_u32 v{T2}, v{T0}, v{T2}")
        A.e(f"v_lshrrev_b32 v{T3}, 5, v{LANE}")
        A.e(f"v_mul_u32_u24 v{T3}, 18, v{T3}")
        A.e(f"v_add_u32 v{T2}, v{T2}, v{T3}")
        A.e(f"v_add_u32 v{T1}, s51, v{T1}")
        A.e(f"s_mov_b32 s53, {HS}")
        A.e(f"v_mul_lo_u32 v{T1}, v{T1}, s53")
        A.e(f"v_lshl_add_u32 v{dst}, v{T2}, 4, v{T1}")
    A.e("s_lshl_b32 s51, s27, 3")
    A.e(f"v_and_b32 v{T0}, 31, v{LANE}")
    A.e("s_lshl_b32 s31, s28, 5")
    A.e(f"v_add_u32 v{T0}, s31, v{T0}")
    voff(AX[0])
    A.e("s_lshl_b32 s53, s24, 2")
    A.e(f"s_mul_i32 s52, s53, {LY.KVTILE}")
    A.e("s_add_u32 s52, s52, 1152")
    for T in range(4):
        a = ACC[T]
        for i in range(8): A.e(f"v_cvt_pk_bf16_f32 v{a+i}, v{a+2*i}, v{a+2*i+1}")
        A.e(f"buffer_store_dwordx4 {vr(a,4)}, v{AX[0]}, s[20:23], s52 offen")
        A.e(f"buffer_store_dwordx4 {vr(a+4,4)}, v{AX[0]}, s[20:23], s52 offen offset:{LY.VSZ}")
        A.e(f"s_add_u32 s52, s52, {LY.KVTILE}")
    A.e(f"v_and_b32 v{T0}, 31, v{LANE}")
    A.e(f"v_add_u32 v{T0}, 128, v{T0}")
    voff(AX[1])
    A.e(f"v_and_b32 v{T0}, 16, v{LANE}")
    A.e(f"v_cmp_eq_u32 vcc, 0, v{T0}")
    A.e(f"v_mov_b32 v{T3}, 0x7ffffff0")
    A.e("s_nop 0")
    A.e(f"v_cndmask_b32 v{AX[1]}, v{T3}, v{AX[1]}, vcc")
    for i in range(8): A.e(f"v_cvt_pk_bf16_f32 v{ACL+i}, v{ACL+2*i}, v{ACL+2*i+1}")
    A.e("s_lshl_b32 s53, s24, 2")
    A.e("s_add_u32 s53, s53, s28")
    A.e(f"s_mul_i32 s52, s53, {LY.KVTILE}")
    A.e("s_add_u32 s52, s52, 1152")
    A.e(f"buffer_store_dwordx4 {vr(ACL,4)}, v{AX[1]}, s[20:23], s52 offen")
    A.e(f"buffer_store_dwordx4 {vr(ACL+4,4)}, v{AX[1]}, s[20:23], s52 offen offset:{LY.VSZ}")
    A.e(f"v_lshrrev_b32 v{T0}, 2, v{LANE}")
    A.e(f"v_add_u32 v{T0}, s51, v{T0}")
    A.e(f"s_mov_b32 s53, {HS}")
    A.e(f"v_mul_lo_u32 v{T0}, v{T0}, s53")
    A.e(f"v_bfe_u32 v{T1}, v{LANE}, 1, 1")
    A.e(f"v_mul_u32_u24 v{T1}, {LY.VSZ}, v{T1}")
    A.e(f"v_and_b32 v{T2}, 1, v{LANE}")
    A.e(f"v_lshl_add_u32 v{T1}, v{T2}, 4, v{T1}")
    A.e(f"v_add3_u32 v{T0}, v{T0}, v{T1}, 0")
    A.e(f"v_add_u32 v{T0}, 576, v{T0}")
    A.e(f"v_cmp_eq_u32 vcc, 0, v{T2}")
    A.e(f"v_mov_b32 v4, 0x3f803f80")
    A.e("v_cndmask_b32 v0, 0, v4, vcc")
    A.e(f"v_cmp_gt_u32 vcc, 32, v{LANE}")
    for r in range(1, 4): A.e(f"v_mov_b32 v{r}, v0")
    A.e(f"v_cndmask_b32 v{T0}, v{T3}, v{T0}, vcc")
    A.e(f"buffer_store_dwordx4 v[0:3], v{T0}, s[20:23], s52 offen")
    stamp(A, 4)
    stamp_dump(A, 8, 28, 4)
    RT["wave"]=28; rt_exit(A, 0, 4); A.e("s_endpgm")
    return 164
```

```python
import sys; sys.path.insert(0, "work")
from asmlib import *
import layout as LY

def gen_outproj_role(A, name):
    ACC = [0, 16, 32]
    OF = 48
    OL = 112
    WF = [[120, 124, 128], [132, 136, 140]]
    AW, AWL = 144, 145
    LANE, T0, T1, T2, T3, T4 = 146, 147, 148, 149, 150, 151
    VW = [152, 153, 154]
    VO, VOL = 155, 156
    A.e("s_load_dwordx4 s[4:7], s[0:1], 88")
    A.e("s_load_dwordx2 s[8:9], s[0:1], 112")
    stamp(A, 0); stamp_rt0(A)
    A.e("s_and_b32 s10, s2, 7")
    A.e("s_lshr_b32 s11, s2, 3")
    A.e("s_lshl_b32 s24, s10, 2")
    A.e("s_and_b32 s25, s11, 3")
    A.e("s_add_u32 s24, s24, s25")
    A.e("s_lshr_b32 s25, s11, 2")
    A.e(f"v_and_b32 v{LANE}, 63, v0")
    A.e(f"v_lshrrev_b32 v{T0}, 6, v0")
    A.e("s_mul_i32 s29, s25, 192")
    A.e(f"v_readfirstlane_b32 s28, v{T0}")
    for i in range(3):
        A.e(f"v_add_u32 v{T0}, {64*i}, v{LANE}")
        A.e(f"v_mul_u32_u24 v{T1}, 5462, v{T0}")
        A.e(f"v_lshrrev_b32 v{T1}, 16, v{T1}")
        A.e(f"v_mul_u32_u24 v{T2}, 12, v{T1}")
        A.e(f"v_sub_u32 v{T2}, v{T0}, v{T2}")
        A.e(f"v_mul_u32_u24 v{T1}, 1152, v{T1}")
        A.e(f"v_lshl_add_u32 v{VW[i]}, v{T2}, 4, v{T1}")
    A.e("s_and_b32 s30, s28, 1")
    A.e("s_lshr_b32 s31, s28, 1")
    A.e("s_lshl_b32 s32, s24, 1")
    A.e("s_add_u32 s32, s32, s30")
    A.e(f"v_lshlrev_b32 v{VO}, 4, v{LANE}")
    A.e("s_lshl_b32 s33, s31, 4")
    A.e("s_lshl_b32 s34, s33, 6")
    A.e("s_add_u32 s34, s34, s32")
    A.e("s_lshl_b32 s34, s34, 10")
    A.e(f"v_lshrrev_b32 v{T1}, 5, v{LANE}")
    A.e(f"v_lshlrev_b32 v{VOL}, 15, v{T1}")
    A.e(f"v_and_b32 v{T2}, 31, v{LANE}")
    A.e(f"v_lshl_add_u32 v{VOL}, v{T2}, 2, v{VOL}")
    A.e("s_lshl_b32 s35, s33, 13")
    A.e("s_lshl_b32 s36, s32, 7")
    A.e("s_add_u32 s35, s35, s36")
    A.e(f"s_add_u32 s35, s35, {LY.O1_BYTES}")
    A.e("s_lshr_b32 s36, s28, 1")
    A.e("s_and_b32 s37, s28, 1")
    A.e("s_mul_i32 s37, s37, 18")
    A.e("s_add_u32 s36, s36, s37")
    A.e(f"s_mul_i32 s38, s36, {16*1152}")
    A.e("s_mul_i32 s39, s36, 3072")
    A.e("s_waitcnt lgkmcnt(0)")
    A.e("s_add_u32 s12, s4, s29")
    A.e("s_addc_u32 s13, s5, 0")
    A.e(f"s_sub_u32 s14, {576*1152}, s29")
    A.e("s_mov_b32 s15, 0x00020000")
    make_srd(A, 16, 8, 9, str(LY.O_OFF), LY.O_BYTES)
    make_srd(A, 20, 6, 7, "0", 2048*2304)
    def wdma(p, k):
        dg = 6*p + 2*k
        L = []
        for i in range(3):
            L.append([f"s_add_u32 s40, s38, {dg*16*1152}", f"s_add_u32 m0, s39, {dg*3072 + 1024*i}", "s_nop 0",
                      f"buffer_load_dwordx4 v{VW[i]}, s[12:15], s40 offen lds"])
        return L
    def oload(h):
        return [[f"s_add_u32 s41, s34, {h*64*1024}", f"buffer_load_dwordx4 {vr(OF+4*h,4)}, v{VO}, s[16:19], s41 offen"]]
    def lload():
        L = []
        for m in range(2):
            for x in range(4):
                L.append([f"s_add_u32 s41, s35, {(8*m+x)*8192}", f"buffer_load_dword v{OL+4*m+x}, v{VOL}, s[16:19], s41 offen"])
        return L
    P = []
    heads = [range(0, 5), range(5, 10), range(10, 16)]
    for p in range(3):
        L = []
        for k in range(3): L += wdma(p, k)
        for h in heads[p]: L += oload(h)
        if p == 2: L += lload()
        P.append(L)
    for l in P[0] + P[1]:
        for x in l: A.e(x)
    A.e(f"v_lshrrev_b32 v{T1}, 5, v{LANE}")
    A.e(f"v_lshrrev_b32 v{T2}, 2, v{LANE}")
    A.e(f"v_and_b32 v{T2}, 3, v{T2}")
    A.e(f"v_lshrrev_b32 v{T3}, 4, v{LANE}")
    A.e(f"v_and_b32 v{T3}, 1, v{T3}")
    A.e(f"v_and_b32 v{T4}, 3, v{LANE}")
    A.e(f"v_lshl_add_u32 v{T3}, v{T3}, 2, v{T4}")
    A.e(f"v_lshlrev_b32 v{T3}, 2, v{T3}")
    A.e(f"v_mov_b32 v{T4}, 0x75643120")
    A.e(f"v_lshrrev_b32 v{T4}, v{T3}, v{T4}")
    A.e(f"v_and_b32 v{T4}, 15, v{T4}")
    A.e(f"v_lshlrev_b32 v{T4}, 3, v{T4}")
    A.e(f"v_lshl_add_u32 v{T0}, v{T1}, 2, v{T2}")
    A.e(f"v_mul_u32_u24 v{AW}, 192, v{T0}")
    A.e(f"v_add_u32 v{AW}, v{AW}, v{T4}")
    A.e(f"s_mul_i32 s36, s31, {16*18*192}")
    A.e(f"v_add_u32 v{AW}, s36, v{AW}")
    A.e(f"v_lshrrev_b32 v{T0}, 1, v{T2}")
    A.e(f"v_lshl_add_u32 v{T0}, v{T1}, 2, v{T0}")
    A.e(f"v_mul_u32_u24 v{T0}, 18, v{T0}")
    A.e(f"v_and_b32 v{T2}, 1, v{T2}")
    A.e(f"v_add3_u32 v{T0}, v{T0}, v{T2}, 16")
    A.e(f"v_mul_u32_u24 v{AWL}, 192, v{T0}")
    A.e(f"v_add_u32 v{AWL}, v{AWL}, v{T4}")
    A.e(f"v_add_u32 v{AWL}, s36, v{AWL}")
    for r in range(48): A.e(f"v_mov_b32 v{r}, 0")
    stamp(A, 1)
    def rdl(buf, st):
        kind, x = st
        L = []
        for ft in range(3):
            for q in range(2):
                if kind == "m": L.append(f"ds_read_b64_tr_b16 {vr(WF[buf][ft]+2*q,2)}, v{AW} offset:{(18*x + 8*q)*192 + 64*ft}")
                else:           L.append(f"ds_read_b64_tr_b16 {vr(WF[buf][ft]+2*q,2)}, v{AWL} offset:{(18*(8*x + 2*q))*192 + 64*ft}")
        return L
    sidx = [0]
    def phase(steps, extra):
        extra = list(extra)
        for l in rdl(sidx[0] % 2, steps[0]): A.e(l)
        for i, st in enumerate(steps):
            buf = sidx[0] % 2; sidx[0] += 1
            A.e("s_waitcnt lgkmcnt(0)")
            nxt = rdl(1-buf, steps[i+1]) if i + 1 < len(steps) else []
            o = OF + 4*st[1] if st[0] == "m" else OL + 4*st[1]
            for ft in range(3):
                A.e(f"v_mfma_f32_32x32x16_bf16 {vr(ACC[ft],16)}, {vr(WF[buf][ft],4)}, {vr(o,4)}, {vr(ACC[ft],16)}")
                for x in nxt[2*ft:2*ft+2]: A.e(x)
                for _ in range(2):
                    if extra:
                        for x in extra.pop(0): A.e(x)
        for l in extra:
            for x in l: A.e(x)
    n0, n1, n2 = len(P[0]), len(P[1]), len(P[2])
    A.e(f"s_waitcnt vmcnt({n1})")
    A.e("s_barrier")
    stamp(A, 2)
    phase([("m", h) for h in heads[0]], P[2])
    A.e(f"s_waitcnt vmcnt({n2})")
    A.e("s_barrier")
    phase([("m", h) for h in heads[1]], [])
    A.e("s_waitcnt vmcnt(0)")
    A.e("s_barrier")
    phase([("m", h) for h in heads[2]] + [("l", 0), ("l", 1)], [])
    stamp(A, 3)
    A.e("s_barrier")
    A.e(f"v_lshlrev_b32 v{T0}, 4, v{LANE}")
    A.e(f"s_mul_i32 s36, s30, {12*1024}")
    A.e(f"v_add_u32 v{T0}, s36, v{T0}")
    A.e(f"v_and_b32 v{T1}, 31, v{LANE}")
    A.e("s_lshl_b32 s36, s32, 5")
    A.e(f"v_add_u32 v{T1}, s36, v{T1}")
    A.e("s_movk_i32 s37, 2304")
    A.e(f"v_mul_lo_u32 v{T1}, v{T1}, s37")
    A.e(f"v_lshrrev_b32 v{T2}, 5, v{LANE}")
    A.e(f"v_lshl_add_u32 v{T1}, v{T2}, 4, v{T1}")
    A.e("s_add_u32 s36, s29, 1152")
    A.e("s_cmp_eq_u32 s31, 0")
    A.e(f"s_cbranch_scc1 {name}_k0")
    for i in range(8): A.e(f"ds_write_b128 v{T0}, {vr(4*i,4)} offset:{1024*i}")
    A.e("s_waitcnt lgkmcnt(0)")
    A.e("s_barrier")
    for i in range(4): A.e(f"ds_read_b128 {vr(48+4*i,4)}, v{T0} offset:{1024*(8+i)}")
    A.e("s_waitcnt lgkmcnt(0)")
    fts = [2]
    def fin(fts, src):
        for n, ft in enumerate(fts):
            a = ACC[ft]
            for r in range(16): A.e(f"v_add_f32 v{a+r}, v{a+r}, v{src+16*n+r}")
            for i in range(8): A.e(f"v_cvt_pk_bf16_f32 v{a+i}, v{a+2*i}, v{a+2*i+1}")
            A.e(f"buffer_store_dwordx4 {vr(a,4)}, v{T1}, s[20:23], s36 offen offset:{64*ft}")
            A.e(f"buffer_store_dwordx4 {vr(a+4,4)}, v{T1}, s[20:23], s36 offen offset:{64*ft+32}")
    fin([2], 48)
    stamp(A, 4)
    stamp_dump(A, 8, 28, 4)
    RT["wave"]=28; rt_exit(A, 2, 4); A.e("s_endpgm")
    A.label(f"{name}_k0")
    for i in range(4): A.e(f"ds_write_b128 v{T0}, {vr(32+4*i,4)} offset:{1024*(8+i)}")
    A.e("s_waitcnt lgkmcnt(0)")
    A.e("s_barrier")
    for i in range(8): A.e(f"ds_read_b128 {vr(48+4*i,4)}, v{T0} offset:{1024*i}")
    A.e("s_waitcnt lgkmcnt(0)")
    fin([0, 1], 48)
    stamp(A, 4)
    stamp_dump(A, 8, 28, 4)
    RT["wave"]=28; rt_exit(A, 2, 4); A.e("s_endpgm")
    return 160

def gen_final_role(A, name, first_wg):
    LANE, T0, T1, T2, T3, T4 = 0, 1, 2, 3, 4, 5
    VY, VA, VAM = 6, 8, 10
    A.e("s_load_dwordx2 s[8:9], s[0:1], 96")
    A.e("s_load_dwordx2 s[10:11], s[0:1], 112")
    stamp(A, 0); stamp_rt0(A)
    A.e(f"v_lshrrev_b32 v{T0}, 6, v0")
    A.e(f"v_and_b32 v{LANE}, 63, v0")
    A.e(f"v_readfirstlane_b32 s28, v{T0}")
    A.e(f"s_sub_u32 s29, s2, {first_wg}")
    A.e("s_lshl_b32 s40, s29, 5")
    A.e(f"v_lshrrev_b32 v{T0}, 2, v{LANE}")
    A.e("s_mul_i32 s41, s28, 144")
    A.e(f"s_mul_i32 s30, s28, 9216")
    A.e(f"v_lshlrev_b32 v{VY}, 12, v{T0}")
    A.e(f"v_and_b32 v{T1}, 3, v{LANE}")
    A.e(f"v_lshl_add_u32 v{VY}, v{T1}, 4, v{VY}")
    A.e("s_lshl_b32 s35, s41, 12")
    A.e("s_lshl_b32 s36, s40, 1")
    A.e("s_add_u32 s35, s35, s36")
    A.e("s_waitcnt lgkmcnt(0)")
    make_srd(A, 24, 10, 11, str(LY.YT_OFF), LY.YT_BYTES)
    for n in range(9):
        A.e(f"s_add_u32 s37, s35, {n*16*4096}")
        A.e(f"s_add_u32 m0, s30, {1024*n}")
        A.e("s_nop 0")
        A.e(f"buffer_load_dwordx4 v{VY}, s[24:27], s37 offen lds")
    make_srd(A, 20, 8, 9, "0", 2048*2304)
    A.e(f"v_and_b32 v{T0}, 15, v{LANE}")
    A.e(f"v_lshrrev_b32 v{T1}, 4, v{LANE}")
    A.e(f"v_mul_u32_u24 v{VA}, 2304, v{T0}")
    A.e(f"v_lshl_add_u32 v{VA}, v{T1}, 4, v{VA}")
    A.e(f"v_cmp_gt_u32 vcc, 2, v{T1}")
    A.e(f"v_mov_b32 v{T3}, 0x7ffffff0")
    A.e(f"v_lshrrev_b32 v{T2}, 2, v{LANE}")
    A.e(f"v_cndmask_b32 v{VAM}, v{T3}, v{VA}, vcc")
    A.e(f"v_and_b32 v{T2}, 3, v{T2}")
    A.e(f"v_lshl_add_u32 v{T2}, v{T1}, 3, v{T2}")
    A.e(f"v_lshlrev_b32 v{T2}, 6, v{T2}")
    A.e(f"v_and_b32 v{T3}, 3, v{LANE}")
    A.e(f"v_lshl_add_u32 v{T2}, v{T3}, 3, v{T2}")
    A.e(f"v_add_u32 v{T2}, s30, v{T2}")
    A.e("s_mul_i32 s35, s40, 2304")
    A.e("s_lshl_b32 s36, s41, 1")
    A.e("s_add_u32 s35, s35, s36")
    stamp(A, 1)
    its = [(og, th) for og in range(5) for th in range(2)]
    Y = 16
    for i, (og, th) in enumerate(its):
        if th == 0: A.e(f"s_waitcnt vmcnt({max(9 - (2*og+2), 0) + 2*og})")
        y = Y + 4*i
        A.e(f"ds_read_b64_tr_b16 {vr(y,2)}, v{T2} offset:{og*32*64 + th*32}")
        A.e(f"ds_read_b64_tr_b16 {vr(y+2,2)}, v{T2} offset:{og*32*64 + 4*64 + th*32}")
        A.e("s_waitcnt lgkmcnt(0)")
        A.e(f"s_add_u32 s37, s35, {th*16*2304 + og*64}")
        A.e(f"buffer_store_dwordx4 {vr(y,4)}, v{VAM if og == 4 else VA}, s[20:23], s37 offen")
    stamp(A, 3)
    stamp_dump(A, 10, 28, 4)
    RT["wave"]=28; rt_exit(A, 2, 4); A.e("s_endpgm")
    return 64
```

```python
import sys; sys.path.insert(0, "work")
from asmlib import *
import layout as LY
import numpy as np, math, struct
def f32bits(x): return struct.unpack("<I", struct.pack("<f", x))[0]
def rnd_bf16_int(l):
    u = struct.unpack("<I", struct.pack("<f", float(l)))[0]
    u = (u + 0x7FFF + ((u >> 16) & 1)) & 0xFFFF0000
    return int(struct.unpack("<f", struct.pack("<I", u))[0])
def rowcol(lp):
    if lp < 256: return lp % 8, lp // 8
    if lp < 512: return 8 + (lp % 8)//2, (lp-256)//8
    if lp < 1024: return 12 + 2*((lp-512)//256) + (lp % 8)//4, ((lp-512) % 256)//8
    return 16 + (lp-1024)//256, ((lp-1024) % 256)//8
TZERO = 24*64
NIT = 5
def idx_table():
    t = []
    for cp in range(2):
        for x in range(NIT*512):
            idx = LY.KRC + cp - x
            if x < LY.KRLEN and 0 <= idx <= 2047:
                r, c = rowcol(rnd_bf16_int(idx)); t.append((r*32 + c)*2)
            else: t.append(TZERO)
    return t
def emit_idx_table(A, tabname):
    t = idx_table()
    A.raw(".p2align 4")
    A.raw(f".type {tabname},@object")
    A.label(tabname)
    for i in range(0, len(t), 16):
        A.raw("  .short " + ", ".join(str(x) for x in t[i:i+16]))
    A.raw(f".size {tabname}, {len(t)*2}")

NSTR = 240; TBL = 64*NSTR
TOFF = 0
STG = 4*TBL
TT = STG + 8192
SSM_LDS = TT + 4096
SOPT = {}

def gen_ssm_role(A, name, first_wg, tabname):
    def maybe_exit(i):
        if SOPT.get('exit') == i: A.e('s_endpgm')
    LANE, T0, T1, T2, T3 = 0, 1, 2, 3, 4
    RAW = 8; DT = 14; UR = 16; IDX = 24
    G1, G2, G4, G8, H, W, CA, CB, EA, EB, TMP, TMP2 = 56, 58, 60, 62, 64, 66, 68, 70, 72, 74, 76, 78
    S0, S1, S2, S3 = 80, 81, 82, 83
    AWR, AA, AB = 84, 85, 86
    PX = 88; PE = 96
    FA, FB, FA2, FB2 = 104, 108, 112, 116
    ACC = 120
    A.e("s_load_dwordx8 s[4:11], s[0:1], 8")
    A.e("s_load_dwordx4 s[12:15], s[0:1], 40")
    A.e("s_load_dwordx2 s[16:17], s[0:1], 56")
    A.e("s_load_dwordx2 s[18:19], s[0:1], 112")
    A.e("s_load_dwordx2 s[64:65], s[0:1], 0")
    stamp(A, 0); stamp_rt0(A)
    A.e(f"v_lshrrev_b32 v{T0}, 6, v0")
    A.e(f"v_and_b32 v{LANE}, 63, v0")
    A.e(f"v_readfirstlane_b32 s28, v{T0}")
    A.e(f"s_sub_u32 s68, s2, {first_wg}")
    A.e("s_lshl_b32 s29, s68, 1")
    A.e("s_lshr_b32 s26, s28, 1")
    A.e("s_and_b32 s27, s28, 1")
    A.e("s_add_u32 s25, s29, s26")
    A.e("s_getpc_b64 s[20:21]")
    A.label(f"{name}_pc")
    A.e(f"s_add_u32 s20, s20, {tabname}-{name}_pc")
    A.e("s_addc_u32 s21, s21, 0")
    A.e(f"v_lshlrev_b32 v{T0}, 1, v{LANE}")
    A.e("s_lshl_b32 s31, s25, 8")
    A.e("s_lshl_b32 s22, s27, 7")
    A.e("s_add_u32 s31, s31, s22")
    A.e("s_mul_i32 s69, s68, 7282")
    A.e("s_lshr_b32 s69, s69, 16")
    A.e("s_mul_i32 s70, s69, 9")
    A.e("s_sub_u32 s70, s68, s70")
    A.e("s_waitcnt lgkmcnt(0)")
    for i, p in enumerate((4, 6, 8, 10, 12, 14)):
        A.e(f"s_mov_b32 s{32+4*i}, s{p}")
        A.e(f"s_mov_b32 s{33+4*i}, s{p+1}")
        A.e(f"s_mov_b32 s{34+4*i}, {576*256}")
        A.e(f"s_mov_b32 s{35+4*i}, 0x00020000")
        A.e(f"buffer_load_ushort v{RAW+i}, v{T0}, s[{32+4*i}:{35+4*i}], s31 offen")
    make_srd(A, 56, 16, 17, "0", 1152)
    A.e("s_lshl_b32 s22, s25, 1")
    A.e(f"v_mov_b32 v{T2}, s22")
    A.e(f"buffer_load_ushort v{DT}, v{T2}, s[56:59], 0 offen")
    make_srd(A, 60, 64, 65, "0", 2048*1152)
    A.e(f"v_lshrrev_b32 v{T1}, 3, v{LANE}")
    A.e(f"v_mul_u32_u24 v{T1}, 1152, v{T1}")
    A.e(f"v_and_b32 v{T2}, 7, v{LANE}")
    A.e(f"v_lshl_add_u32 v{T1}, v{T2}, 4, v{T1}")
    A.e("s_lshl_b32 s22, s69, 6")
    A.e("s_lshl_b32 s23, s28, 4")
    A.e("s_add_u32 s22, s22, s23")
    A.e("s_mul_i32 s22, s22, 1152")
    A.e("s_lshl_b32 s23, s70, 7")
    A.e("s_add_u32 s22, s22, s23")
    A.e("s_lshl_b32 s23, s28, 11")
    A.e(f"s_add_u32 s23, s23, {STG}")
    A.e("s_mov_b32 m0, s23")
    A.e("s_nop 0")
    A.e(f"buffer_load_dwordx4 v{T1}, s[60:63], s22 offen lds")
    A.e(f"s_add_u32 s22, s22, {8*1152}")
    A.e("s_add_u32 m0, s23, 1024")
    A.e("s_nop 0")
    A.e(f"buffer_load_dwordx4 v{T1}, s[60:63], s22 offen lds")
    A.e(f"s_mul_i32 s30, s28, {TBL}")
    A.e(f"v_mul_u32_u24 v{AWR}, {NSTR}, v{LANE}")
    A.e(f"v_add_u32 v{AWR}, s30, v{AWR}")
    A.e(f"v_lshrrev_b32 v{T1}, 5, v{LANE}")
    A.e(f"v_lshrrev_b32 v{T2}, 2, v{LANE}")
    A.e(f"v_and_b32 v{T2}, 3, v{T2}")
    A.e(f"v_lshrrev_b32 v{T3}, 1, v{T2}")
    A.e(f"v_lshl_add_u32 v{T3}, v{T1}, 2, v{T3}")
    A.e(f"v_mul_u32_u24 v{AA}, {NSTR}, v{T3}")
    A.e(f"v_add_u32 v{AA}, s30, v{AA}")
    A.e(f"v_lshrrev_b32 v{T3}, 4, v{LANE}")
    A.e(f"v_and_b32 v{T3}, 1, v{T3}")
    A.e(f"v_lshlrev_b32 v{T3}, 5, v{T3}")
    A.e(f"v_and_b32 v{T1}, 3, v{LANE}")
    A.e(f"v_lshl_add_u32 v{T3}, v{T1}, 3, v{T3}")
    A.e(f"v_add_u32 v{AA}, v{AA}, v{T3}")
    A.e(f"v_and_b32 v{T2}, 1, v{T2}")
    A.e(f"v_mul_u32_u24 v{T1}, 64, v{T2}")
    A.e(f"v_add3_u32 v{AB}, v{AA}, v{T1}, 0")
    A.e(f"v_add_u32 v{AB}, 96, v{AB}")
    A.e(f"v_mul_u32_u24 v{T1}, 48, v{T2}")
    A.e(f"v_add_u32 v{AA}, v{AA}, v{T1}")
    for r in range(16): A.e(f"v_mov_b32 v{ACC+r}, 0")
    stamp(A, 1)
    maybe_exit(1)
    A.e("s_waitcnt vmcnt(2)")
    stamp(A, 2)
    L_hi = float(np.float32(math.log2(math.e))); L_lo = math.log2(math.e) - L_hi
    A.e(f"v_lshlrev_b32 v{DT}, 16, v{DT}")
    A.e(f"s_mov_b32 s22, 0x{f32bits(L_hi):x}")
    A.e(f"s_mov_b32 s23, 0x{f32bits(L_lo):x}")
    A.e(f"v_mul_f32 v{S0}, s22, v{DT}")
    A.e(f"v_fma_f32 v{S1}, v{DT}, s22, -v{S0}")
    A.e(f"v_fma_f32 v{S1}, v{DT}, s23, v{S1}")
    A.e(f"v_exp_f32 v{S0}, v{S0}")
    A.e(f"v_mul_f32 v{S1}, 0x{f32bits(math.log(2.0)):x}, v{S1}")
    A.e(f"v_fma_f32 v{S0}, v{S0}, v{S1}, v{S0}")
    A.e(f"v_cvt_pk_bf16_f32 v{S0}, v{S0}, v{S0}")
    A.e(f"v_and_b32 v{DT}, 0xffff0000, v{S0}")
    for i in range(6): A.e(f"v_lshlrev_b32 v{RAW+i}, 16, v{RAW+i}")
    def cmul(D, X, G, TM=TMP):
        A.e(f"v_pk_mul_f32 {vr(TM,2)}, {vr(X,2)}, {vr(G,2)} op_sel_hi:[1,0]")
        A.e(f"v_pk_fma_f32 {vr(D,2)}, {vr(X,2)}, {vr(G,2)}, {vr(TM,2)} op_sel:[1,1,0] op_sel_hi:[0,1,1] neg_lo:[0,1,0]")
    A.e(f"v_mul_f32 v{S0}, v{DT}, v{RAW+0}")
    A.e(f"v_mul_f32 v{S1}, v{DT}, v{RAW+1}")
    A.e(f"v_mul_f32 v{S2}, 0x{f32bits(math.log2(math.e)):x}, v{S0}")
    A.e(f"v_mul_f32 v{S3}, 0x{f32bits(1.0/(2*math.pi)):x}, v{S1}")
    for (G, m) in ((G1, 1.0), (G8, 8.0), (H, 256.0)):
        A.e(f"v_mul_f32 v{S0}, 0x{f32bits(m):x}, v{S2}")
        A.e(f"v_mul_f32 v{S1}, 0x{f32bits(m):x}, v{S3}")
        A.e(f"v_exp_f32 v{S0}, v{S0}")
        A.e(f"v_fract_f32 v{S1}, v{S1}")
        A.e("s_nop 0")
        A.e(f"v_cos_f32 v{G}, v{S1}")
        A.e(f"v_sin_f32 v{G+1}, v{S1}")
        A.e("s_nop 0")
        A.e(f"v_mul_f32 v{G}, v{G}, v{S0}")
        A.e(f"v_mul_f32 v{G+1}, v{G+1}, v{S0}")
    A.e(f"v_mul_f32 v{CA}, v{DT}, v{RAW+2}")
    A.e(f"v_mul_f32 v{CA+1}, v{DT}, v{RAW+3}")
    cmul(W, CA, RAW+4)
    cmul(G2, G1, G1, TMP2)
    cmul(G4, G2, G2)
    A.e(f"v_lshlrev_b32 v{T1}, 4, v{LANE}")
    A.e(f"s_mul_i32 s22, s27, {NIT*1024}")
    A.e(f"v_add_u32 v{T1}, s22, v{T1}")
    for k in range(NIT):
        if k == 4: A.e(f"v_add_u32 v{T1}, 4096, v{T1}")
        A.e(f"global_load_dwordx4 {vr(IDX+4*k,4)}, v{T1}, s[20:21] offset:{1024*(k%4)}")
    def packX(p, a, b):
        A.e(f"v_cvt_pk_bf16_f32 v{PX+p}, v{a}, v{b}")
        A.e(f"v_cvt_pk_bf16_f32 v{PX+4+p}, -v{a+1}, -v{b+1}")
    def packE(p, a, b):
        A.e(f"v_cvt_pk_bf16_f32 v{PE+p}, v{a}, v{b}")
        A.e(f"v_cvt_pk_bf16_f32 v{PE+4+p}, v{a+1}, v{b+1}")
    def flushX(g):
        A.e(f"ds_write_b128 v{AWR}, {vr(PX,4)} offset:{16*g}")
        A.e(f"ds_write_b128 v{AWR}, {vr(PX+4,4)} offset:{48+16*g}")
    def flushE(g):
        A.e(f"ds_write_b128 v{AWR}, {vr(PE,4)} offset:{96+16*g}")
        A.e(f"ds_write_b128 v{AWR}, {vr(PE+4,4)} offset:{160+16*g}")
    xs = []
    xs.append(lambda: (cmul(CB, W, G1), packX(0, W, CB)))
    xs.append(lambda: (cmul(CA, CB, G1), cmul(CB, CA, G1), packX(1, CA, CB)))
    xs.append(lambda: (cmul(CA, CB, G1), cmul(CB, CA, G1), packX(2, CA, CB)))
    xs.append(lambda: (cmul(CA, CB, G1), cmul(CB, CA, G1), packX(3, CA, CB), flushX(0)))
    xs.append(lambda: (cmul(W, W, H), cmul(CB, W, G2), packX(0, W, CB)))
    xs.append(lambda: (cmul(CA, CB, G2), cmul(CB, CA, G2), packX(1, CA, CB)))
    xs.append(lambda: (cmul(W, W, H), cmul(CB, W, G4), packX(2, W, CB)))
    xs.append(lambda: (cmul(W, W, H), cmul(CB, W, G4), packX(3, W, CB), flushX(1)))
    xs.append(lambda: (cmul(CA, W, H), cmul(CB, CA, H), packX(0, CA, CB)))
    xs.append(lambda: (cmul(CA, CB, H), cmul(CB, CA, H), packX(1, CA, CB)))
    xs.append(lambda: (cmul(CA, CB, H), packX(2, CA, CA), packX(3, CA, CA), flushX(2)))
    es = []
    def e01():
        A.e(f"v_mov_b32 v{EA}, 1.0"); A.e(f"v_mov_b32 v{EA+1}, 0")
        packE(0, EA, G8)
        cmul(EA, G8, G8, TMP2); cmul(EB, EA, G8, TMP2); packE(1, EA, EB)
    es.append(e01)
    for p in range(2, 16):
        def f(p=p):
            cmul(EA, EB, G8, TMP2); cmul(EB, EA, G8, TMP2); packE(p % 4, EA, EB)
            if p % 4 == 3: flushE(p//4)
        es.append(f)
    for i in range(15):
        es[i]()
        if i < len(xs): xs[i]()
    A.e("s_waitcnt lgkmcnt(0)")
    stamp(A, 3)
    maybe_exit(3)
    def frd(fa, fb, s):
        for q in range(2):
            A.e(f"ds_read_b64_tr_b16 {vr(fa+2*q,2)}, v{AA} offset:{(8*s+2*q)*NSTR}")
            A.e(f"ds_read_b64_tr_b16 {vr(fb+2*q,2)}, v{AB} offset:{(8*s+2*q)*NSTR}")
    frd(FA, FB, 0)
    for s in range(8):
        fa, fb = (FA, FB) if s % 2 == 0 else (FA2, FB2)
        na, nb = (FA2, FB2) if s % 2 == 0 else (FA, FB)
        if s < 7:
            frd(na, nb, s+1); A.e("s_waitcnt lgkmcnt(4)")
        else: A.e("s_waitcnt lgkmcnt(0)")
        A.e(f"v_mfma_f32_32x32x16_bf16 {vr(ACC,16)}, {vr(fa,4)}, {vr(fb,4)}, {vr(ACC,16)}")
    A.e(f"v_lshlrev_b32 v{T1}, 4, v{LANE}")
    A.e(f"s_mul_i32 s22, s26, {2*TBL}")
    A.e(f"s_add_u32 s22, s22, {TBL}")
    A.e(f"v_add_u32 v{T1}, s22, v{T1}")
    A.e("s_waitcnt vmcnt(5)")
    A.e("s_nop 7")
    A.e("s_cmp_eq_u32 s27, 0")
    A.e(f"s_cbranch_scc1 {name}_c0")
    for g in range(3): A.e(f"ds_write_b128 v{T1}, {vr(ACC+4*g,4)} offset:{1024*g}")
    A.e("s_waitcnt lgkmcnt(0)")
    A.e("s_barrier")
    A.e(f"s_branch {name}_c1")
    A.label(f"{name}_c0")
    A.e("s_barrier")
    for g in range(3): A.e(f"ds_read_b128 {vr(FA+4*g,4)}, v{T1} offset:{1024*g}")
    A.e(f"v_and_b32 v{T2}, 31, v{LANE}")
    A.e(f"v_lshrrev_b32 v{T3}, 5, v{LANE}")
    A.e(f"v_lshlrev_b32 v{T2}, 1, v{T2}")
    A.e(f"v_lshl_add_u32 v{T2}, v{T3}, 8, v{T2}")
    A.e("s_lshl_b32 s22, s26, 11")
    A.e(f"s_add_u32 s22, s22, {TT}")
    A.e(f"v_add_u32 v{T2}, s22, v{T2}")
    A.e(f"v_mov_b32 v{T3}, s22")
    A.e(f"v_mov_b32 v{S0}, 0")
    A.e(f"ds_write_b32 v{T3}, v{S0} offset:{TZERO}")
    A.e("s_waitcnt lgkmcnt(1)")
    for g in range(3):
        for r in range(4): A.e(f"v_add_f32 v{ACC+4*g+r}, v{ACC+4*g+r}, v{FA+4*g+r}")
        A.e(f"v_cvt_pk_bf16_f32 v{S0}, v{ACC+4*g}, v{ACC+4*g+1}")
        A.e(f"v_cvt_pk_bf16_f32 v{S1}, v{ACC+4*g+2}, v{ACC+4*g+3}")
        A.e(f"ds_write_b16 v{T2}, v{S0} offset:{(8*g+0)*64}")
        A.e(f"ds_write_b16_d16_hi v{T2}, v{S0} offset:{(8*g+1)*64}")
        A.e(f"ds_write_b16 v{T2}, v{S1} offset:{(8*g+2)*64}")
        A.e(f"ds_write_b16_d16_hi v{T2}, v{S1} offset:{(8*g+3)*64}")
    A.label(f"{name}_c1")
    A.e(f"v_lshrrev_b32 v{T1}, 4, v{LANE}")
    A.e(f"v_lshrrev_b32 v{T2}, 2, v{LANE}")
    A.e(f"v_and_b32 v{T2}, 3, v{T2}")
    A.e(f"v_lshl_add_u32 v{T2}, v{T1}, 3, v{T2}")
    A.e(f"v_lshlrev_b32 v{T2}, 7, v{T2}")
    A.e(f"v_and_b32 v{T3}, 3, v{LANE}")
    A.e(f"v_lshl_add_u32 v{T2}, v{T3}, 3, v{T2}")
    A.e("s_lshl_b32 s22, s28, 5")
    A.e(f"s_add_u32 s22, s22, {STG}")
    A.e(f"v_add_u32 v{T2}, s22, v{T2}")
    for hf in range(2):
        A.e(f"ds_read_b64_tr_b16 {vr(UR+4*hf,2)}, v{T2} offset:{hf*32*128}")
        A.e(f"ds_read_b64_tr_b16 {vr(UR+4*hf+2,2)}, v{T2} offset:{hf*32*128+4*128}")
    A.e(f"v_and_b32 v{T3}, 15, v{LANE}")
    A.e(f"v_mul_u32_u24 v{T3}, {LY.UT_ROW}, v{T3}")
    A.e(f"v_lshl_add_u32 v{T3}, v{T1}, 4, v{T3}")
    make_srd(A, 72, 18, 19, str(LY.UT_OFF), LY.UT_BYTES)
    A.e("s_lshl_b32 s22, s70, 6")
    A.e("s_lshl_b32 s23, s28, 4")
    A.e("s_add_u32 s22, s22, s23")
    A.e(f"s_mul_i32 s22, s22, {LY.UT_ROW}")
    A.e("s_lshl_b32 s23, s69, 7")
    A.e("s_add_u32 s23, s23, s22")
    A.e("s_add_u32 s23, s23, 512")
    A.e("s_waitcnt lgkmcnt(0)")
    A.e(f"buffer_store_dwordx4 {vr(UR,4)}, v{T3}, s[72:75], s23 offen")
    A.e(f"buffer_store_dwordx4 {vr(UR+4,4)}, v{T3}, s[72:75], s23 offen offset:64")
    A.e("s_cmp_ge_u32 s69, 4")
    A.e(f"s_cbranch_scc1 {name}_nz")
    A.e(f"v_lshrrev_b32 v{T1}, 3, v{LANE}")
    A.e(f"v_mul_u32_u24 v{T1}, {LY.UT_ROW}, v{T1}")
    A.e(f"v_and_b32 v{T2}, 7, v{LANE}")
    A.e(f"v_lshl_add_u32 v{T1}, v{T2}, 4, v{T1}")
    A.e("s_lshl_b32 s23, s69, 7")
    A.e("s_add_u32 s22, s22, s23")
    for r in range(4): A.e(f"v_mov_b32 v{S0+r}, 0")
    A.e(f"buffer_store_dwordx4 {vr(S0,4)}, v{T1}, s[72:75], s22 offen")
    A.e(f"s_add_u32 s22, s22, {8*LY.UT_ROW}")
    A.e(f"buffer_store_dwordx4 {vr(S0,4)}, v{T1}, s[72:75], s22 offen")
    A.label(f"{name}_nz")
    A.e("s_waitcnt lgkmcnt(0)")
    A.e("s_barrier")
    stamp(A, 4)
    maybe_exit(4)
    A.e("s_lshl_b32 s22, s26, 11")
    A.e(f"s_add_u32 s22, s22, {TT}")
    A.e(f"v_mov_b32 v{T3}, s22")
    A.e(f"s_mul_i32 s31, s25, {LY.KR_ROW}")
    A.e(f"s_mul_i32 s22, s27, {LY.KRLEN*2}")
    A.e("s_add_u32 s31, s31, s22")
    A.e(f"s_add_u32 s31, s31, {LY.KR_OFF}")
    make_srd(A, 56, 18, 19, "s31", LY.KRLEN*2)
    A.e(f"v_lshlrev_b32 v{T1}, 4, v{LANE}")
    ADS = [56, 64]; OUTS = [72, 76]
    def gath(k):
        ad = ADS[k % 2]
        for e in range(8):
            A.e(f"v_add_u32_sdwa v{ad+e}, v{T3}, v{IDX+4*k+e//2} dst_sel:DWORD dst_unused:UNUSED_PAD src0_sel:DWORD src1_sel:WORD_{e%2}")
        for e in range(8): A.e(f"ds_read_u16 v{ad+e}, v{ad+e}")
    A.e("s_waitcnt vmcnt(2)")
    gath(0)
    for k in range(NIT):
        ad = ADS[k % 2]; o = OUTS[k % 2]
        if k < NIT-1:
            gath(k+1); A.e("s_waitcnt lgkmcnt(8)")
        else: A.e("s_waitcnt lgkmcnt(0)")
        for i in range(4): A.e(f"v_lshl_or_b32 v{o+i}, v{ad+2*i+1}, 16, v{ad+2*i}")
        if k < 4: A.e(f"buffer_store_dwordx4 {vr(o,4)}, v{T1}, s[56:59], 0 offen offset:{1024*k}")
        else:
            A.e("s_movk_i32 s22, 4096")
            A.e(f"buffer_store_dwordx4 {vr(o,4)}, v{T1}, s[56:59], s22 offen")
    stamp(A, 5)
    stamp_dump(A, 18, 28, 4)
    RT["wave"]=28; rt_exit(A, 0, 4); A.e("s_endpgm")
    return 136
```

```python
import sys; sys.path.insert(0, "work")
from asmlib import *
import layout as LY

def gen_attn(A, name, stamps=False, opt=None, helper_tail=None):
    opt = opt or {}
    def stamp(i):
        if stamps: A.e(f"s_memtime s[{60+2*i}:{61+2*i}]")
    SA, SB, OA, OB = 0, 16, 32, 48
    P0, P1 = 64, 68
    Q1A, Q2A, Q1B, Q2B = 72, 76, 80, 84
    K1 = [88, 96]; K2 = [92, 100]
    V0 = [104, 112]; V1 = [108, 116]
    AK1, AK2, AV = 120, 121, 122
    T0, T1, T2, T3, LANE = 123, 124, 125, 126, 127
    NV = 128
    TILE = LY.KVTILE; VOFF = 1152; VSZ = LY.VSZ
    def mf(D, Aop, Bop, C):
        c = "0" if C is None else vr(C, 16)
        return f"v_mfma_f32_32x32x16_bf16 {vr(D,16)}, {vr(Aop,4)}, {vr(Bop,4)}, {c}"
    kernel_begin(A, name)
    A.e("s_cmp_ge_u32 s2, 256")
    A.e(f"s_cbranch_scc1 {name}_end")
    A.e("s_load_dwordx2 s[4:5], s[0:1], 112")
    rt_entry(A)
    stamp(0)
    if stamps: A.e("s_memrealtime s[76:77]")
    A.e("s_and_b32 s6, s2, 7")
    A.e("s_lshl_b32 s6, s6, 2")
    A.e("s_lshr_b32 s7, s2, 3")
    A.e("s_and_b32 s8, s7, 3")
    A.e("s_add_u32 s6, s6, s8")
    A.e("s_lshr_b32 s7, s2, 5")
    A.e(f"v_and_b32 v{LANE}, 63, v0")
    A.e(f"v_lshrrev_b32 v{T0}, 6, v0")
    A.e(f"v_and_b32 v{T1}, 31, v{LANE}")
    A.e(f"v_readfirstlane_b32 s9, v{T0}")
    A.e(f"v_lshlrev_b32 v{T0}, 4, v{LANE}")
    A.e(f"v_lshlrev_b32 v{T2}, 2, v{T1}")
    A.e("s_cmp_ge_u32 s9, 4")
    A.e(f"s_cbranch_scc1 {name}_helper")
    A.e(f"s_mul_i32 s13, s6, {64*1152}")
    A.e("s_lshl_b32 s14, s7, 3")
    A.e("s_lshl_b32 s15, s9, 1")
    A.e("s_add_u32 s14, s14, s15")
    A.e("s_mul_i32 s15, s14, 1152")
    A.e("s_add_u32 s13, s13, s15")
    A.e(f"s_add_u32 s13, s13, {LY.Q_OFF}")
    A.e("s_mov_b32 s36, 9")
    A.e("s_waitcnt lgkmcnt(0)")
    make_srd(A, 20, 4, 5, "s13", 2*1152)
    A.e(f"buffer_load_dwordx4 {vr(Q1A,4)}, v{T0}, s[20:23], 0 offen")
    A.e(f"buffer_load_dwordx4 {vr(Q1B,4)}, v{T0}, s[20:23], 0 offen offset:1152")
    A.e(f"buffer_load_dword v{Q2A}, v{T2}, s[20:23], 0 offen offset:1024")
    A.e(f"buffer_load_dword v{Q2B}, v{T2}, s[20:23], 0 offen offset:{1152+1024}")
    make_srd(A, 24, 4, 5, str(LY.O_OFF), LY.O_BYTES)
    A.e(f"v_lshrrev_b32 v{T3}, 5, v{LANE}")
    A.e(f"v_cmp_gt_u32 s[34:35], 32, v{LANE}")
    ones = 0x3F803F80
    for b in range(2):
        A.e(f"v_mov_b32 v{K2[b]+1}, 0x{ones:x}")
        A.e(f"v_mov_b32 v{K2[b]+2}, 0")
        A.e(f"v_mov_b32 v{K2[b]+3}, 0")
    for qq in (Q2A, Q2B):
        for r in (1, 2, 3): A.e(f"v_mov_b32 v{qq+r}, 0")
    A.label(f"{name}_rerun")
    A.e(f"v_and_b32 v{T1}, 31, v{LANE}")
    A.e(f"v_lshlrev_b32 v{AK1}, 4, v{LANE}")
    A.e(f"v_lshlrev_b32 v{AK2}, 2, v{T1}")
    A.e(f"v_lshrrev_b32 v{T3}, 5, v{LANE}")
    A.e(f"v_mul_u32_u24 v{AV}, 18, v{T3}")
    A.e(f"v_add_u32 v{AV}, v{AV}, v{T1}")
    A.e(f"v_cmp_gt_u32 vcc, 18, v{T1}")
    for r in range(4): A.e(f"v_mov_b32 v{V1[1]+r}, 0")
    A.e(f"v_min_u32 v{T1}, 19, v{T1}")
    A.e(f"v_add_u32 v{T1}, 18, v{T1}")
    A.e(f"v_cndmask_b32 v{AV}, v{T1}, v{AV}, vcc")
    A.e(f"v_lshlrev_b32 v{AV}, 4, v{AV}")
    for r in range(16):
        A.e(f"v_mov_b32 v{OA+r}, 0"); A.e(f"v_mov_b32 v{OB+r}, 0")
    for r in range(4): A.e(f"v_mov_b32 v{P1+r}, 0")
    A.e("s_cmp_eq_u32 s36, 0")
    A.e(f"s_cbranch_scc1 {name}_pipe_start")
    A.e("s_waitcnt vmcnt(0)")
    A.e("s_barrier")
    stamp(2)
    A.e(f"ds_read_b128 {vr(K1[0],4)}, v{AK1}")
    A.e(f"ds_read_b32 v{K2[0]}, v{AK2} offset:1024")
    A.e(f"v_cndmask_b32 v{Q2A}, 0, v{Q2A}, s[34:35]")
    A.e(f"v_cndmask_b32 v{Q2B}, 0, v{Q2B}, s[34:35]")
    A.e("s_waitcnt lgkmcnt(0)")
    A.e(mf(SA, K1[0], Q1A, None))
    A.e(mf(SB, K1[0], Q1B, None))
    A.e(mf(SA, K2[0], Q2A, SA))
    A.e(mf(SB, K2[0], Q2B, SB))
    A.e("s_nop 9")
    def setM(S, Q2, have_max=False):
        if not have_max:
            A.e(f"v_max3_f32 v{T0}, v{S}, v{S+1}, v{S+2}")
            for r in range(3, 15, 2):
                A.e(f"v_max3_f32 v{T0}, v{T0}, v{S+r}, v{S+r+1}")
            A.e(f"v_max_f32 v{T0}, v{T0}, v{S+15}")
        else:
            A.e(f"v_mov_b32 v{T0}, v{S}")
        A.e(f"v_cvt_pk_bf16_f32 v{T1}, v{T0}, v{T0}")
        A.e(f"v_and_b32 v{T1}, 0xffff0000, v{T1}")
        A.e(f"v_sub_f32 v{T2}, v{T0}, v{T1}")
        A.e(f"v_cvt_pk_bf16_f32 v{T1}, -v{T1}, -v{T2}")
        A.e(f"v_cndmask_b32 v{Q2+1}, 0, v{T1}, s[34:35]")
    setM(SA, Q2A); setM(SB, Q2B)
    A.label(f"{name}_pipe_start")
    A.e(f"ds_read_b128 {vr(K1[0],4)}, v{AK1}")
    A.e(f"ds_read_b32 v{K2[0]}, v{AK2} offset:1024")
    A.e(f"ds_read_b128 {vr(K1[1],4)}, v{AK1} offset:{TILE}")
    A.e(f"ds_read_b32 v{K2[1]}, v{AK2} offset:{TILE+1024}")
    A.e(f"ds_read_b128 {vr(V0[0],4)}, v{AV} offset:{VOFF}")
    A.e(f"ds_read_b128 {vr(V1[0],4)}, v{AV} offset:{VOFF+VSZ}")
    for r in range(16): A.e(f"v_mov_b32 v{SB+r}, 0")
    A.e("s_waitcnt lgkmcnt(4)")
    A.e(mf(SA, K1[0], Q1A, None))
    A.e(mf(SA, K2[0], Q2A, SA))
    A.e("s_mov_b32 s31, 0")
    A.e("s_nop 7")
    stamp(3)
    UN = opt.get("unroll", 8)
    A.raw(".p2align 3")
    A.label(f"{name}_loop")
    for tt in range(UN):
        if tt % 4 == 0:
            if tt == 4: A.e("s_add_u32 s31, s31, 1")
            A.e("s_bitcmp1_b32 s36, s31")
            A.e(f"s_cbranch_scc1 {name}_dobar{tt}")
            A.label(f"{name}_body{tt}")
        b = tt % 2; nb = 1 - b
        off = tt*TILE
        def E(S, r): return f"v_exp_f32 v{S+r}, v{S+r}"
        def C(P, S, r): return f"v_cvt_pk_bf16_f32 v{P}, v{S+r}, v{S+r+1}"
        lds = not opt.get("nolds")
        slots = [
            ([C(P1+2, SB, 12), C(P1+3, SB, 14)], (SA, 0),  mf(SB, K1[b], Q1B, None), None),
            ([C(P0+0, SA, 0),  C(P0+1, SA, 2)],  (SA, 4),  mf(SB, K2[b], Q2B, SB), None),
            ([C(P0+2, SA, 4),  C(P0+3, SA, 6)],  (SA, 8),  mf(OB, V1[nb], P1, OB),
                 f"ds_read_b128 {vr(K1[b],4)}, v{AK1} offset:{off+2*TILE}"),
            ([C(P1+0, SA, 8),  C(P1+1, SA, 10)], (SA, 12), mf(OA, V0[b], P0, OA),
                 f"ds_read_b32 v{K2[b]}, v{AK2} offset:{off+2*TILE+1024}"),
            ([C(P1+2, SA, 12), C(P1+3, SA, 14)], (SB, 0),  mf(SA, K1[nb], Q1A, None),
                 f"ds_read_b128 {vr(V0[nb],4)}, v{AV} offset:{off+TILE+VOFF}"),
            ([C(P0+0, SB, 0),  C(P0+1, SB, 2)],  (SB, 4),  mf(SA, K2[nb], Q2A, SA),
                 f"ds_read_b128 {vr(V1[nb],4)}, v{AV} offset:{off+TILE+VOFF+VSZ}"),
            ([C(P0+2, SB, 4),  C(P0+3, SB, 6)],  (SB, 8),  mf(OA, V1[b], P1, OA), None),
            ([C(P1+0, SB, 8),  C(P1+1, SB, 10)], (SB, 12), mf(OB, V0[b], P0, OB), None),
        ]
        for si, (cv, (S, r0), m, ex) in enumerate(slots):
            A.e(cv[0]); A.e(cv[1])
            if si == 2 and lds:
                A.e(E(S, r0)); A.e("s_waitcnt lgkmcnt(0)"); A.e(E(S, r0+1).replace("v_exp_f32", "v_exp_f32_e64"))
            else:
                A.e(E(S, r0)); A.e(E(S, r0+1))
            A.e(m)
            if ex and lds: A.e(ex)
            A.e(E(S, r0+2))
            A.e(E(S, r0+3))
    A.e(f"v_add_u32 v{AK1}, {UN*TILE}, v{AK1}")
    A.e(f"v_add_u32 v{AK2}, {UN*TILE}, v{AK2}")
    A.e(f"v_add_u32 v{AV}, {UN*TILE}, v{AV}")
    A.e("s_add_u32 s31, s31, 1")
    A.e("s_cmp_lt_u32 s31, 16")
    A.e(f"s_cbranch_scc1 {name}_loop")
    stamp(4)
    A.e(f"v_cvt_pk_bf16_f32 v{P1+2}, v{SB+12}, v{SB+13}")
    A.e(f"v_cvt_pk_bf16_f32 v{P1+3}, v{SB+14}, v{SB+15}")
    A.e("s_mov_b32 s40, 0x53800000")
    A.e(f"v_mov_b32 v{OA+11}, v{OA+10}")
    A.e(mf(OB, V1[1], P1, OB))
    A.e("s_nop 0")
    A.e(f"v_permlane32_swap_b32 v{OA+10}, v{OA+11}")
    A.e("s_nop 1")
    A.e(f"v_rcp_f32 v{T2}, v{OA+10}")
    A.e(f"v_cmp_ge_f32 vcc, s40, v{OA+10}")
    for r in range(10): A.e(f"v_mul_f32 v{SA+r}, v{OA+r}, v{T2}")
    for i in range(5): A.e(f"v_cvt_pk_bf16_f32 v{SA+i}, v{SA+2*i}, v{SA+2*i+1}")
    A.e("s_lshl_b32 s41, s6, 6")
    A.e("s_add_u32 s41, s41, s14")
    A.e("s_lshl_b32 s42, s41, 10")
    A.e("s_lshl_b32 s43, s41, 7")
    A.e(f"s_add_u32 s43, s43, {LY.O1_BYTES}")
    A.e(f"v_lshlrev_b32 v{T0}, 4, v{LANE}")
    A.e(f"v_lshlrev_b32 v{T1}, 2, v{LANE}")
    A.e(f"v_mov_b32 v{OB+11}, v{OB+10}")
    A.e("s_nop 1")
    A.e(f"v_permlane32_swap_b32 v{OB+10}, v{OB+11}")
    A.e("s_nop 1")
    A.e(f"v_cmp_ge_f32 s[44:45], s40, v{OB+10}")
    A.e(f"v_rcp_f32 v{T2}, v{OB+10}")
    A.e("s_nop 1")
    A.e("s_and_b64 vcc, vcc, s[44:45]")
    A.e("s_cmp_eq_u32 s36, 0")
    A.e(f"s_cbranch_scc1 {name}_fin")
    A.e("s_cmp_eq_u64 vcc, -1")
    A.e(f"s_cbranch_scc0 {name}_fallback")
    A.label(f"{name}_fin")
    A.e(f"buffer_store_dwordx4 {vr(SA,4)}, v{T0}, s[24:27], s42 offen")
    for r in range(10): A.e(f"v_mul_f32 v{SB+r}, v{OB+r}, v{T2}")
    for i in range(5): A.e(f"v_cvt_pk_bf16_f32 v{SB+i}, v{SB+2*i}, v{SB+2*i+1}")
    A.e(f"buffer_store_dwordx4 {vr(SB,4)}, v{T0}, s[24:27], s42 offen offset:1024")
    A.e("s_mov_b64 exec, s[34:35]")
    A.e(f"buffer_store_dword v{SA+4}, v{T1}, s[24:27], s43 offen")
    A.e(f"buffer_store_dword v{SB+4}, v{T1}, s[24:27], s43 offen offset:128")
    def dump():
        stamp(6)
        A.e("s_mov_b64 exec, -1")
        A.e("s_waitcnt lgkmcnt(0) vmcnt(0)")
        stamp(7)
        A.e("s_memrealtime s[78:79]")
        A.e("s_waitcnt lgkmcnt(0)")
        A.e("s_sub_u32 s72, s78, s76")
        A.e("s_mov_b32 s73, 0")
        A.e("s_add_u32 s72, s72, s60")
        A.e("s_addc_u32 s73, s61, 0")
        make_srd(A, 44, 4, 5, str(64<<20), 1<<20)
        A.e("s_lshl_b32 s48, s2, 3")
        A.e("s_add_u32 s48, s48, s9")
        A.e("s_lshl_b32 s48, s48, 6")
        for i in range(16): A.e(f"v_mov_b32 v{i}, s{60+i}")
        A.e("v_mov_b32 v16, s48")
        A.e("s_mov_b64 exec, 1")
        for i in range(4):
            A.e(f"buffer_store_dwordx4 v[{4*i}:{4*i+3}], v16, s[44:47], 0 offen offset:{16*i}")
    if stamps: dump()
    RT["wave"]=9; rt_exit(A, 1, 8)
    A.label(f"{name}_end")
    A.e("s_endpgm")
    for tt in range(0, UN, 4):
        A.label(f"{name}_dobar{tt}")
        A.e("s_barrier")
        A.e(f"s_branch {name}_body{tt}")
    A.label(f"{name}_fallback")
    MA, MB = P0, P0+1
    A.e(f"v_mov_b32 v{MA}, 0xff7fffff")
    A.e(f"v_mov_b32 v{MB}, 0xff7fffff")
    for qq in (Q2A, Q2B): A.e(f"v_mov_b32 v{qq+1}, 0")
    A.e(f"v_and_b32 v{T1}, 31, v{LANE}")
    A.e(f"v_lshlrev_b32 v{T0}, 4, v{LANE}")
    A.e(f"v_lshlrev_b32 v{T2}, 2, v{T1}")
    A.e("s_mov_b32 s31, 0")
    A.label(f"{name}_mloop")
    A.e(f"ds_read_b128 {vr(K1[1],4)}, v{T0}")
    A.e(f"ds_read_b32 v{K2[1]}, v{T2} offset:1024")
    A.e("s_waitcnt lgkmcnt(0)")
    A.e(mf(SA, K1[1], Q1A, None))
    A.e(mf(SB, K1[1], Q1B, None))
    A.e(mf(SA, K2[1], Q2A, SA))
    A.e(mf(SB, K2[1], Q2B, SB))
    A.e("s_nop 15")
    for S, M in ((SA, MA), (SB, MB)):
        for r in range(0, 16, 2):
            A.e(f"v_max3_f32 v{M}, v{M}, v{S+r}, v{S+r+1}")
    A.e(f"v_add_u32 v{T0}, {TILE}, v{T0}")
    A.e(f"v_add_u32 v{T2}, {TILE}, v{T2}")
    A.e("s_add_u32 s31, s31, 1")
    A.e("s_cmp_lt_u32 s31, 64")
    A.e(f"s_cbranch_scc1 {name}_mloop")
    for M, S in ((MA, SA), (MB, SB)):
        A.e(f"v_mov_b32 v{T1}, v{M}")
        A.e("s_nop 1")
        A.e(f"v_permlane32_swap_b32 v{M}, v{T1}")
        A.e("s_nop 1")
        A.e(f"v_max_f32 v{S}, v{M}, v{T1}")
    setM(SA, Q2A, True); setM(SB, Q2B, True)
    A.e("s_mov_b32 s36, 0")
    A.e(f"s_branch {name}_rerun")
    A.label(f"{name}_helper")
    A.e(f"s_mul_i32 s12, s6, {64*TILE}")
    A.e(f"s_add_u32 s12, s12, {LY.KV_OFF}")
    A.e("s_sub_u32 s10, s9, 4")
    A.e("s_lshl_b32 s28, s10, 10")
    A.e("s_waitcnt lgkmcnt(0)")
    make_srd(A, 16, 4, 5, "s12", 64*TILE)
    def dma(s):
        A.e(f"s_add_u32 s29, s28, {4096*s}")
        A.e("s_mov_b32 m0, s29")
        A.e("s_nop 0")
        A.e(f"buffer_load_dwordx4 v{T0}, s[16:19], s29 offen lds")
    for s in range(12): dma(s)
    A.e("s_waitcnt vmcnt(10)")
    A.e("s_barrier")
    for s in range(12, 20): dma(s)
    A.e("s_waitcnt vmcnt(12)")
    A.e("s_barrier")
    for s in range(20, 37): dma(s)
    A.e("s_waitcnt vmcnt(0)")
    A.e("s_barrier")
    stamp(3)
    if helper_tail: helper_tail(A, name)
    if stamps:
        stamp(2); stamp(4); stamp(5); stamp(1)
        dump()
    RT["wave"]=9; rt_exit(A, 1, 8)
    A.e("s_endpgm")
    kernel_end(A, name, NV)
```

```python
import sys; sys.path.insert(0, "work")
from asmlib import *
import layout as LY
COPT = {}
def conv_tail(A, name, prio=None):
    LANE = 127
    ACC = 0
    BFS = [32, 64]
    AFS = [96, 100, 104, 108]
    VA, VB, T0, T1, T2 = 112, 113, 114, 115, 116
    A.e("s_lshl_b32 s40, s10, 8")
    A.e("s_add_u32 s40, s40, s2")
    A.e("s_cmp_ge_u32 s40, 576")
    A.e(f"s_cbranch_scc1 {name}_cpf")
    if prio is not None: A.e(f"s_setprio {prio}")
    A.e("s_load_dwordx2 s[60:61], s[0:1], 64")
    A.e(f"s_mul_i32 s41, s40, {LY.KR_ROW}")
    A.e(f"s_add_u32 s41, s41, {LY.KR_OFF}")
    make_srd(A, 44, 4, 5, "s41", LY.KR_ROW)
    A.e(f"s_mul_i32 s41, s40, {LY.UT_ROW}")
    A.e(f"s_add_u32 s41, s41, {LY.UT_OFF}")
    make_srd(A, 48, 4, 5, "s41", LY.UT_ROW)
    A.e("s_lshl_b32 s41, s40, 12")
    A.e(f"s_add_u32 s41, s41, {LY.YT_OFF}")
    make_srd(A, 52, 4, 5, "s41", 4096)
    A.e(f"v_and_b32 v{T0}, 15, v{LANE}")
    A.e(f"v_lshrrev_b32 v{T1}, 4, v{LANE}")
    A.e(f"v_lshlrev_b32 v{VB}, 5, v{T0}")
    A.e(f"v_lshl_add_u32 v{VB}, v{T1}, 4, v{VB}")
    A.e(f"v_add_u32 v{VB}, 32, v{VB}")
    A.e(f"v_lshlrev_b32 v{T2}, 3, v{T1}")
    A.e(f"v_sub_u32 v{T2}, v{T2}, v{T0}")
    A.e(f"v_add_u32 v{T2}, 16, v{T2}")
    A.e(f"v_lshlrev_b32 v{VA}, 1, v{T2}")
    for r in range(32): A.e(f"v_mov_b32 v{r}, 0")
    issued = []
    def bload(set_, rho_off, k):
        return f"buffer_load_dwordx4 {vr(BFS[set_]+4*k,4)}, v{VB}, s[48:51], s{58+rho_off} offen offset:{512*k}"
    def aload(buf, rho_off, mu):
        return [f"s_sub_u32 s62, s{64+rho_off}, {512*mu}", f"buffer_load_dwordx4 {vr(AFS[buf],4)}, v{VA}, s[44:47], s62 offen"]
    BS = {0: 58, 1: 59, 2: 67}; AS = {0: 64, 1: 65, 2: 66}
    def bload(set_, ro, k): return f"buffer_load_dwordx4 {vr(BFS[set_]+4*k,4)}, v{VB}, s[48:51], s{BS[ro]} offen offset:{512*k}"
    def aload(buf, ro, mu): return [f"s_sub_u32 s62, s{AS[ro]}, {512*mu}", f"buffer_load_dwordx4 {vr(AFS[buf],4)}, v{VA}, s[44:47], s62 offen"]
    def setrho():
        A.e("s_sub_u32 s58, 448, s56"); A.e("s_sub_u32 s59, 384, s56"); A.e("s_sub_i32 s67, 320, s56"); A.e("s_max_i32 s67, s67, 0")
        A.e("s_sub_u32 s64, 4032, s56"); A.e("s_sub_u32 s65, 3968, s56"); A.e("s_sub_u32 s66, 3904, s56")
    A.e("s_mov_b32 s56, 0")
    setrho()
    for k in range(8): A.e(bload(0, 0, k))
    for mu in range(3):
        for l in aload(mu, 0, mu): A.e(l)
    A.e("s_mov_b32 s63, 0")
    A.label(f"{name}_cl")
    q = [("B", 0)]*8 + [("A", 0), ("A", 1), ("A", 2)]
    for x in range(2):
        for mu in range(8):
            si = 8*x + mu
            last = max(i for i, t in enumerate(q) if t == ("A", si) or t == ("B", x))
            A.e(f"s_waitcnt vmcnt({len(q) - 1 - last})")
            q = q[last+1:]
            pend = []
            nsi = si + 3
            if nsi < 16: pend.append((aload(nsi % 4, nsi // 8, nsi % 8), ("A", nsi)))
            else: pend.append((aload(nsi % 4, 2, nsi - 16), ("A", nsi - 16)))
            if 2 <= mu <= 5:
                for k in (2*(mu-2), 2*(mu-2)+1):
                    if x == 0: pend.append(([bload(1, 1, k)], ("B", 1)))
                    else: pend.append(([bload(0, 2, k)], ("Bn", 0)))
            ab = AFS[si % 4]
            for k in range(8-mu):
                if not COPT.get("nomfma"):
                    A.e(f"v_mfma_f32_16x16x32_bf16 {vr(ACC+4*(mu+k),4)}, {vr(ab,4)}, {vr(BFS[x]+4*k,4)}, {vr(ACC+4*(mu+k),4)}")
                if pend:
                    l, t = pend.pop(0)
                    for y in l: A.e(y)
                    q.append(t)
            for l, t in pend:
                for y in l: A.e(y)
                q.append(t)
    tags = [("B", 0) if t == ("Bn", 0) else t for t in q]
    assert tags[-2:] == [("A", 1), ("A", 2)] and all(t in (("B", 0), ("A", 0)) for t in tags[:-2]), tags
    COPT["order"] = tags
    A.e("s_add_u32 s56, s56, 128")
    setrho()
    A.e("s_add_u32 s63, s63, 1")
    A.e("s_cmp_lt_u32 s63, 4")
    A.e(f"s_cbranch_scc1 {name}_cl")
    A.e("s_waitcnt vmcnt(0) lgkmcnt(0)")
    make_srd(A, 44, 60, 61, "0", 1152)
    A.e("s_lshl_b32 s41, s40, 1")
    A.e(f"v_mov_b32 v{T2}, s41")
    A.e(f"buffer_load_ushort v{T2}, v{T2}, s[44:47], 0 offen")
    A.e(f"v_lshlrev_b32 v{VB}, 5, v{T0}")
    A.e(f"v_lshl_add_u32 v{VB}, v{T1}, 3, v{VB}")
    A.e("s_movk_i32 s41, 512")
    for c in range(8): A.e(f"buffer_load_dwordx2 {vr(32+2*c,2)}, v{VB}, s[48:51], s41 offen offset:{512*c}")
    A.e("s_waitcnt vmcnt(0)")
    A.e(f"v_lshlrev_b32 v{T2}, 16, v{T2}")
    W = 64
    for c in range(8):
        a = ACC + 4*c; u = 32 + 2*c
        A.e(f"v_cvt_pk_bf16_f32 v{a}, v{a}, v{a+1}")
        A.e(f"v_cvt_pk_bf16_f32 v{a+1}, v{a+2}, v{a+3}")
        for k in range(2):
            A.e(f"v_lshlrev_b32 v{W}, 16, v{u+k}")
            A.e(f"v_and_b32 v{W+1}, 0xffff0000, v{u+k}")
            A.e(f"v_mul_f32 v{W}, v{W}, v{T2}")
            A.e(f"v_mul_f32 v{W+1}, v{W+1}, v{T2}")
            A.e(f"v_cvt_pk_bf16_f32 v{W}, v{W}, v{W+1}")
            A.e(f"v_lshlrev_b32 v{W+2}, 16, v{a+k}")
            A.e(f"v_and_b32 v{W+3}, 0xffff0000, v{a+k}")
            A.e(f"v_and_b32 v{W+1}, 0xffff0000, v{W}")
            A.e(f"v_lshlrev_b32 v{W}, 16, v{W}")
            A.e(f"v_add_f32 v{W}, v{W}, v{W+2}")
            A.e(f"v_add_f32 v{W+1}, v{W+1}, v{W+3}")
            A.e(f"v_cvt_pk_bf16_f32 v{a+k}, v{W}, v{W+1}")
        A.e(f"buffer_store_dwordx2 {vr(a,2)}, v{VB}, s[52:55], 0 offen offset:{512*c}")
    A.e(f"s_branch {name}_cend")
    A.label(f"{name}_cpf")
    if COPT.get("wopf"):
        A.e("s_cmp_lg_u32 s10, 3")
        A.e(f"s_cbranch_scc1 {name}_cend")
        A.e("s_load_dwordx2 s[60:61], s[0:1], 88")
        A.e("s_lshr_b32 s41, s2, 3")
        A.e("s_mul_i32 s41, s41, 162")
        A.e(f"v_add_u32 v0, s41, v{LANE}")
        A.e("v_lshlrev_b32 v0, 7, v0")
        A.e("s_waitcnt lgkmcnt(0)")
        make_srd(A, 44, 60, 61, "0", 576*1152)
        for k in range(3):
            A.e(f"buffer_load_dword v{1+k}, v0, s[44:47], 0 offen offset:0" if k == 0 else f"buffer_load_dword v{1+k}, v0, s[44:47], s41 offen")
            A.e(f"s_mov_b32 s41, {8192*(k+1)}")
        A.e("s_waitcnt vmcnt(0)")
    A.label(f"{name}_cend")
```

```python
import sys; sys.path.insert(0, "work")
from asmlib import *
import layout as LY
import numpy as np, math, struct
def f32bits(x): return struct.unpack("<I", struct.pack("<f", x))[0]
def rnd_bf16_int(l):
    u = struct.unpack("<I", struct.pack("<f", float(l)))[0]
    u = (u + 0x7FFF + ((u >> 16) & 1)) & 0xFFFF0000
    return int(struct.unpack("<f", struct.pack("<I", u))[0])
def rowcol(lp):
    if lp < 256: return lp % 8, lp // 8
    if lp < 512: return 8 + (lp % 8)//2, (lp-256)//8
    if lp < 1024: return 12 + 2*((lp-512)//256) + (lp % 8)//4, ((lp-512) % 256)//8
    return 16 + (lp-1024)//256, ((lp-1024) % 256)//8
TZERO = 24*64
NIT = 3
def idx_table():
    t = []
    for x in range(2*NIT*512):
        idx = LY.KRC - x
        if x < LY.KRLEN and 0 <= idx <= 2047:
            r, c = rowcol(rnd_bf16_int(idx)); t.append((r*32 + c)*2)
        else: t.append(TZERO)
    return t
def emit_idx_table(A, tabname):
    t = idx_table()
    A.raw(".p2align 4")
    A.raw(f".type {tabname},@object")
    A.label(tabname)
    for i in range(0, len(t), 16):
        A.raw("  .short " + ", ".join(str(x) for x in t[i:i+16]))
    A.raw(f".size {tabname}, {len(t)*2}")

NSTR = 240; TBL = 64*NSTR
TOFF = 0
STG = 4*TBL
TT = STG + 8192
SSM_LDS = TT + 4096
SOPT = {}

def gen_ssm_role(A, name, first_wg, tabname):
    def maybe_exit(i):
        if SOPT.get('exit') == i: A.e('s_endpgm')
    LANE, T0, T1, T2, T3 = 0, 1, 2, 3, 4
    RAW = 8; DT = 14; UR = 16; IDX = 24
    G1, G2, G4, G8, H, W, CA, CB, EA, EB, TMP, TMP2 = 56, 58, 60, 62, 64, 66, 68, 70, 72, 74, 76, 78
    S0, S1, S2, S3 = 80, 81, 82, 83
    AWR, AA, AB = 84, 85, 86
    PX = 88; PE = 96
    FA, FB, FA2, FB2 = 104, 108, 112, 116
    ACC = 120
    maybe_exit(0)
    A.e("s_load_dwordx8 s[4:11], s[0:1], 8")
    A.e("s_load_dwordx4 s[12:15], s[0:1], 40")
    A.e("s_load_dwordx2 s[16:17], s[0:1], 56")
    A.e("s_load_dwordx2 s[18:19], s[0:1], 112")
    A.e("s_load_dwordx2 s[64:65], s[0:1], 0")
    stamp(A, 0); stamp_rt0(A)
    A.e(f"v_lshrrev_b32 v{T0}, 6, v0")
    A.e(f"v_and_b32 v{LANE}, 63, v0")
    A.e(f"v_readfirstlane_b32 s28, v{T0}")
    A.e(f"s_sub_u32 s68, s2, {first_wg}")
    A.e("s_lshl_b32 s29, s68, 1")
    A.e("s_lshr_b32 s26, s28, 1")
    A.e("s_and_b32 s27, s28, 1")
    A.e("s_add_u32 s25, s29, s26")
    A.e("s_getpc_b64 s[20:21]")
    A.label(f"{name}_pc")
    A.e(f"s_add_u32 s20, s20, {tabname}-{name}_pc")
    A.e("s_addc_u32 s21, s21, 0")
    A.e(f"v_lshlrev_b32 v{T0}, 1, v{LANE}")
    A.e("s_lshl_b32 s31, s25, 8")
    A.e("s_lshl_b32 s22, s27, 7")
    A.e("s_add_u32 s31, s31, s22")
    A.e("s_mul_i32 s69, s68, 7282")
    A.e("s_lshr_b32 s69, s69, 16")
    A.e("s_mul_i32 s70, s69, 9")
    A.e("s_sub_u32 s70, s68, s70")
    A.e("s_waitcnt lgkmcnt(0)")
    for i, p in enumerate((4, 6, 8, 10, 12, 14)):
        A.e(f"s_mov_b32 s{32+4*i}, s{p}")
        A.e(f"s_mov_b32 s{33+4*i}, s{p+1}")
        A.e(f"s_mov_b32 s{34+4*i}, {576*256}")
        A.e(f"s_mov_b32 s{35+4*i}, 0x00020000")
        A.e(f"buffer_load_ushort v{RAW+i}, v{T0}, s[{32+4*i}:{35+4*i}], s31 offen")
    make_srd(A, 56, 16, 17, "0", 1152)
    A.e("s_lshl_b32 s22, s25, 1")
    A.e(f"v_mov_b32 v{T2}, s22")
    A.e(f"buffer_load_ushort v{DT}, v{T2}, s[56:59], 0 offen")
    make_srd(A, 60, 64, 65, "0", 2048*1152)
    A.e(f"v_lshrrev_b32 v{T1}, 3, v{LANE}")
    A.e(f"v_mul_u32_u24 v{T1}, 1152, v{T1}")
    A.e(f"v_and_b32 v{T2}, 7, v{LANE}")
    A.e(f"v_lshl_add_u32 v{T1}, v{T2}, 4, v{T1}")
    A.e("s_lshl_b32 s22, s69, 6")
    A.e("s_lshl_b32 s23, s28, 4")
    A.e("s_add_u32 s22, s22, s23")
    A.e("s_mul_i32 s22, s22, 1152")
    A.e("s_lshl_b32 s23, s70, 7")
    A.e("s_add_u32 s22, s22, s23")
    A.e("s_lshl_b32 s23, s28, 11")
    A.e(f"s_add_u32 s23, s23, {STG}")
    A.e("s_mov_b32 m0, s23")
    A.e("s_nop 0")
    A.e(f"buffer_load_dwordx4 v{T1}, s[60:63], s22 offen lds")
    A.e(f"s_add_u32 s22, s22, {8*1152}")
    A.e("s_add_u32 m0, s23, 1024")
    A.e("s_nop 0")
    A.e(f"buffer_load_dwordx4 v{T1}, s[60:63], s22 offen lds")
    A.e(f"s_mul_i32 s30, s28, {TBL}")
    A.e(f"v_mul_u32_u24 v{AWR}, {NSTR}, v{LANE}")
    A.e(f"v_add_u32 v{AWR}, s30, v{AWR}")
    A.e(f"v_lshrrev_b32 v{T1}, 5, v{LANE}")
    A.e(f"v_lshrrev_b32 v{T2}, 2, v{LANE}")
    A.e(f"v_and_b32 v{T2}, 3, v{T2}")
    A.e(f"v_lshrrev_b32 v{T3}, 1, v{T2}")
    A.e(f"v_lshl_add_u32 v{T3}, v{T1}, 2, v{T3}")
    A.e(f"v_mul_u32_u24 v{AA}, {NSTR}, v{T3}")
    A.e(f"v_add_u32 v{AA}, s30, v{AA}")
    A.e(f"v_lshrrev_b32 v{T3}, 4, v{LANE}")
    A.e(f"v_and_b32 v{T3}, 1, v{T3}")
    A.e(f"v_lshlrev_b32 v{T3}, 5, v{T3}")
    A.e(f"v_and_b32 v{T1}, 3, v{LANE}")
    A.e(f"v_lshl_add_u32 v{T3}, v{T1}, 3, v{T3}")
    A.e(f"v_add_u32 v{AA}, v{AA}, v{T3}")
    A.e(f"v_and_b32 v{T2}, 1, v{T2}")
    A.e(f"v_mul_u32_u24 v{T1}, 64, v{T2}")
    A.e(f"v_add3_u32 v{AB}, v{AA}, v{T1}, 0")
    A.e(f"v_add_u32 v{AB}, 96, v{AB}")
    A.e(f"v_mul_u32_u24 v{T1}, 48, v{T2}")
    A.e(f"v_add_u32 v{AA}, v{AA}, v{T1}")
    for r in range(16): A.e(f"v_mov_b32 v{ACC+r}, 0")
    stamp(A, 1)
    maybe_exit(1)
    A.e("s_waitcnt vmcnt(2)")
    stamp(A, 2)
    L_hi = float(np.float32(math.log2(math.e))); L_lo = math.log2(math.e) - L_hi
    A.e(f"v_lshlrev_b32 v{DT}, 16, v{DT}")
    A.e(f"s_mov_b32 s22, 0x{f32bits(L_hi):x}")
    A.e(f"s_mov_b32 s23, 0x{f32bits(L_lo):x}")
    A.e(f"v_mul_f32 v{S0}, s22, v{DT}")
    A.e(f"v_fma_f32 v{S1}, v{DT}, s22, -v{S0}")
    A.e(f"v_fma_f32 v{S1}, v{DT}, s23, v{S1}")
    A.e(f"v_exp_f32 v{S0}, v{S0}")
    A.e(f"v_mul_f32 v{S1}, 0x{f32bits(math.log(2.0)):x}, v{S1}")
    A.e(f"v_fma_f32 v{S0}, v{S0}, v{S1}, v{S0}")
    A.e(f"v_cvt_pk_bf16_f32 v{S0}, v{S0}, v{S0}")
    A.e(f"v_and_b32 v{DT}, 0xffff0000, v{S0}")
    for i in range(6): A.e(f"v_lshlrev_b32 v{RAW+i}, 16, v{RAW+i}")
    def cmul(D, X, G, TM=TMP):
        A.e(f"v_pk_mul_f32 {vr(TM,2)}, {vr(X,2)}, {vr(G,2)} op_sel_hi:[1,0]")
        A.e(f"v_pk_fma_f32 {vr(D,2)}, {vr(X,2)}, {vr(G,2)}, {vr(TM,2)} op_sel:[1,1,0] op_sel_hi:[0,1,1] neg_lo:[0,1,0]")
    A.e(f"v_mul_f32 v{S0}, v{DT}, v{RAW+0}")
    A.e(f"v_mul_f32 v{S1}, v{DT}, v{RAW+1}")
    A.e(f"v_mul_f32 v{S2}, 0x{f32bits(math.log2(math.e)):x}, v{S0}")
    A.e(f"v_mul_f32 v{S3}, 0x{f32bits(1.0/(2*math.pi)):x}, v{S1}")
    for (G, m) in ((G1, 1.0), (G8, 8.0), (H, 256.0)):
        A.e(f"v_mul_f32 v{S0}, 0x{f32bits(m):x}, v{S2}")
        A.e(f"v_mul_f32 v{S1}, 0x{f32bits(m):x}, v{S3}")
        A.e(f"v_exp_f32 v{S0}, v{S0}")
        A.e(f"v_fract_f32 v{S1}, v{S1}")
        A.e("s_nop 0")
        A.e(f"v_cos_f32 v{G}, v{S1}")
        A.e(f"v_sin_f32 v{G+1}, v{S1}")
        A.e("s_nop 0")
        A.e(f"v_mul_f32 v{G}, v{G}, v{S0}")
        A.e(f"v_mul_f32 v{G+1}, v{G+1}, v{S0}")
    A.e(f"v_mul_f32 v{CA}, v{DT}, v{RAW+2}")
    A.e(f"v_mul_f32 v{CA+1}, v{DT}, v{RAW+3}")
    cmul(W, CA, RAW+4)
    cmul(G2, G1, G1, TMP2)
    cmul(G4, G2, G2)
    A.e(f"v_lshlrev_b32 v{T1}, 4, v{LANE}")
    A.e(f"s_mul_i32 s22, s27, {NIT*1024}")
    A.e(f"v_add_u32 v{T1}, s22, v{T1}")
    for k in range(NIT):
        if k == 4: A.e(f"v_add_u32 v{T1}, 4096, v{T1}")
        A.e(f"global_load_dwordx4 {vr(IDX+4*k,4)}, v{T1}, s[20:21] offset:{1024*(k%4)}")
    def packX(p, a, b):
        A.e(f"v_cvt_pk_bf16_f32 v{PX+p}, v{a}, v{b}")
        A.e(f"v_cvt_pk_bf16_f32 v{PX+4+p}, -v{a+1}, -v{b+1}")
    def packE(p, a, b):
        A.e(f"v_cvt_pk_bf16_f32 v{PE+p}, v{a}, v{b}")
        A.e(f"v_cvt_pk_bf16_f32 v{PE+4+p}, v{a+1}, v{b+1}")
    def flushX(g):
        A.e(f"ds_write_b128 v{AWR}, {vr(PX,4)} offset:{16*g}")
        A.e(f"ds_write_b128 v{AWR}, {vr(PX+4,4)} offset:{48+16*g}")
    def flushE(g):
        A.e(f"ds_write_b128 v{AWR}, {vr(PE,4)} offset:{96+16*g}")
        A.e(f"ds_write_b128 v{AWR}, {vr(PE+4,4)} offset:{160+16*g}")
    xs = []
    xs.append(lambda: (cmul(CB, W, G1), packX(0, W, CB)))
    xs.append(lambda: (cmul(CA, CB, G1), cmul(CB, CA, G1), packX(1, CA, CB)))
    xs.append(lambda: (cmul(CA, CB, G1), cmul(CB, CA, G1), packX(2, CA, CB)))
    xs.append(lambda: (cmul(CA, CB, G1), cmul(CB, CA, G1), packX(3, CA, CB), flushX(0)))
    xs.append(lambda: (cmul(W, W, H), cmul(CB, W, G2), packX(0, W, CB)))
    xs.append(lambda: (cmul(CA, CB, G2), cmul(CB, CA, G2), packX(1, CA, CB)))
    xs.append(lambda: (cmul(W, W, H), cmul(CB, W, G4), packX(2, W, CB)))
    xs.append(lambda: (cmul(W, W, H), cmul(CB, W, G4), packX(3, W, CB), flushX(1)))
    xs.append(lambda: (cmul(CA, W, H), cmul(CB, CA, H), packX(0, CA, CB)))
    xs.append(lambda: (cmul(CA, CB, H), cmul(CB, CA, H), packX(1, CA, CB)))
    xs.append(lambda: (cmul(CA, CB, H), packX(2, CA, CA), packX(3, CA, CA), flushX(2)))
    es = []
    def e01():
        A.e(f"v_mov_b32 v{EA}, 1.0"); A.e(f"v_mov_b32 v{EA+1}, 0")
        packE(0, EA, G8)
        cmul(EA, G8, G8, TMP2); cmul(EB, EA, G8, TMP2); packE(1, EA, EB)
    es.append(e01)
    for p in range(2, 16):
        def f(p=p):
            cmul(EA, EB, G8, TMP2); cmul(EB, EA, G8, TMP2); packE(p % 4, EA, EB)
            if p % 4 == 3: flushE(p//4)
        es.append(f)
    for i in range(15):
        es[i]()
        if i < len(xs): xs[i]()
    A.e("s_waitcnt lgkmcnt(0)")
    stamp(A, 3)
    maybe_exit(3)
    def frd(fa, fb, s):
        for q in range(2):
            A.e(f"ds_read_b64_tr_b16 {vr(fa+2*q,2)}, v{AA} offset:{(8*s+2*q)*NSTR}")
            A.e(f"ds_read_b64_tr_b16 {vr(fb+2*q,2)}, v{AB} offset:{(8*s+2*q)*NSTR}")
    frd(FA, FB, 0)
    for s in range(8):
        fa, fb = (FA, FB) if s % 2 == 0 else (FA2, FB2)
        na, nb = (FA2, FB2) if s % 2 == 0 else (FA, FB)
        if s < 7:
            frd(na, nb, s+1); A.e("s_waitcnt lgkmcnt(4)")
        else: A.e("s_waitcnt lgkmcnt(0)")
        A.e(f"v_mfma_f32_32x32x16_bf16 {vr(ACC,16)}, {vr(fa,4)}, {vr(fb,4)}, {vr(ACC,16)}")
    A.e(f"v_lshlrev_b32 v{T1}, 4, v{LANE}")
    A.e(f"s_mul_i32 s22, s26, {2*TBL}")
    A.e(f"s_add_u32 s22, s22, {TBL}")
    A.e(f"v_add_u32 v{T1}, s22, v{T1}")
    A.e(f"s_waitcnt vmcnt({NIT})")
    A.e("s_nop 7")
    A.e("s_cmp_eq_u32 s27, 0")
    A.e(f"s_cbranch_scc1 {name}_c0")
    for g in range(3): A.e(f"ds_write_b128 v{T1}, {vr(ACC+4*g,4)} offset:{1024*g}")
    A.e("s_waitcnt lgkmcnt(0)")
    A.e("s_barrier")
    A.e(f"s_branch {name}_c1")
    A.label(f"{name}_c0")
    A.e("s_barrier")
    for g in range(3): A.e(f"ds_read_b128 {vr(FA+4*g,4)}, v{T1} offset:{1024*g}")
    A.e(f"v_and_b32 v{T2}, 31, v{LANE}")
    A.e(f"v_lshrrev_b32 v{T3}, 5, v{LANE}")
    A.e(f"v_lshlrev_b32 v{T2}, 1, v{T2}")
    A.e(f"v_lshl_add_u32 v{T2}, v{T3}, 8, v{T2}")
    A.e("s_lshl_b32 s22, s26, 11")
    A.e(f"s_add_u32 s22, s22, {TT}")
    A.e(f"v_add_u32 v{T2}, s22, v{T2}")
    A.e(f"v_mov_b32 v{T3}, s22")
    A.e(f"v_mov_b32 v{S0}, 0")
    A.e(f"ds_write_b32 v{T3}, v{S0} offset:{TZERO}")
    A.e("s_waitcnt lgkmcnt(1)")
    for g in range(3):
        for r in range(4): A.e(f"v_add_f32 v{ACC+4*g+r}, v{ACC+4*g+r}, v{FA+4*g+r}")
        A.e(f"v_cvt_pk_bf16_f32 v{S0}, v{ACC+4*g}, v{ACC+4*g+1}")
        A.e(f"v_cvt_pk_bf16_f32 v{S1}, v{ACC+4*g+2}, v{ACC+4*g+3}")
        A.e(f"ds_write_b16 v{T2}, v{S0} offset:{(8*g+0)*64}")
        A.e(f"ds_write_b16_d16_hi v{T2}, v{S0} offset:{(8*g+1)*64}")
        A.e(f"ds_write_b16 v{T2}, v{S1} offset:{(8*g+2)*64}")
        A.e(f"ds_write_b16_d16_hi v{T2}, v{S1} offset:{(8*g+3)*64}")
    A.label(f"{name}_c1")
    A.e(f"v_lshrrev_b32 v{T1}, 4, v{LANE}")
    A.e(f"v_lshrrev_b32 v{T2}, 2, v{LANE}")
    A.e(f"v_and_b32 v{T2}, 3, v{T2}")
    A.e(f"v_lshl_add_u32 v{T2}, v{T1}, 3, v{T2}")
    A.e(f"v_lshlrev_b32 v{T2}, 7, v{T2}")
    A.e(f"v_and_b32 v{T3}, 3, v{LANE}")
    A.e(f"v_lshl_add_u32 v{T2}, v{T3}, 3, v{T2}")
    A.e("s_lshl_b32 s22, s28, 5")
    A.e(f"s_add_u32 s22, s22, {STG}")
    A.e(f"v_add_u32 v{T2}, s22, v{T2}")
    for hf in range(2):
        A.e(f"ds_read_b64_tr_b16 {vr(UR+4*hf,2)}, v{T2} offset:{hf*32*128}")
        A.e(f"ds_read_b64_tr_b16 {vr(UR+4*hf+2,2)}, v{T2} offset:{hf*32*128+4*128}")
    A.e(f"v_and_b32 v{T3}, 15, v{LANE}")
    A.e(f"v_mul_u32_u24 v{T3}, {LY.UT_ROW}, v{T3}")
    A.e(f"v_lshl_add_u32 v{T3}, v{T1}, 4, v{T3}")
    make_srd(A, 72, 18, 19, str(LY.UT_OFF), LY.UT_BYTES)
    A.e("s_lshl_b32 s22, s70, 6")
    A.e("s_lshl_b32 s23, s28, 4")
    A.e("s_add_u32 s22, s22, s23")
    A.e(f"s_mul_i32 s22, s22, {LY.UT_ROW}")
    A.e("s_lshl_b32 s23, s69, 7")
    A.e("s_add_u32 s23, s23, s22")
    A.e("s_add_u32 s23, s23, 512")
    A.e("s_waitcnt lgkmcnt(0)")
    A.e(f"buffer_store_dwordx4 {vr(UR,4)}, v{T3}, s[72:75], s23 offen")
    A.e(f"buffer_store_dwordx4 {vr(UR+4,4)}, v{T3}, s[72:75], s23 offen offset:64")
    A.e("s_cmp_ge_u32 s69, 4")
    A.e(f"s_cbranch_scc1 {name}_nz")
    A.e(f"v_lshrrev_b32 v{T1}, 3, v{LANE}")
    A.e(f"v_mul_u32_u24 v{T1}, {LY.UT_ROW}, v{T1}")
    A.e(f"v_and_b32 v{T2}, 7, v{LANE}")
    A.e(f"v_lshl_add_u32 v{T1}, v{T2}, 4, v{T1}")
    A.e("s_lshl_b32 s23, s69, 7")
    A.e("s_add_u32 s22, s22, s23")
    for r in range(4): A.e(f"v_mov_b32 v{S0+r}, 0")
    A.e(f"buffer_store_dwordx4 {vr(S0,4)}, v{T1}, s[72:75], s22 offen")
    A.e(f"s_add_u32 s22, s22, {8*LY.UT_ROW}")
    A.e(f"buffer_store_dwordx4 {vr(S0,4)}, v{T1}, s[72:75], s22 offen")
    A.label(f"{name}_nz")
    A.e("s_waitcnt lgkmcnt(0)")
    A.e("s_barrier")
    stamp(A, 4)
    maybe_exit(4)
    A.e("s_lshl_b32 s22, s26, 11")
    A.e(f"s_add_u32 s22, s22, {TT}")
    A.e(f"v_mov_b32 v{T3}, s22")
    A.e(f"s_mul_i32 s31, s25, {LY.KR_ROW}")
    A.e(f"s_add_u32 s31, s31, {LY.KR_OFF}")
    make_srd(A, 56, 18, 19, "s31", LY.KR_ROW)
    A.e(f"s_mul_i32 s22, s27, {NIT*1024}")
    A.e(f"v_lshlrev_b32 v{T1}, 4, v{LANE}")
    ADS = [56, 64]; OUTS = [72, 76]
    def gath(k):
        ad = ADS[k % 2]
        for e in range(8):
            A.e(f"v_add_u32_sdwa v{ad+e}, v{T3}, v{IDX+4*k+e//2} dst_sel:DWORD dst_unused:UNUSED_PAD src0_sel:DWORD src1_sel:WORD_{e%2}")
        for e in range(8): A.e(f"ds_read_u16 v{ad+e}, v{ad+e}")
    A.e("s_waitcnt vmcnt(2)")
    gath(0)
    for k in range(NIT):
        ad = ADS[k % 2]; o = OUTS[k % 2]
        if k < NIT-1:
            gath(k+1); A.e("s_waitcnt lgkmcnt(8)")
        else: A.e("s_waitcnt lgkmcnt(0)")
        for i in range(4): A.e(f"v_lshl_or_b32 v{o+i}, v{ad+2*i+1}, 16, v{ad+2*i}")
        A.e(f"buffer_store_dwordx4 {vr(o,4)}, v{T1}, s[56:59], s22 offen offset:{1024*k}")
    stamp(A, 5)
    stamp_dump(A, 18, 28, 4)
    RT["wave"]=28; rt_exit(A, 0, 4); A.e("s_endpgm")
    return 136
```

```python
import sys; sys.path.insert(0, "work")
from asmlib import *
import layout as LY

XSLOT = 16384; WSLOT = 10240; WROW = 320
WBASE = 3*XSLOT
SCR = WBASE + 3*WSLOT
GEMM_LDS = SCR + 1024
NST = 18
OPT = {}
def f32bits(x):
    import struct
    return struct.unpack("<I", struct.pack("<f", x))[0]

def gen_gemm_role(A, name):
    ACC = [0, 16, 32, 48]; ACL = 64
    XF = [[80, 84, 88, 92], [96, 100, 104, 108]]
    WM = [112, 116]; WL = [120, 124]
    AX = [156, 157]
    BX = [132, 133, 134, 135]
    BWM, BWL = 136, 137
    VXO = 138; VW = [139, 140, 141]
    LANE, T0, T1, T2, T3, T4 = 142, 143, 144, 145, 146, 147
    XL = [148, 152]
    A.e("s_load_dwordx4 s[4:7], s[0:1], 72")
    A.e("s_load_dwordx2 s[8:9], s[0:1], 112")
    stamp(A, 0); stamp_rt0(A)
    if OPT.get("prio"): A.e("s_setprio 3")
    A.e("s_and_b32 s10, s2, 7")
    A.e("s_lshr_b32 s11, s2, 3")
    A.e("s_lshr_b32 s24, s10, 1")
    A.e("s_lshl_b32 s24, s24, 2")
    A.e("s_and_b32 s25, s11, 3")
    A.e("s_add_u32 s24, s24, s25")
    A.e("s_and_b32 s25, s10, 1")
    A.e("s_mul_i32 s25, s25, 6")
    A.e("s_lshr_b32 s26, s11, 2")
    A.e("s_add_u32 s25, s25, s26")
    A.e("s_lshr_b32 s26, s25, 2")
    A.e("s_and_b32 s27, s25, 3")
    A.e(f"v_and_b32 v{LANE}, 63, v0")
    A.e(f"v_lshrrev_b32 v{T0}, 6, v0")
    A.e("s_mul_i32 s29, s25, 288")
    A.e(f"v_readfirstlane_b32 s28, v{T0}")
    A.e(f"s_mul_i32 s30, s24, {128*1152}")
    A.e(f"v_lshrrev_b32 v{T0}, 3, v{LANE}")
    A.e(f"v_mul_u32_u24 v{VXO}, 1152, v{T0}")
    A.e(f"v_lshrrev_b32 v{T1}, 4, v{LANE}")
    A.e(f"v_and_b32 v{T2}, 7, v{LANE}")
    A.e(f"v_xor_b32 v{T1}, v{T1}, v{T2}")
    A.e(f"v_xor_b32 v{T2}, 4, v{T1}")
    VXO2 = T4 + 0
    A.e(f"v_lshl_add_u32 v{158}, v{T2}, 4, v{VXO}")
    A.e(f"v_lshl_add_u32 v{VXO}, v{T1}, 4, v{VXO}")
    VXE, VXD = VXO, 158
    for i in range(3):
        A.e(f"s_add_u32 s31, s28, {4*i}")
        A.e("s_lshl_b32 s31, s31, 6")
        A.e(f"v_add_u32 v{T0}, s31, v{LANE}")
        A.e(f"v_mul_u32_u24 v{T1}, 3277, v{T0}")
        A.e(f"v_lshrrev_b32 v{T1}, 16, v{T1}")
        A.e(f"v_mul_u32_u24 v{T2}, 20, v{T1}")
        A.e(f"v_sub_u32 v{T2}, v{T0}, v{T2}")
        A.e(f"v_mul_u32_u24 v{T1}, 3456, v{T1}")
        A.e(f"v_lshl_add_u32 v{VW[i]}, v{T2}, 4, v{T1}")
        A.e(f"v_cmp_gt_u32 vcc, 18, v{T2}")
        A.e("s_movk_i32 s38, 640")
        A.e(f"v_cmp_gt_u32 s[32:33], s38, v{T0}")
        A.e(f"v_mov_b32 v{T3}, 0x7ffffff0")
        A.e("s_nop 0")
        A.e("s_and_b64 vcc, vcc, s[32:33]")
        A.e("s_nop 0")
        A.e(f"v_cndmask_b32 v{VW[i]}, v{T3}, v{VW[i]}, vcc")
    A.e("s_waitcnt lgkmcnt(0)")
    make_srd(A, 12, 4, 5, "s30", 128*1152)
    A.e("s_add_u32 s16, s6, s29")
    A.e("s_addc_u32 s17, s7, 0")
    A.e(f"s_sub_u32 s18, {576*3456}, s29")
    A.e("s_mov_b32 s19, 0x00020000")
    A.e(f"s_mul_i32 s34, s28, {32*1152}")
    A.e("s_lshl_b32 s35, s28, 12")
    A.e("s_lshl_b32 s36, s28, 10")
    A.e("s_cmp_lt_u32 s28, 2")
    A.e(f"s_cselect_b32 s37, 1, 0")
    A.e(f"s_add_u32 s36, s36, {WBASE}")
    def xd(sb, slot, j2, maybe_invalid=False):
        ld = f"buffer_load_dwordx4 v{VXD if j2 % 2 else VXE}, s[12:15], s44 offen lds"
        if maybe_invalid:
            return [f"s_add_u32 s44, {sb}, {j2*8*1152}", f"s_add_u32 s45, s35, {slot*XSLOT + j2*1024}",
                    "s_cmp_eq_u32 s56, 0", "s_cselect_b32 m0, s45, s55", ld]
        return [f"s_add_u32 s44, {sb}, {j2*8*1152}", f"s_add_u32 m0, s35, {slot*XSLOT + j2*1024}", ld]
    def wd(sb, slot, i, maybe_invalid=False):
        src = f"v{VW[i]}"
        if i < 2: m0 = [f"s_add_u32 s45, s36, {slot*WSLOT + 4096*i}"]; m0r = "s45"
        else: m0 = []; m0r = f"s{60+slot}"
        if maybe_invalid:
            return m0 + ["s_cmp_eq_u32 s56, 0", f"s_cselect_b32 m0, {m0r}, s55",
                    f"buffer_load_dwordx4 {src}, s[16:19], {sb} offen lds"]
        if i < 2:
            return [f"s_add_u32 m0, s36, {slot*WSLOT + 4096*i}", f"buffer_load_dwordx4 {src}, s[16:19], {sb} offen lds"]
        return [f"s_mov_b32 m0, {m0r}", f"buffer_load_dwordx4 {src}, s[16:19], {sb} offen lds"]
    ROWB = 32*3456
    XS = [64, 65, 66]
    WS = [67, 68, 69, 70, 71, 72]
    def chunk_regs(xreg, wreg0, wreg1):
        if xreg is not None:
            A.e(f"s_lshl_b32 s{xreg}, s46, 7"); A.e(f"s_add_u32 s{xreg}, s{xreg}, s34")
        if wreg0 is not None: A.e(f"s_mul_i32 s{wreg0}, s46, {2*ROWB}")
        if wreg1 is not None:
            A.e(f"s_mul_i32 s{wreg1}, s46, {2*ROWB}"); A.e(f"s_add_u32 s{wreg1}, s{wreg1}, {ROWB}")
    def inc46():
        A.e("s_add_u32 s46, s46, 1"); A.e("s_cmp_eq_u32 s46, 9"); A.e("s_cselect_b32 s46, 0, s46")
    A.e("s_and_b32 s46, s24, 3"); A.e("s_lshl_b32 s46, s46, 1")
    A.e("s_cmp_ge_u32 s25, 6"); A.e("s_cselect_b32 s47, 6, 0"); A.e("s_sub_u32 s47, s25, s47"); A.e("s_mul_i32 s47, s47, 7")
    A.e("s_add_u32 s46, s46, s47")
    if OPT.get("norot"): A.e("s_mov_b32 s46, 0")
    A.e("s_mul_i32 s47, s46, 7282"); A.e("s_lshr_b32 s47, s47, 16"); A.e("s_mul_i32 s47, s47, 9"); A.e("s_sub_u32 s46, s46, s47")
    for sl in range(3):
        A.e(f"s_add_u32 s{60+sl}, s36, {sl*WSLOT + 8192}")
        A.e("s_cmp_eq_u32 s37, 1")
        A.e(f"s_mov_b32 s56, {SCR}")
        A.e(f"s_cselect_b32 s{60+sl}, s{60+sl}, s56")
    def emit_dma(l, mid=None):
        if mid and OPT.get("nodma"):
            A.e(mid); return
        for x in l[:-1]: A.e(x)
        A.e(mid if mid else "s_nop 0")
        A.e(l[-1])
    chunk_regs(XS[0], WS[0], WS[1]); inc46()
    chunk_regs(XS[1], WS[2], WS[3]); inc46()
    for j2 in range(4): emit_dma(xd(f"s{XS[0]}", 0, j2))
    for i in range(3): emit_dma(wd(f"s{WS[0]}", 0, i))
    for i in range(3): emit_dma(wd(f"s{WS[1]}", 1, i))
    for j2 in range(4): emit_dma(xd(f"s{XS[1]}", 1, j2))
    for i in range(3): emit_dma(wd(f"s{WS[2]}", 2, i))
    A.e(f"s_mov_b32 s73, s{WS[3]}")
    if OPT.get("pf"):
        PF = 159
        A.e("s_lshl_b32 s31, s11, 2")
        A.e("s_add_u32 s31, s31, s28")
        make_srd(A, 64, 4, 5, "0", 2048*1152)
        make_srd(A, 68, 6, 7, "0", 576*3456)
        A.e("s_mul_i32 s38, s31, 38")
        A.e(f"v_add_u32 v{T0}, s38, v{LANE}")
        A.e(f"v_and_b32 v{T1}, 511, v{T0}")
        A.e(f"v_lshrrev_b32 v{T2}, 9, v{T0}")
        A.e(f"v_add_u32 v{T2}, 2, v{T2}")
        A.e(f"v_mul_u32_u24 v{T1}, 1152, v{T1}")
        A.e(f"v_lshl_add_u32 v{T1}, v{T2}, 7, v{T1}")
        A.e("s_lshr_b32 s38, s10, 1")
        A.e(f"s_mul_i32 s38, s38, {512*1152}")
        A.e(f"v_cmp_gt_u32 vcc, 38, v{LANE}")
        A.e(f"v_mov_b32 v{T3}, 0x7ffffff0")
        A.e("s_nop 0")
        A.e(f"v_cndmask_b32 v{T1}, v{T3}, v{T1}, vcc")
        A.e(f"buffer_load_dword v{PF}, v{T1}, s[64:67], s38 offen")
        A.e("s_and_b32 s38, s10, 1")
        A.e("s_mul_i32 s38, s38, 1664")
        A.e(f"s_add_u32 s38, s38, {96*3456}")
        A.e("s_mul_i32 s39, s31, 70")
        for j in range(2):
            A.e(f"v_add_u32 v{T0}, {64*j}, v{LANE}")
            A.e(f"v_cmp_gt_u32 vcc, 70, v{T0}")
            A.e(f"v_add_u32 v{T0}, s39, v{T0}")
            A.e(f"v_mul_u32_u24 v{T1}, 4682, v{T0}")
            A.e(f"v_lshrrev_b32 v{T1}, 16, v{T1}")
            A.e(f"v_mul_u32_u24 v{T2}, 14, v{T1}")
            A.e(f"v_sub_u32 v{T2}, v{T0}, v{T2}")
            A.e(f"v_mul_u32_u24 v{T1}, 3456, v{T1}")
            A.e(f"v_lshl_add_u32 v{T1}, v{T2}, 7, v{T1}")
            A.e(f"v_cndmask_b32 v{T1}, v{T3}, v{T1}, vcc")
            A.e(f"buffer_load_dword v{PF+1+j}, v{T1}, s[68:71], s38 offen")
    stamp(A, 1)
    A.e(f"v_and_b32 v{T0}, 31, v{LANE}")
    A.e(f"v_lshrrev_b32 v{T1}, 5, v{LANE}")
    A.e(f"v_lshrrev_b32 v{T2}, 1, v{T0}")
    A.e(f"v_and_b32 v{T2}, 7, v{T2}")
    A.e(f"v_xor_b32 v{T2}, v{T2}, v{T1}")
    A.e(f"v_lshlrev_b32 v{BX[0]}, 7, v{T0}")
    A.e(f"v_lshl_add_u32 v{BX[0]}, v{T2}, 4, v{BX[0]}")
    for kq in range(1, 4): A.e(f"v_xor_b32 v{BX[kq]}, {32*kq}, v{BX[0]}")
    BXL = [128, 129, 130, 131]
    A.e("s_lshl_b32 s39, s28, 12")
    for kq in range(4): A.e(f"v_add_u32 v{BXL[kq]}, s39, v{BX[kq]}")
    A.e(f"v_lshrrev_b32 v{T2}, 2, v{LANE}")
    A.e(f"v_and_b32 v{T2}, 3, v{T2}")
    A.e(f"v_lshl_add_u32 v{T2}, v{T1}, 3, v{T2}")
    A.e(f"v_mul_u32_u24 v{T2}, {WROW}, v{T2}")
    A.e(f"v_add_u32 v{T2}, {WBASE}, v{T2}")
    A.e(f"v_lshrrev_b32 v{T3}, 4, v{LANE}")
    A.e(f"v_and_b32 v{T3}, 1, v{T3}")
    A.e(f"v_and_b32 v{T4}, 3, v{LANE}")
    A.e(f"v_lshl_add_u32 v{T3}, v{T3}, 2, v{T4}")
    A.e("s_cmp_eq_u32 s26, 2")
    A.e(f"s_cbranch_scc1 {name}_vaddr")
    A.e(f"v_lshlrev_b32 v{T0}, 2, v{T3}")
    A.e(f"v_mov_b32 v{BWM}, 0x86753120")
    A.e(f"v_lshrrev_b32 v{BWM}, v{T0}, v{BWM}")
    A.e(f"v_and_b32 v{BWM}, 15, v{BWM}")
    A.e("s_mul_i32 s31, s28, 9")
    A.e(f"v_add_u32 v{BWM}, s31, v{BWM}")
    A.e(f"v_lshl_add_u32 v{BWM}, v{BWM}, 3, v{T2}")
    A.e(f"v_mul_u32_u24 v{BWL}, 9, v{T4}")
    A.e(f"v_add_u32 v{BWL}, 4, v{BWL}")
    A.e(f"v_lshl_add_u32 v{BWL}, v{BWL}, 3, v{T2}")
    A.e(f"s_branch {name}_addr_done")
    A.label(f"{name}_vaddr")
    A.e("s_lshl_b32 s31, s28, 3")
    A.e(f"v_add_u32 v{BWM}, s31, v{T3}")
    A.e(f"v_lshl_add_u32 v{BWM}, v{BWM}, 3, v{T2}")
    A.e(f"v_add_u32 v{BWL}, 32, v{T4}")
    A.e(f"v_lshl_add_u32 v{BWL}, v{BWL}, 3, v{T2}")
    A.label(f"{name}_addr_done")
    for r in range(80): A.e(f"v_mov_b32 v{r}, 0")

    def read_list(buf, st, ks):
        if OPT.get("noread"): return []
        xs = (st//2) % 3; ws = st % 3; kq = 2*(st % 2) + ks
        L = []
        for q in range(2):
            L.append(f"ds_read_b64_tr_b16 {vr(WM[buf]+2*q,2)}, v{BWM} offset:{ws*WSLOT + ks*16*WROW + q*4*WROW}")
        for T in range(4):
            L.append(f"ds_read_b128 {vr(XF[buf][T],4)}, v{BX[kq]} offset:{xs*XSLOT + 4096*T}")
        for q in range(2):
            L.append(f"ds_read_b64_tr_b16 {vr(WL[buf]+2*q,2)}, v{BWL} offset:{ws*WSLOT + ks*16*WROW + q*4*WROW}")
        L.append(f"ds_read_b128 {vr(XL[buf],4)}, v{BXL[kq]} offset:{xs*XSLOT}")
        return L
    def mfma_list(buf, vtype):
        L = []
        for T in range(4):
            if vtype: L.append(f"v_mfma_f32_32x32x16_bf16 {vr(ACC[T],16)}, {vr(XF[buf][T],4)}, {vr(WM[buf],4)}, {vr(ACC[T],16)}")
            else:     L.append(f"v_mfma_f32_32x32x16_bf16 {vr(ACC[T],16)}, {vr(WM[buf],4)}, {vr(XF[buf][T],4)}, {vr(ACC[T],16)}")
        if vtype: L.append(f"v_mfma_f32_32x32x16_bf16 {vr(ACL,16)}, {vr(XL[buf],4)}, {vr(WL[buf],4)}, {vr(ACL,16)}")
        else:     L.append(f"v_mfma_f32_32x32x16_bf16 {vr(ACL,16)}, {vr(WL[buf],4)}, {vr(XL[buf],4)}, {vr(ACL,16)}")
        if OPT.get("nomfma"): L = ["s_nop 0"]*5
        return L
    def interleave(m, r, d):
        r = list(r); dd = dict(d)
        need = [3, 4, 5, 6, 9]
        for i in range(5):
            A.e(f"s_waitcnt lgkmcnt({9 - need[i] + min(3*i, 9)})")
            if i in dd: emit_dma(dd[i], m[i])
            else: A.e(m[i])
            for _ in range(3):
                if r: A.e(r.pop(0))
        for x in r: A.e(x)
    def iter_regs(last):
        A.e(f"s_mov_b32 s{WS[0]}, s73")
        chunk_regs(XS[0], WS[1], WS[2]); inc46()
        chunk_regs(XS[1], WS[3], WS[4]); inc46()
        chunk_regs(XS[2], WS[5], 73); inc46()
        for r in (XS[1], XS[2], WS[3], WS[4], WS[5]): A.e(f"s_add_u32 s{r}, s{r}, s56")
    A.e("s_mov_b32 s56, 0"); A.e(f"s_mov_b32 s55, {SCR}")
    A.e("s_mov_b32 s47, 0")
    iter_regs(False)
    A.e(f"s_waitcnt vmcnt({13 if OPT.get('pf') else 10})")
    A.e("s_barrier")
    stamp(A, 2)
    for x in read_list(0, 0, 0): A.e(x)
    A.e("s_cmp_eq_u32 s26, 2")
    A.e(f"s_cbranch_scc1 {name}_vloop")
    for vtype in (0, 1):
        L = f"{name}_{'v' if vtype else 'q'}loop"
        A.raw(".p2align 3")
        A.label(L)
        for st in range(6):
            c = st // 2; sub = st % 2
            interleave(mfma_list(0, vtype), read_list(1, st, 1),
                       [(1, xd(f"s{XS[c]}", (c+2) % 3, 2*sub, c >= 1)), (3, xd(f"s{XS[c]}", (c+2) % 3, 2*sub+1, c >= 1))])
            A.e("s_waitcnt vmcnt(7) lgkmcnt(0)")
            A.e("s_barrier")
            interleave(mfma_list(1, vtype), read_list(0, st+1, 0),
                       [(0, wd(f"s{WS[st]}", st % 3, 0, st >= 3)), (2, wd(f"s{WS[st]}", st % 3, 1, st >= 3)), (4, wd(f"s{WS[st]}", st % 3, 2, st >= 3))])
        A.e("s_add_u32 s47, s47, 1")
        A.e("s_cmp_eq_u32 s47, 2")
        A.e("s_cselect_b32 s56, 0x7ff00000, 0")
        iter_regs(False)
        A.e("s_cmp_lt_u32 s47, 3")
        A.e(f"s_cbranch_scc1 {L}")
        A.e(f"s_branch {name}_epi_{'v' if vtype else 'q'}")
    A.label(f"{name}_epi_q")
    stamp(A, 3)
    A.e("s_waitcnt lgkmcnt(0)")
    A.e("s_cmp_eq_u32 s26, 0")
    def csel(d, a, b):
        A.e(f"s_mov_b32 s55, {a}"); A.e(f"s_mov_b32 s56, {b}"); A.e(f"s_cselect_b32 s{d}, s55, s56")
    csel(30, LY.Q_OFF, LY.KV_OFF); csel(31, LY.Q_BYTES, LY.KV_BYTES)
    csel(48, 64*1152, 64*LY.KVTILE); csel(49, 1152, LY.KVTILE); csel(50, f32bits(LY.QSCALE), f32bits(1.0))
    A.e("s_add_u32 s20, s8, s30")
    A.e("s_addc_u32 s21, s9, 0")
    A.e("s_mov_b32 s22, s31")
    A.e("s_mov_b32 s23, 0x00020000")
    A.e("s_lshl_b32 s51, s27, 3")
    A.e("s_lshl_b32 s52, s28, 1")
    A.e("s_add_u32 s52, s52, s51")
    A.e("s_mul_i32 s52, s52, s48")
    A.e("s_lshl_b32 s53, s24, 2")
    A.e("s_mul_i32 s53, s53, s49")
    A.e("s_add_u32 s52, s52, s53")
    A.e(f"v_lshlrev_b32 v{T0}, 4, v{LANE}")
    for T in range(4):
        a = ACC[T]
        for r in range(16): A.e(f"v_mul_f32 v{a+r}, s50, v{a+r}")
        for i in range(8): A.e(f"v_cvt_pk_bf16_f32 v{a+i}, v{a+2*i}, v{a+2*i+1}")
        A.e(f"buffer_store_dwordx4 {vr(a,4)}, v{T0}, s[20:23], s52 offen")
        A.e("s_add_u32 s54, s52, s48")
        A.e(f"buffer_store_dwordx4 {vr(a+4,4)}, v{T0}, s[20:23], s54 offen")
        A.e("s_add_u32 s52, s52, s49")
    for r in range(8): A.e(f"v_mul_f32 v{ACL+r}, s50, v{ACL+r}")
    for i in range(4): A.e(f"v_cvt_pk_bf16_f32 v{ACL+i}, v{ACL+2*i}, v{ACL+2*i+1}")
    A.e("s_mul_i32 s52, s51, s48")
    A.e("s_lshl_b32 s53, s24, 2")
    A.e("s_add_u32 s53, s53, s28")
    A.e("s_mul_i32 s53, s53, s49")
    A.e("s_add_u32 s52, s52, s53")
    A.e("s_add_u32 s52, s52, 1024")
    A.e(f"v_lshrrev_b32 v{T1}, 5, v{LANE}")
    A.e("s_lshl_b32 s53, s48, 1")
    A.e(f"v_mul_lo_u32 v{T1}, v{T1}, s53")
    A.e(f"v_and_b32 v{T2}, 31, v{LANE}")
    A.e(f"v_lshl_add_u32 v{T1}, v{T2}, 2, v{T1}")
    for i in range(4):
        A.e(f"s_mul_i32 s53, s48, {4*(i//2) + (i%2)}")
        A.e("s_add_u32 s53, s53, s52")
        A.e(f"buffer_store_dword v{ACL+i}, v{T1}, s[20:23], s53 offen")
    stamp(A, 4)
    stamp_dump(A, 8, 28, 4)
    RT["wave"]=28; rt_exit(A, 0, 4); A.e("s_endpgm")
    A.label(f"{name}_epi_v")
    stamp(A, 3)
    A.e("s_waitcnt lgkmcnt(0)")
    make_srd(A, 20, 8, 9, str(LY.KV_OFF), LY.KV_BYTES)
    HS = 64*LY.KVTILE
    def voff(dst):
        A.e(f"v_mul_u32_u24 v{T1}, 3641, v{T0}")
        A.e(f"v_lshrrev_b32 v{T1}, 16, v{T1}")
        A.e(f"v_mul_u32_u24 v{T2}, 18, v{T1}")
        A.e(f"v_sub_u32 v{T2}, v{T0}, v{T2}")
        A.e(f"v_lshrrev_b32 v{T3}, 5, v{LANE}")
        A.e(f"v_mul_u32_u24 v{T3}, 18, v{T3}")
        A.e(f"v_add_u32 v{T2}, v{T2}, v{T3}")
        A.e(f"v_add_u32 v{T1}, s51, v{T1}")
        A.e(f"s_mov_b32 s53, {HS}")
        A.e(f"v_mul_lo_u32 v{T1}, v{T1}, s53")
        A.e(f"v_lshl_add_u32 v{dst}, v{T2}, 4, v{T1}")
    A.e("s_lshl_b32 s51, s27, 3")
    A.e(f"v_and_b32 v{T0}, 31, v{LANE}")
    A.e("s_lshl_b32 s31, s28, 5")
    A.e(f"v_add_u32 v{T0}, s31, v{T0}")
    voff(AX[0])
    A.e("s_lshl_b32 s53, s24, 2")
    A.e(f"s_mul_i32 s52, s53, {LY.KVTILE}")
    A.e("s_add_u32 s52, s52, 1152")
    for T in range(4):
        a = ACC[T]
        for i in range(8): A.e(f"v_cvt_pk_bf16_f32 v{a+i}, v{a+2*i}, v{a+2*i+1}")
        A.e(f"buffer_store_dwordx4 {vr(a,4)}, v{AX[0]}, s[20:23], s52 offen")
        A.e(f"buffer_store_dwordx4 {vr(a+4,4)}, v{AX[0]}, s[20:23], s52 offen offset:{LY.VSZ}")
        A.e(f"s_add_u32 s52, s52, {LY.KVTILE}")
    A.e(f"v_and_b32 v{T0}, 31, v{LANE}")
    A.e(f"v_add_u32 v{T0}, 128, v{T0}")
    voff(AX[1])
    A.e(f"v_and_b32 v{T0}, 16, v{LANE}")
    A.e(f"v_cmp_eq_u32 vcc, 0, v{T0}")
    A.e(f"v_mov_b32 v{T3}, 0x7ffffff0")
    A.e("s_nop 0")
    A.e(f"v_cndmask_b32 v{AX[1]}, v{T3}, v{AX[1]}, vcc")
    for i in range(8): A.e(f"v_cvt_pk_bf16_f32 v{ACL+i}, v{ACL+2*i}, v{ACL+2*i+1}")
    A.e("s_lshl_b32 s53, s24, 2")
    A.e("s_add_u32 s53, s53, s28")
    A.e(f"s_mul_i32 s52, s53, {LY.KVTILE}")
    A.e("s_add_u32 s52, s52, 1152")
    A.e(f"buffer_store_dwordx4 {vr(ACL,4)}, v{AX[1]}, s[20:23], s52 offen")
    A.e(f"buffer_store_dwordx4 {vr(ACL+4,4)}, v{AX[1]}, s[20:23], s52 offen offset:{LY.VSZ}")
    A.e(f"v_lshrrev_b32 v{T0}, 2, v{LANE}")
    A.e(f"v_add_u32 v{T0}, s51, v{T0}")
    A.e(f"s_mov_b32 s53, {HS}")
    A.e(f"v_mul_lo_u32 v{T0}, v{T0}, s53")
    A.e(f"v_bfe_u32 v{T1}, v{LANE}, 1, 1")
    A.e(f"v_mul_u32_u24 v{T1}, {LY.VSZ}, v{T1}")
    A.e(f"v_and_b32 v{T2}, 1, v{LANE}")
    A.e(f"v_lshl_add_u32 v{T1}, v{T2}, 4, v{T1}")
    A.e(f"v_add3_u32 v{T0}, v{T0}, v{T1}, 0")
    A.e(f"v_add_u32 v{T0}, 576, v{T0}")
    A.e(f"v_cmp_eq_u32 vcc, 0, v{T2}")
    A.e(f"v_mov_b32 v4, 0x3f803f80")
    A.e("v_cndmask_b32 v0, 0, v4, vcc")
    A.e(f"v_cmp_gt_u32 vcc, 32, v{LANE}")
    for r in range(1, 4): A.e(f"v_mov_b32 v{r}, v0")
    A.e(f"v_cndmask_b32 v{T0}, v{T3}, v{T0}, vcc")
    A.e(f"buffer_store_dwordx4 v[0:3], v{T0}, s[20:23], s52 offen")
    stamp(A, 4)
    stamp_dump(A, 8, 28, 4)
    RT["wave"]=28; rt_exit(A, 0, 4); A.e("s_endpgm")
    return 164
```

```python
import sys; sys.path.insert(0, "work")
from asmlib import *
import layout as LY

def gen_attn(A, name, stamps=False, opt=None, helper_tail=None):
    opt = opt or {}
    def stamp(i):
        if stamps: A.e(f"s_memtime s[{60+2*i}:{61+2*i}]")
    SA, SB, OA, OB = 0, 16, 32, 48
    P0, P1 = 64, 68
    Q1A, Q2A, Q1B, Q2B = 72, 76, 80, 84
    K1 = [88, 96]; K2 = [92, 100]
    V0 = [104, 112]; V1 = [108, 116]
    AK1, AK2, AV = 120, 121, 122
    T0, T1, T2, T3, LANE = 123, 124, 125, 126, 127
    NV = 128
    TILE = LY.KVTILE; VOFF = 1152; VSZ = LY.VSZ
    def mf(D, Aop, Bop, C):
        c = "0" if C is None else vr(C, 16)
        if opt.get("k8") and Aop in K2:
            return f"v_mfma_f32_32x32x8_bf16 {vr(D,16)}, {vr(Aop,2)}, {vr(Bop,2)}, {c}"
        return f"v_mfma_f32_32x32x16_bf16 {vr(D,16)}, {vr(Aop,4)}, {vr(Bop,4)}, {c}"
    kernel_begin(A, name)
    A.e("s_cmp_ge_u32 s2, 256")
    A.e(f"s_cbranch_scc1 {name}_end")
    A.e("s_load_dwordx2 s[4:5], s[0:1], 112")
    rt_entry(A)
    stamp(0)
    if stamps: A.e("s_memrealtime s[76:77]")
    A.e("s_and_b32 s6, s2, 7")
    A.e("s_lshl_b32 s6, s6, 2")
    A.e("s_lshr_b32 s7, s2, 3")
    A.e("s_and_b32 s8, s7, 3")
    A.e("s_add_u32 s6, s6, s8")
    A.e("s_lshr_b32 s7, s2, 5")
    A.e(f"v_and_b32 v{LANE}, 63, v0")
    A.e(f"v_lshrrev_b32 v{T0}, 6, v0")
    A.e(f"v_and_b32 v{T1}, 31, v{LANE}")
    A.e(f"v_readfirstlane_b32 s9, v{T0}")
    A.e(f"v_lshlrev_b32 v{T0}, 4, v{LANE}")
    A.e(f"v_lshlrev_b32 v{T2}, 2, v{T1}")
    A.e("s_cmp_ge_u32 s9, 4")
    A.e(f"s_cbranch_scc1 {name}_helper")
    A.e(f"s_mul_i32 s13, s6, {64*1152}")
    A.e("s_lshl_b32 s14, s7, 3")
    A.e("s_lshl_b32 s15, s9, 1")
    A.e("s_add_u32 s14, s14, s15")
    A.e("s_mul_i32 s15, s14, 1152")
    A.e("s_add_u32 s13, s13, s15")
    A.e(f"s_add_u32 s13, s13, {LY.Q_OFF}")
    A.e("s_mov_b32 s36, 9")
    A.e("s_waitcnt lgkmcnt(0)")
    make_srd(A, 20, 4, 5, "s13", 2*1152)
    A.e(f"buffer_load_dwordx4 {vr(Q1A,4)}, v{T0}, s[20:23], 0 offen")
    A.e(f"buffer_load_dwordx4 {vr(Q1B,4)}, v{T0}, s[20:23], 0 offen offset:1152")
    A.e(f"buffer_load_dword v{Q2A}, v{T2}, s[20:23], 0 offen offset:1024")
    A.e(f"buffer_load_dword v{Q2B}, v{T2}, s[20:23], 0 offen offset:{1152+1024}")
    make_srd(A, 24, 4, 5, str(LY.O_OFF), LY.O_BYTES)
    A.e(f"v_lshrrev_b32 v{T3}, 5, v{LANE}")
    A.e(f"v_cmp_gt_u32 s[34:35], 32, v{LANE}")
    ones = 0x3F803F80
    for b in range(2):
        A.e(f"v_mov_b32 v{K2[b]+1}, 0x{ones:x}")
        A.e(f"v_mov_b32 v{K2[b]+2}, 0")
        A.e(f"v_mov_b32 v{K2[b]+3}, 0")
    for qq in (Q2A, Q2B):
        for r in (1, 2, 3): A.e(f"v_mov_b32 v{qq+r}, 0")
    A.label(f"{name}_rerun")
    A.e(f"v_and_b32 v{T1}, 31, v{LANE}")
    A.e(f"v_lshlrev_b32 v{AK1}, 4, v{LANE}")
    A.e(f"v_lshlrev_b32 v{AK2}, 2, v{T1}")
    A.e(f"v_lshrrev_b32 v{T3}, 5, v{LANE}")
    A.e(f"v_mul_u32_u24 v{AV}, 18, v{T3}")
    A.e(f"v_add_u32 v{AV}, v{AV}, v{T1}")
    A.e(f"v_cmp_gt_u32 vcc, 18, v{T1}")
    for r in range(4): A.e(f"v_mov_b32 v{V1[1]+r}, 0")
    A.e(f"v_min_u32 v{T1}, 19, v{T1}")
    A.e(f"v_add_u32 v{T1}, 18, v{T1}")
    A.e(f"v_cndmask_b32 v{AV}, v{T1}, v{AV}, vcc")
    A.e(f"v_lshlrev_b32 v{AV}, 4, v{AV}")
    for r in range(16):
        A.e(f"v_mov_b32 v{OA+r}, 0"); A.e(f"v_mov_b32 v{OB+r}, 0")
    for r in range(4): A.e(f"v_mov_b32 v{P1+r}, 0")
    A.e("s_cmp_eq_u32 s36, 0")
    A.e(f"s_cbranch_scc1 {name}_pipe_start")
    A.e("s_waitcnt vmcnt(0)")
    A.e("s_barrier")
    stamp(2)
    A.e(f"ds_read_b128 {vr(K1[0],4)}, v{AK1}")
    A.e(f"ds_read_b32 v{K2[0]}, v{AK2} offset:1024")
    A.e(f"v_cndmask_b32 v{Q2A}, 0, v{Q2A}, s[34:35]")
    A.e(f"v_cndmask_b32 v{Q2B}, 0, v{Q2B}, s[34:35]")
    A.e("s_waitcnt lgkmcnt(0)")
    A.e(mf(SA, K1[0], Q1A, None))
    A.e(mf(SB, K1[0], Q1B, None))
    A.e(mf(SA, K2[0], Q2A, SA))
    A.e(mf(SB, K2[0], Q2B, SB))
    A.e("s_nop 9")
    def setM(S, Q2, have_max=False):
        if not have_max:
            A.e(f"v_max3_f32 v{T0}, v{S}, v{S+1}, v{S+2}")
            for r in range(3, 15, 2):
                A.e(f"v_max3_f32 v{T0}, v{T0}, v{S+r}, v{S+r+1}")
            A.e(f"v_max_f32 v{T0}, v{T0}, v{S+15}")
        else:
            A.e(f"v_mov_b32 v{T0}, v{S}")
        A.e(f"v_cvt_pk_bf16_f32 v{T1}, v{T0}, v{T0}")
        A.e(f"v_and_b32 v{T1}, 0xffff0000, v{T1}")
        A.e(f"v_sub_f32 v{T2}, v{T0}, v{T1}")
        A.e(f"v_cvt_pk_bf16_f32 v{T1}, -v{T1}, -v{T2}")
        A.e(f"v_cndmask_b32 v{Q2+1}, 0, v{T1}, s[34:35]")
    setM(SA, Q2A); setM(SB, Q2B)
    A.label(f"{name}_pipe_start")
    A.e(f"ds_read_b128 {vr(K1[0],4)}, v{AK1}")
    A.e(f"ds_read_b32 v{K2[0]}, v{AK2} offset:1024")
    A.e(f"ds_read_b128 {vr(K1[1],4)}, v{AK1} offset:{TILE}")
    A.e(f"ds_read_b32 v{K2[1]}, v{AK2} offset:{TILE+1024}")
    A.e(f"ds_read_b128 {vr(V0[0],4)}, v{AV} offset:{VOFF}")
    A.e(f"ds_read_b128 {vr(V1[0],4)}, v{AV} offset:{VOFF+VSZ}")
    for r in range(16): A.e(f"v_mov_b32 v{SB+r}, 0")
    A.e("s_waitcnt lgkmcnt(4)")
    A.e(mf(SA, K1[0], Q1A, None))
    A.e(mf(SA, K2[0], Q2A, SA))
    A.e("s_mov_b32 s31, 0")
    A.e("s_nop 7")
    stamp(3)
    UN = opt.get("unroll", 8)
    A.raw(".p2align 3")
    A.label(f"{name}_loop")
    for tt in range(UN):
        if tt % 4 == 0:
            if tt == 4: A.e("s_add_u32 s31, s31, 1")
            A.e("s_bitcmp1_b32 s36, s31")
            A.e(f"s_cbranch_scc1 {name}_dobar{tt}")
            A.label(f"{name}_body{tt}")
        b = tt % 2; nb = 1 - b
        off = tt*TILE
        def E(S, r): return f"v_exp_f32 v{S+r}, v{S+r}"
        def C(P, S, r): return f"v_cvt_pk_bf16_f32 v{P}, v{S+r}, v{S+r+1}"
        lds = not opt.get("nolds")
        slots = [
            ([C(P1+2, SB, 12), C(P1+3, SB, 14)], (SA, 0),  mf(SB, K1[b], Q1B, None), None),
            ([C(P0+0, SA, 0),  C(P0+1, SA, 2)],  (SA, 4),  mf(SB, K2[b], Q2B, SB), None),
            ([C(P0+2, SA, 4),  C(P0+3, SA, 6)],  (SA, 8),  mf(OB, V1[nb], P1, OB),
                 f"ds_read_b128 {vr(K1[b],4)}, v{AK1} offset:{off+2*TILE}"),
            ([C(P1+0, SA, 8),  C(P1+1, SA, 10)], (SA, 12), mf(OA, V0[b], P0, OA),
                 f"ds_read_b32 v{K2[b]}, v{AK2} offset:{off+2*TILE+1024}"),
            ([C(P1+2, SA, 12), C(P1+3, SA, 14)], (SB, 0),  mf(SA, K1[nb], Q1A, None),
                 f"ds_read_b128 {vr(V0[nb],4)}, v{AV} offset:{off+TILE+VOFF}"),
            ([C(P0+0, SB, 0),  C(P0+1, SB, 2)],  (SB, 4),  mf(SA, K2[nb], Q2A, SA),
                 f"ds_read_b128 {vr(V1[nb],4)}, v{AV} offset:{off+TILE+VOFF+VSZ}"),
            ([C(P0+2, SB, 4),  C(P0+3, SB, 6)],  (SB, 8),  mf(OA, V1[b], P1, OA), None),
            ([C(P1+0, SB, 8),  C(P1+1, SB, 10)], (SB, 12), mf(OB, V0[b], P0, OB), None),
        ]
        for si, (cv, (S, r0), m, ex) in enumerate(slots):
            A.e(cv[0]); A.e(cv[1])
            if si == 2 and lds:
                A.e(E(S, r0)); A.e("s_waitcnt lgkmcnt(0)"); A.e(E(S, r0+1).replace("v_exp_f32", "v_exp_f32_e64"))
            else:
                A.e(E(S, r0)); A.e(E(S, r0+1))
            A.e(m)
            if ex and lds: A.e(ex)
            A.e(E(S, r0+2))
            A.e(E(S, r0+3))
    A.e(f"v_add_u32 v{AK1}, {UN*TILE}, v{AK1}")
    A.e(f"v_add_u32 v{AK2}, {UN*TILE}, v{AK2}")
    A.e(f"v_add_u32 v{AV}, {UN*TILE}, v{AV}")
    A.e("s_add_u32 s31, s31, 1")
    A.e("s_cmp_lt_u32 s31, 16")
    A.e(f"s_cbranch_scc1 {name}_loop")
    stamp(4)
    A.e(f"v_cvt_pk_bf16_f32 v{P1+2}, v{SB+12}, v{SB+13}")
    A.e(f"v_cvt_pk_bf16_f32 v{P1+3}, v{SB+14}, v{SB+15}")
    A.e("s_mov_b32 s40, 0x53800000")
    A.e(f"v_mov_b32 v{OA+11}, v{OA+10}")
    A.e(mf(OB, V1[1], P1, OB))
    A.e("s_nop 0")
    A.e(f"v_permlane32_swap_b32 v{OA+10}, v{OA+11}")
    A.e("s_nop 1")
    A.e(f"v_rcp_f32 v{T2}, v{OA+10}")
    A.e(f"v_cmp_ge_f32 vcc, s40, v{OA+10}")
    for r in range(10): A.e(f"v_mul_f32 v{SA+r}, v{OA+r}, v{T2}")
    for i in range(5): A.e(f"v_cvt_pk_bf16_f32 v{SA+i}, v{SA+2*i}, v{SA+2*i+1}")
    A.e("s_lshl_b32 s41, s6, 6")
    A.e("s_add_u32 s41, s41, s14")
    A.e("s_lshl_b32 s42, s41, 10")
    A.e("s_lshl_b32 s43, s41, 7")
    A.e(f"s_add_u32 s43, s43, {LY.O1_BYTES}")
    A.e(f"v_lshlrev_b32 v{T0}, 4, v{LANE}")
    A.e(f"v_lshlrev_b32 v{T1}, 2, v{LANE}")
    A.e(f"v_mov_b32 v{OB+11}, v{OB+10}")
    A.e("s_nop 1")
    A.e(f"v_permlane32_swap_b32 v{OB+10}, v{OB+11}")
    A.e("s_nop 1")
    A.e(f"v_cmp_ge_f32 s[44:45], s40, v{OB+10}")
    A.e(f"v_rcp_f32 v{T2}, v{OB+10}")
    A.e("s_nop 1")
    A.e("s_and_b64 vcc, vcc, s[44:45]")
    A.e("s_cmp_eq_u32 s36, 0")
    A.e(f"s_cbranch_scc1 {name}_fin")
    A.e("s_cmp_eq_u64 vcc, -1")
    A.e(f"s_cbranch_scc0 {name}_fallback")
    A.label(f"{name}_fin")
    A.e(f"buffer_store_dwordx4 {vr(SA,4)}, v{T0}, s[24:27], s42 offen")
    for r in range(10): A.e(f"v_mul_f32 v{SB+r}, v{OB+r}, v{T2}")
    for i in range(5): A.e(f"v_cvt_pk_bf16_f32 v{SB+i}, v{SB+2*i}, v{SB+2*i+1}")
    A.e(f"buffer_store_dwordx4 {vr(SB,4)}, v{T0}, s[24:27], s42 offen offset:1024")
    A.e("s_mov_b64 exec, s[34:35]")
    A.e(f"buffer_store_dword v{SA+4}, v{T1}, s[24:27], s43 offen")
    A.e(f"buffer_store_dword v{SB+4}, v{T1}, s[24:27], s43 offen offset:128")
    def dump():
        stamp(6)
        A.e("s_mov_b64 exec, -1")
        A.e("s_waitcnt lgkmcnt(0) vmcnt(0)")
        stamp(7)
        A.e("s_memrealtime s[78:79]")
        A.e("s_waitcnt lgkmcnt(0)")
        A.e("s_sub_u32 s72, s78, s76")
        A.e("s_mov_b32 s73, 0")
        A.e("s_add_u32 s72, s72, s60")
        A.e("s_addc_u32 s73, s61, 0")
        make_srd(A, 44, 4, 5, str(64<<20), 1<<20)
        A.e("s_lshl_b32 s48, s2, 3")
        A.e("s_add_u32 s48, s48, s9")
        A.e("s_lshl_b32 s48, s48, 6")
        for i in range(16): A.e(f"v_mov_b32 v{i}, s{60+i}")
        A.e("v_mov_b32 v16, s48")
        A.e("s_mov_b64 exec, 1")
        for i in range(4):
            A.e(f"buffer_store_dwordx4 v[{4*i}:{4*i+3}], v16, s[44:47], 0 offen offset:{16*i}")
    if stamps: dump()
    RT["wave"]=9; rt_exit(A, 1, 8)
    A.label(f"{name}_end")
    A.e("s_endpgm")
    for tt in range(0, UN, 4):
        A.label(f"{name}_dobar{tt}")
        A.e("s_barrier")
        A.e(f"s_branch {name}_body{tt}")
    A.label(f"{name}_fallback")
    MA, MB = P0, P0+1
    A.e(f"v_mov_b32 v{MA}, 0xff7fffff")
    A.e(f"v_mov_b32 v{MB}, 0xff7fffff")
    for qq in (Q2A, Q2B): A.e(f"v_mov_b32 v{qq+1}, 0")
    A.e(f"v_and_b32 v{T1}, 31, v{LANE}")
    A.e(f"v_lshlrev_b32 v{T0}, 4, v{LANE}")
    A.e(f"v_lshlrev_b32 v{T2}, 2, v{T1}")
    A.e("s_mov_b32 s31, 0")
    A.label(f"{name}_mloop")
    A.e(f"ds_read_b128 {vr(K1[1],4)}, v{T0}")
    A.e(f"ds_read_b32 v{K2[1]}, v{T2} offset:1024")
    A.e("s_waitcnt lgkmcnt(0)")
    A.e(mf(SA, K1[1], Q1A, None))
    A.e(mf(SB, K1[1], Q1B, None))
    A.e(mf(SA, K2[1], Q2A, SA))
    A.e(mf(SB, K2[1], Q2B, SB))
    A.e("s_nop 15")
    for S, M in ((SA, MA), (SB, MB)):
        for r in range(0, 16, 2):
            A.e(f"v_max3_f32 v{M}, v{M}, v{S+r}, v{S+r+1}")
    A.e(f"v_add_u32 v{T0}, {TILE}, v{T0}")
    A.e(f"v_add_u32 v{T2}, {TILE}, v{T2}")
    A.e("s_add_u32 s31, s31, 1")
    A.e("s_cmp_lt_u32 s31, 64")
    A.e(f"s_cbranch_scc1 {name}_mloop")
    for M, S in ((MA, SA), (MB, SB)):
        A.e(f"v_mov_b32 v{T1}, v{M}")
        A.e("s_nop 1")
        A.e(f"v_permlane32_swap_b32 v{M}, v{T1}")
        A.e("s_nop 1")
        A.e(f"v_max_f32 v{S}, v{M}, v{T1}")
    setM(SA, Q2A, True); setM(SB, Q2B, True)
    A.e("s_mov_b32 s36, 0")
    A.e(f"s_branch {name}_rerun")
    A.label(f"{name}_helper")
    A.e(f"s_mul_i32 s12, s6, {64*TILE}")
    A.e(f"s_add_u32 s12, s12, {LY.KV_OFF}")
    A.e("s_sub_u32 s10, s9, 4")
    A.e("s_lshl_b32 s28, s10, 10")
    A.e("s_waitcnt lgkmcnt(0)")
    make_srd(A, 16, 4, 5, "s12", 64*TILE)
    def dma(s):
        A.e(f"s_add_u32 s29, s28, {4096*s}")
        A.e("s_mov_b32 m0, s29")
        A.e("s_nop 0")
        A.e(f"buffer_load_dwordx4 v{T0}, s[16:19], s29 offen lds")
    for s in range(12): dma(s)
    A.e("s_waitcnt vmcnt(10)")
    A.e("s_barrier")
    for s in range(12, 20): dma(s)
    A.e("s_waitcnt vmcnt(12)")
    A.e("s_barrier")
    for s in range(20, 37): dma(s)
    if helper_tail and opt.get("earlyconv"):
        helper_tail(A, name, True)
    else:
        A.e("s_waitcnt vmcnt(0)")
        A.e("s_barrier")
        stamp(3)
        if helper_tail: helper_tail(A, name, False)
    if stamps:
        stamp(2); stamp(4); stamp(5); stamp(1)
        dump()
    RT["wave"]=9; rt_exit(A, 1, 8)
    A.e("s_endpgm")
    kernel_end(A, name, NV)
```

```python
import sys; sys.path.insert(0, "work")
from asmlib import *
import layout as LY
COPT = {}
def conv_tail(A, name, prio=None, do_b3=False):
    LANE = 127
    ACC = 0
    BFS = [32, 64]
    AFS = [96, 100, 104, 108]
    VA, VB, T0, T1, T2 = 112, 113, 114, 115, 116
    A.e("s_lshl_b32 s40, s10, 8")
    A.e("s_add_u32 s40, s40, s2")
    A.e("s_cmp_ge_u32 s40, 576")
    A.e(f"s_cbranch_scc1 {name}_cpf")
    if prio is not None: A.e(f"s_setprio {prio}")
    A.e("s_load_dwordx2 s[60:61], s[0:1], 64")
    A.e(f"s_mul_i32 s41, s40, {LY.KR_ROW}")
    A.e(f"s_add_u32 s41, s41, {LY.KR_OFF}")
    make_srd(A, 44, 4, 5, "s41", LY.KR_ROW)
    A.e(f"s_mul_i32 s41, s40, {LY.UT_ROW}")
    A.e(f"s_add_u32 s41, s41, {LY.UT_OFF}")
    make_srd(A, 48, 4, 5, "s41", LY.UT_ROW)
    A.e("s_lshl_b32 s41, s40, 12")
    A.e(f"s_add_u32 s41, s41, {LY.YT_OFF}")
    make_srd(A, 52, 4, 5, "s41", 4096)
    A.e(f"v_and_b32 v{T0}, 15, v{LANE}")
    A.e(f"v_lshrrev_b32 v{T1}, 4, v{LANE}")
    A.e(f"v_lshlrev_b32 v{VB}, 5, v{T0}")
    A.e(f"v_lshl_add_u32 v{VB}, v{T1}, 4, v{VB}")
    A.e(f"v_add_u32 v{VB}, 32, v{VB}")
    A.e(f"v_lshlrev_b32 v{T2}, 3, v{T1}")
    A.e(f"v_sub_u32 v{T2}, v{T2}, v{T0}")
    A.e(f"v_add_u32 v{T2}, 16, v{T2}")
    A.e(f"v_lshlrev_b32 v{VA}, 1, v{T2}")
    for r in range(32): A.e(f"v_mov_b32 v{r}, 0")
    issued = []
    def bload(set_, rho_off, k):
        return f"buffer_load_dwordx4 {vr(BFS[set_]+4*k,4)}, v{VB}, s[48:51], s{58+rho_off} offen offset:{512*k}"
    def aload(buf, rho_off, mu):
        return [f"s_sub_u32 s62, s{64+rho_off}, {512*mu}", f"buffer_load_dwordx4 {vr(AFS[buf],4)}, v{VA}, s[44:47], s62 offen"]
    BS = {0: 58, 1: 59, 2: 67}; AS = {0: 64, 1: 65, 2: 66}
    def bload(set_, ro, k): return f"buffer_load_dwordx4 {vr(BFS[set_]+4*k,4)}, v{VB}, s[48:51], s{BS[ro]} offen offset:{512*k}"
    def aload(buf, ro, mu): return [f"s_sub_u32 s62, s{AS[ro]}, {512*mu}", f"buffer_load_dwordx4 {vr(AFS[buf],4)}, v{VA}, s[44:47], s62 offen"]
    def setrho():
        A.e("s_sub_u32 s58, 448, s56"); A.e("s_sub_u32 s59, 384, s56"); A.e("s_sub_i32 s67, 320, s56"); A.e("s_max_i32 s67, s67, 0")
        A.e("s_sub_u32 s64, 4032, s56"); A.e("s_sub_u32 s65, 3968, s56"); A.e("s_sub_u32 s66, 3904, s56")
    A.e("s_mov_b32 s56, 0")
    setrho()
    for k in range(8): A.e(bload(0, 0, k))
    for mu in range(3):
        for l in aload(mu, 0, mu): A.e(l)
    A.e("s_mov_b32 s63, 0")
    A.label(f"{name}_cl")
    q = [("B", 0)]*8 + [("A", 0), ("A", 1), ("A", 2)]
    for x in range(2):
        if x == 1 and do_b3:
            A.e("s_cmp_lg_u32 s63, 0")
            A.e(f"s_cbranch_scc1 {name}_nob3")
            A.e("s_barrier")
            A.label(f"{name}_nob3")
        for mu in range(8):
            si = 8*x + mu
            last = max(i for i, t in enumerate(q) if t == ("A", si) or t == ("B", x))
            A.e(f"s_waitcnt vmcnt({len(q) - 1 - last})")
            q = q[last+1:]
            pend = []
            nsi = si + 3
            if nsi < 16: pend.append((aload(nsi % 4, nsi // 8, nsi % 8), ("A", nsi)))
            else: pend.append((aload(nsi % 4, 2, nsi - 16), ("A", nsi - 16)))
            if 2 <= mu <= 5:
                for k in (2*(mu-2), 2*(mu-2)+1):
                    if x == 0: pend.append(([bload(1, 1, k)], ("B", 1)))
                    else: pend.append(([bload(0, 2, k)], ("Bn", 0)))
            ab = AFS[si % 4]
            for k in range(8-mu):
                if not COPT.get("nomfma"):
                    A.e(f"v_mfma_f32_16x16x32_bf16 {vr(ACC+4*(mu+k),4)}, {vr(ab,4)}, {vr(BFS[x]+4*k,4)}, {vr(ACC+4*(mu+k),4)}")
                if pend:
                    l, t = pend.pop(0)
                    for y in l: A.e(y)
                    q.append(t)
            for l, t in pend:
                for y in l: A.e(y)
                q.append(t)
    tags = [("B", 0) if t == ("Bn", 0) else t for t in q]
    assert tags[-2:] == [("A", 1), ("A", 2)] and all(t in (("B", 0), ("A", 0)) for t in tags[:-2]), tags
    COPT["order"] = tags
    A.e("s_add_u32 s56, s56, 128")
    setrho()
    A.e("s_add_u32 s63, s63, 1")
    A.e("s_cmp_lt_u32 s63, 4")
    A.e(f"s_cbranch_scc1 {name}_cl")
    A.e("s_waitcnt vmcnt(0) lgkmcnt(0)")
    make_srd(A, 44, 60, 61, "0", 1152)
    A.e("s_lshl_b32 s41, s40, 1")
    A.e(f"v_mov_b32 v{T2}, s41")
    A.e(f"buffer_load_ushort v{T2}, v{T2}, s[44:47], 0 offen")
    A.e(f"v_lshlrev_b32 v{VB}, 5, v{T0}")
    A.e(f"v_lshl_add_u32 v{VB}, v{T1}, 3, v{VB}")
    A.e("s_movk_i32 s41, 512")
    for c in range(8): A.e(f"buffer_load_dwordx2 {vr(32+2*c,2)}, v{VB}, s[48:51], s41 offen offset:{512*c}")
    A.e("s_waitcnt vmcnt(0)")
    A.e(f"v_lshlrev_b32 v{T2}, 16, v{T2}")
    W = 64
    for c in range(8):
        a = ACC + 4*c; u = 32 + 2*c
        A.e(f"v_cvt_pk_bf16_f32 v{a}, v{a}, v{a+1}")
        A.e(f"v_cvt_pk_bf16_f32 v{a+1}, v{a+2}, v{a+3}")
        for k in range(2):
            A.e(f"v_lshlrev_b32 v{W}, 16, v{u+k}")
            A.e(f"v_and_b32 v{W+1}, 0xffff0000, v{u+k}")
            A.e(f"v_mul_f32 v{W}, v{W}, v{T2}")
            A.e(f"v_mul_f32 v{W+1}, v{W+1}, v{T2}")
            A.e(f"v_cvt_pk_bf16_f32 v{W}, v{W}, v{W+1}")
            A.e(f"v_lshlrev_b32 v{W+2}, 16, v{a+k}")
            A.e(f"v_and_b32 v{W+3}, 0xffff0000, v{a+k}")
            A.e(f"v_and_b32 v{W+1}, 0xffff0000, v{W}")
            A.e(f"v_lshlrev_b32 v{W}, 16, v{W}")
            A.e(f"v_add_f32 v{W}, v{W}, v{W+2}")
            A.e(f"v_add_f32 v{W+1}, v{W+1}, v{W+3}")
            A.e(f"v_cvt_pk_bf16_f32 v{a+k}, v{W}, v{W+1}")
        A.e(f"buffer_store_dwordx2 {vr(a,2)}, v{VB}, s[52:55], 0 offen offset:{512*c}")
    A.e(f"s_branch {name}_cend")
    A.label(f"{name}_cpf")
    if do_b3:
        A.e("s_waitcnt vmcnt(0)")
        A.e("s_barrier")
    if COPT.get("wopf"):
        A.e("s_cmp_lg_u32 s10, 3")
        A.e(f"s_cbranch_scc1 {name}_cend")
        A.e("s_load_dwordx2 s[60:61], s[0:1], 88")
        A.e("s_lshr_b32 s41, s2, 3")
        A.e("s_mul_i32 s41, s41, 162")
        A.e(f"v_add_u32 v0, s41, v{LANE}")
        A.e("v_lshlrev_b32 v0, 7, v0")
        A.e("s_waitcnt lgkmcnt(0)")
        make_srd(A, 44, 60, 61, "0", 576*1152)
        for k in range(3):
            A.e(f"buffer_load_dword v{1+k}, v0, s[44:47], 0 offen offset:0" if k == 0 else f"buffer_load_dword v{1+k}, v0, s[44:47], s41 offen")
            A.e(f"s_mov_b32 s41, {8192*(k+1)}")
        A.e("s_waitcnt vmcnt(0)")
    A.label(f"{name}_cend")
```

```python
import sys; sys.path.insert(0,"gen")
from asmlib import *
from l1gemm import gen_gemm_role, GEMM_LDS
from ssm import *
L1_LDS = max(GEMM_LDS, SSM_LDS)
NPF = 16
L1_WGS = 192 + 288 + NPF
PF = {"on": True}
def gen_l1(A, only=None):
    kernel_begin(A, "l1_kernel")
    A.e(f"s_cmp_lt_u32 s2, {NPF}")
    A.e("s_cbranch_scc1 l1_pf")
    A.e(f"s_sub_u32 s2, s2, {NPF}")
    A.e("s_cmp_ge_u32 s2, 480")
    A.e("s_cbranch_scc1 l1_kernel_end")
    if only == "g":
        A.e("s_cmp_ge_u32 s2, 192"); A.e("s_cbranch_scc1 l1_kernel_end")
    if only == "k":
        A.e("s_cmp_lt_u32 s2, 192"); A.e("s_cbranch_scc1 l1_kernel_end")
    rt_entry(A)
    A.e("s_cmp_ge_u32 s2, 192")
    A.e("s_cbranch_scc1 l1k")
    nv = gen_gemm_role(A, "l1g")
    A.label("l1k")
    import asmlib
    old = asmlib.STMOD.get("cur")
    if asmlib.STMOD.get("ssm"): asmlib.STMOD["cur"] = asmlib.STMOD["ssm"]
    nv = max(nv, gen_ssm_role(A, "l1k", 192, "l1_idxtab"))
    asmlib.STMOD["cur"] = old
    A.label("l1_pf")
    if PF["on"]:
        A.e("s_getpc_b64 s[4:5]")
        A.label("l1_pf_pc")
        A.e("s_sub_u32 s4, s4, l1_pf_pc-l1_kernel")
        A.e("s_subb_u32 s5, s5, 0")
        A.e("v_lshlrev_b32 v1, 7, v0")
        A.e("s_mov_b32 s6, text_end-l1_kernel")
        A.e("s_mov_b32 s7, 0x00020000")
        A.e("s_mov_b32 s8, s4"); A.e("s_mov_b32 s9, s5"); A.e("s_mov_b32 s10, s6"); A.e("s_mov_b32 s11, 0x00020000")
        A.e("buffer_load_dword v2, v1, s[8:11], 0 offen")
        A.e("s_mov_b32 s12, 32768")
        A.e("buffer_load_dword v3, v1, s[8:11], s12 offen")
        if PF.get("tlb"):
            import layout as LY
            A.e("s_load_dwordx2 s[12:13], s[0:1], 112")
            A.e("s_load_dwordx2 s[14:15], s[0:1], 96")
            A.e("s_load_dwordx2 s[16:17], s[0:1], 88")
            A.e("v_lshlrev_b32 v4, 16, v0")
            A.e("s_waitcnt lgkmcnt(0)")
            used = LY.KR_OFF + LY.KR_BYTES
            make_srd(A, 20, 12, 13, "0", used)
            A.e("buffer_load_dword v5, v4, s[20:23], 0 offen")
            A.e(f"s_mov_b32 s18, {256*65536}")
            A.e("buffer_load_dword v6, v4, s[20:23], s18 offen")
            make_srd(A, 24, 14, 15, "0", 2048*2304)
            A.e("buffer_load_dword v7, v4, s[24:27], 0 offen")
            make_srd(A, 28, 16, 17, "0", 576*1152)
            A.e("buffer_load_dword v8, v4, s[28:31], 0 offen")
        A.e("s_waitcnt vmcnt(0)")
    A.label("l1_kernel_end")
    A.e("s_endpgm")
    emit_idx_table(A, "l1_idxtab")
    kernel_end(A, "l1_kernel", nv)
if __name__ == "__main__":
    hdr = open("concat_heads__ssm_conv_s4__softmax_full_mha__prompt.s.ref").read().split("; Override")[0]
    A = Asm()
    A.raw(hdr.rstrip())
    A.raw(f"; @launch kernel=l1_kernel grid=({L1_WGS},1,1) block=(256,1,1) lds={L1_LDS}")
    A.raw('.amdgcn_target "amdgcn-amd-amdhsa--gfx950"')
    import asmlib, l1gemm
    import ssm
    for k in sys.argv[4:]:
        if k.startswith('exit='): ssm.SOPT['exit'] = int(k[5:])
        else: l1gemm.OPT[k] = True
    if len(sys.argv) > 3: asmlib.STAMPS["on"] = True
    gen_l1(A, sys.argv[2] if len(sys.argv) > 2 and sys.argv[2] != "all" else None)
    A.raw(".text"); A.label("text_end")
    open(sys.argv[1], "w").write(A.text())
```

```python
import sys; sys.path.insert(0, "work")
from asmlib import *
import layout as LY
COPT = {}
def conv_tail(A, name, prio=None, do_b3=False):
    LANE = 127
    ACC = 0
    BFS = [32, 64]
    AFS = [96, 100, 104, 108]
    VA, VB, T0, T1, T2 = 112, 113, 114, 115, 116
    if COPT.get("pfonly"): A.e(f"s_branch {name}_cpf")
    A.e("s_lshl_b32 s40, s10, 8")
    A.e("s_add_u32 s40, s40, s2")
    A.e("s_cmp_ge_u32 s40, 576")
    A.e(f"s_cbranch_scc1 {name}_cpf")
    if prio is not None: A.e(f"s_setprio {prio}")
    A.e("s_load_dwordx2 s[60:61], s[0:1], 64")
    A.e(f"s_mul_i32 s41, s40, {LY.KR_ROW}")
    A.e(f"s_add_u32 s41, s41, {LY.KR_OFF}")
    make_srd(A, 44, 4, 5, "s41", LY.KR_ROW)
    A.e(f"s_mul_i32 s41, s40, {LY.UT_ROW}")
    A.e(f"s_add_u32 s41, s41, {LY.UT_OFF}")
    make_srd(A, 48, 4, 5, "s41", LY.UT_ROW)
    A.e("s_lshl_b32 s41, s40, 12")
    A.e(f"s_add_u32 s41, s41, {LY.YT_OFF}")
    make_srd(A, 52, 4, 5, "s41", 4096)
    A.e(f"v_and_b32 v{T0}, 15, v{LANE}")
    A.e(f"v_lshrrev_b32 v{T1}, 4, v{LANE}")
    A.e(f"v_lshlrev_b32 v{VB}, 5, v{T0}")
    A.e(f"v_lshl_add_u32 v{VB}, v{T1}, 4, v{VB}")
    A.e(f"v_add_u32 v{VB}, 32, v{VB}")
    A.e(f"v_lshlrev_b32 v{T2}, 3, v{T1}")
    A.e(f"v_sub_u32 v{T2}, v{T2}, v{T0}")
    A.e(f"v_add_u32 v{T2}, 16, v{T2}")
    A.e(f"v_lshlrev_b32 v{VA}, 1, v{T2}")
    for r in range(32): A.e(f"v_mov_b32 v{r}, 0")
    issued = []
    def bload(set_, rho_off, k):
        return f"buffer_load_dwordx4 {vr(BFS[set_]+4*k,4)}, v{VB}, s[48:51], s{58+rho_off} offen offset:{512*k}"
    def aload(buf, rho_off, mu):
        return [f"s_sub_u32 s62, s{64+rho_off}, {512*mu}", f"buffer_load_dwordx4 {vr(AFS[buf],4)}, v{VA}, s[44:47], s62 offen"]
    BS = {0: 58, 1: 59, 2: 67}; AS = {0: 64, 1: 65, 2: 66}
    def bload(set_, ro, k): return f"buffer_load_dwordx4 {vr(BFS[set_]+4*k,4)}, v{VB}, s[48:51], s{BS[ro]} offen offset:{512*k}"
    def aload(buf, ro, mu): return [f"s_sub_u32 s62, s{AS[ro]}, {512*mu}", f"buffer_load_dwordx4 {vr(AFS[buf],4)}, v{VA}, s[44:47], s62 offen"]
    def setrho():
        A.e("s_sub_u32 s58, 448, s56"); A.e("s_sub_u32 s59, 384, s56"); A.e("s_sub_i32 s67, 320, s56"); A.e("s_max_i32 s67, s67, 0")
        A.e("s_sub_u32 s64, 4032, s56"); A.e("s_sub_u32 s65, 3968, s56"); A.e("s_sub_u32 s66, 3904, s56")
    A.e("s_mov_b32 s56, 0")
    setrho()
    for k in range(8): A.e(bload(0, 0, k))
    for mu in range(3):
        for l in aload(mu, 0, mu): A.e(l)
    A.e("s_mov_b32 s63, 0")
    A.label(f"{name}_cl")
    q = [("B", 0)]*8 + [("A", 0), ("A", 1), ("A", 2)]
    for x in range(2):
        if x == 1 and do_b3:
            A.e("s_cmp_lg_u32 s63, 0")
            A.e(f"s_cbranch_scc1 {name}_nob3")
            A.e("s_barrier")
            A.label(f"{name}_nob3")
        for mu in range(8):
            si = 8*x + mu
            last = max(i for i, t in enumerate(q) if t == ("A", si) or t == ("B", x))
            A.e(f"s_waitcnt vmcnt({len(q) - 1 - last})")
            q = q[last+1:]
            pend = []
            nsi = si + 3
            if nsi < 16: pend.append((aload(nsi % 4, nsi // 8, nsi % 8), ("A", nsi)))
            else: pend.append((aload(nsi % 4, 2, nsi - 16), ("A", nsi - 16)))
            if 2 <= mu <= 5:
                for k in (2*(mu-2), 2*(mu-2)+1):
                    if x == 0: pend.append(([bload(1, 1, k)], ("B", 1)))
                    else: pend.append(([bload(0, 2, k)], ("Bn", 0)))
            ab = AFS[si % 4]
            for k in range(8-mu):
                if not COPT.get("nomfma"):
                    A.e(f"v_mfma_f32_16x16x32_bf16 {vr(ACC+4*(mu+k),4)}, {vr(ab,4)}, {vr(BFS[x]+4*k,4)}, {vr(ACC+4*(mu+k),4)}")
                if pend:
                    l, t = pend.pop(0)
                    for y in l: A.e(y)
                    q.append(t)
            for l, t in pend:
                for y in l: A.e(y)
                q.append(t)
    tags = [("B", 0) if t == ("Bn", 0) else t for t in q]
    assert tags[-2:] == [("A", 1), ("A", 2)] and all(t in (("B", 0), ("A", 0)) for t in tags[:-2]), tags
    COPT["order"] = tags
    A.e("s_add_u32 s56, s56, 128")
    setrho()
    A.e("s_add_u32 s63, s63, 1")
    A.e("s_cmp_lt_u32 s63, 4")
    A.e(f"s_cbranch_scc1 {name}_cl")
    A.e("s_waitcnt vmcnt(0) lgkmcnt(0)")
    make_srd(A, 44, 60, 61, "0", 1152)
    A.e("s_lshl_b32 s41, s40, 1")
    A.e(f"v_mov_b32 v{T2}, s41")
    A.e(f"buffer_load_ushort v{T2}, v{T2}, s[44:47], 0 offen")
    A.e(f"v_lshlrev_b32 v{VB}, 5, v{T0}")
    A.e(f"v_lshl_add_u32 v{VB}, v{T1}, 3, v{VB}")
    A.e("s_movk_i32 s41, 512")
    for c in range(8): A.e(f"buffer_load_dwordx2 {vr(32+2*c,2)}, v{VB}, s[48:51], s41 offen offset:{512*c}")
    A.e("s_waitcnt vmcnt(0)")
    W = 64; D2 = 68
    A.e(f"v_lshlrev_b32 v{D2}, 16, v{T2}")
    A.e(f"v_lshlrev_b32 v{D2+1}, 16, v{T2}")
    for c in range(8):
        a = ACC + 4*c; u = 32 + 2*c
        A.e(f"v_cvt_pk_bf16_f32 v{a}, v{a}, v{a+1}")
        A.e(f"v_cvt_pk_bf16_f32 v{a+1}, v{a+2}, v{a+3}")
        for k in range(2):
            A.e(f"v_lshlrev_b32 v{W}, 16, v{u+k}")
            A.e(f"v_and_b32 v{W+1}, 0xffff0000, v{u+k}")
            A.e(f"v_pk_mul_f32 {vr(W,2)}, {vr(W,2)}, {vr(D2,2)}")
            A.e(f"v_cvt_pk_bf16_f32 v{W}, v{W}, v{W+1}")
            A.e(f"v_lshlrev_b32 v{W+2}, 16, v{a+k}")
            A.e(f"v_and_b32 v{W+3}, 0xffff0000, v{a+k}")
            A.e(f"v_and_b32 v{W+1}, 0xffff0000, v{W}")
            A.e(f"v_lshlrev_b32 v{W}, 16, v{W}")
            A.e(f"v_pk_add_f32 {vr(W,2)}, {vr(W,2)}, {vr(W+2,2)}")
            A.e(f"v_cvt_pk_bf16_f32 v{a+k}, v{W}, v{W+1}")
        A.e(f"buffer_store_dwordx2 {vr(a,2)}, v{VB}, s[52:55], 0 offen offset:{512*c}")
    A.e(f"s_branch {name}_cend")
    A.label(f"{name}_cpf")
    if do_b3:
        A.e("s_waitcnt vmcnt(0)")
        A.e("s_barrier")
    if COPT.get("wopf"):
        A.e("s_cmp_lg_u32 s10, 3")
        A.e(f"s_cbranch_scc1 {name}_cend")
        A.e("s_load_dwordx2 s[60:61], s[0:1], 88")
        A.e("s_lshr_b32 s41, s2, 3")
        A.e("s_mul_i32 s41, s41, 162")
        A.e(f"v_add_u32 v0, s41, v{LANE}")
        A.e("v_lshlrev_b32 v0, 7, v0")
        A.e("s_waitcnt lgkmcnt(0)")
        make_srd(A, 44, 60, 61, "0", 576*1152)
        for k in range(3):
            A.e(f"buffer_load_dword v{1+k}, v0, s[44:47], 0 offen offset:0" if k == 0 else f"buffer_load_dword v{1+k}, v0, s[44:47], s41 offen")
            A.e(f"s_mov_b32 s41, {8192*(k+1)}")
        A.e("s_waitcnt vmcnt(0)")
    A.label(f"{name}_cend")
```

```python
import sys; sys.path.insert(0, "work")
from asmlib import *
import layout as LY

XSLOT = 16384; WSLOT = 10240; WROW = 320
WBASE = 3*XSLOT
SCR = WBASE + 3*WSLOT
GEMM_LDS = SCR + 1024
NST = 18
OPT = {}
def f32bits(x):
    import struct
    return struct.unpack("<I", struct.pack("<f", x))[0]

def gen_gemm_role(A, name):
    ACC = [0, 16, 32, 48]; ACL = 64
    XF = [[80, 84, 88, 92], [96, 100, 104, 108]]
    WM = [112, 116]; WL = [120, 124]
    AX = [156, 157]
    BX = [132, 133, 134, 135]
    BWM, BWL = 136, 137
    VXO = 138; VW = [139, 140, 141]
    LANE, T0, T1, T2, T3, T4 = 142, 143, 144, 145, 146, 147
    XL = [148, 152]
    A.e("s_load_dwordx4 s[4:7], s[0:1], 72")
    A.e("s_load_dwordx2 s[8:9], s[0:1], 112")
    stamp(A, 0); stamp_rt0(A)
    if OPT.get("prio"): A.e("s_setprio 3")
    A.e("s_and_b32 s10, s2, 7")
    A.e("s_lshr_b32 s11, s2, 3")
    A.e("s_lshr_b32 s24, s10, 1")
    A.e("s_lshl_b32 s24, s24, 2")
    A.e("s_and_b32 s25, s11, 3")
    A.e("s_add_u32 s24, s24, s25")
    A.e("s_and_b32 s25, s10, 1")
    A.e("s_mul_i32 s25, s25, 6")
    A.e("s_lshr_b32 s26, s11, 2")
    A.e("s_add_u32 s25, s25, s26")
    A.e("s_lshr_b32 s26, s25, 2")
    A.e("s_and_b32 s27, s25, 3")
    A.e(f"v_and_b32 v{LANE}, 63, v0")
    A.e(f"v_lshrrev_b32 v{T0}, 6, v0")
    A.e("s_mul_i32 s29, s25, 288")
    A.e(f"v_readfirstlane_b32 s28, v{T0}")
    A.e(f"s_mul_i32 s30, s24, {128*1152}")
    A.e(f"v_lshrrev_b32 v{T0}, 3, v{LANE}")
    A.e(f"v_mul_u32_u24 v{VXO}, 1152, v{T0}")
    A.e(f"v_lshrrev_b32 v{T1}, 4, v{LANE}")
    A.e(f"v_and_b32 v{T2}, 7, v{LANE}")
    A.e(f"v_xor_b32 v{T1}, v{T1}, v{T2}")
    A.e(f"v_xor_b32 v{T2}, 4, v{T1}")
    VXO2 = T4 + 0
    A.e(f"v_lshl_add_u32 v{158}, v{T2}, 4, v{VXO}")
    A.e(f"v_lshl_add_u32 v{VXO}, v{T1}, 4, v{VXO}")
    VXE, VXD = VXO, 158
    for i in range(3):
        A.e(f"s_add_u32 s31, s28, {4*i}")
        A.e("s_lshl_b32 s31, s31, 6")
        A.e(f"v_add_u32 v{T0}, s31, v{LANE}")
        A.e(f"v_mul_u32_u24 v{T1}, 3277, v{T0}")
        A.e(f"v_lshrrev_b32 v{T1}, 16, v{T1}")
        A.e(f"v_mul_u32_u24 v{T2}, 20, v{T1}")
        A.e(f"v_sub_u32 v{T2}, v{T0}, v{T2}")
        A.e(f"v_mul_u32_u24 v{T1}, 3456, v{T1}")
        A.e(f"v_lshl_add_u32 v{VW[i]}, v{T2}, 4, v{T1}")
        A.e(f"v_cmp_gt_u32 vcc, 18, v{T2}")
        A.e("s_movk_i32 s38, 640")
        A.e(f"v_cmp_gt_u32 s[32:33], s38, v{T0}")
        A.e(f"v_mov_b32 v{T3}, 0x7ffffff0")
        A.e("s_nop 0")
        A.e("s_and_b64 vcc, vcc, s[32:33]")
        A.e("s_nop 0")
        A.e(f"v_cndmask_b32 v{VW[i]}, v{T3}, v{VW[i]}, vcc")
    A.e("s_waitcnt lgkmcnt(0)")
    make_srd(A, 12, 4, 5, "s30", 128*1152)
    A.e("s_add_u32 s16, s6, s29")
    A.e("s_addc_u32 s17, s7, 0")
    A.e(f"s_sub_u32 s18, {576*3456}, s29")
    A.e("s_mov_b32 s19, 0x00020000")
    A.e(f"s_mul_i32 s34, s28, {32*1152}")
    A.e("s_lshl_b32 s35, s28, 12")
    A.e("s_lshl_b32 s36, s28, 10")
    A.e("s_cmp_lt_u32 s28, 2")
    A.e(f"s_cselect_b32 s37, 1, 0")
    A.e(f"s_add_u32 s36, s36, {WBASE}")
    def xd(sb, slot, j2, maybe_invalid=False):
        ld = f"buffer_load_dwordx4 v{VXD if j2 % 2 else VXE}, s[12:15], s44 offen lds"
        if maybe_invalid:
            return [f"s_add_u32 s44, {sb}, {j2*8*1152}", f"s_add_u32 s45, s35, {slot*XSLOT + j2*1024}",
                    "s_cmp_eq_u32 s56, 0", "s_cselect_b32 m0, s45, s55", ld]
        return [f"s_add_u32 s44, {sb}, {j2*8*1152}", f"s_add_u32 m0, s35, {slot*XSLOT + j2*1024}", ld]
    def wd(sb, slot, i, maybe_invalid=False):
        src = f"v{VW[i]}"
        if i < 2: m0 = [f"s_add_u32 s45, s36, {slot*WSLOT + 4096*i}"]; m0r = "s45"
        else: m0 = []; m0r = f"s{60+slot}"
        if maybe_invalid:
            return m0 + ["s_cmp_eq_u32 s56, 0", f"s_cselect_b32 m0, {m0r}, s55",
                    f"buffer_load_dwordx4 {src}, s[16:19], {sb} offen lds"]
        if i < 2:
            return [f"s_add_u32 m0, s36, {slot*WSLOT + 4096*i}", f"buffer_load_dwordx4 {src}, s[16:19], {sb} offen lds"]
        return [f"s_mov_b32 m0, {m0r}", f"buffer_load_dwordx4 {src}, s[16:19], {sb} offen lds"]
    ROWB = 32*3456
    XS = [64, 65, 66]
    WS = [67, 68, 69, 70, 71, 72]
    def chunk_regs(xreg, wreg0, wreg1):
        if xreg is not None:
            A.e(f"s_lshl_b32 s{xreg}, s46, 7"); A.e(f"s_add_u32 s{xreg}, s{xreg}, s34")
        if wreg0 is not None: A.e(f"s_mul_i32 s{wreg0}, s46, {2*ROWB}")
        if wreg1 is not None:
            A.e(f"s_mul_i32 s{wreg1}, s46, {2*ROWB}"); A.e(f"s_add_u32 s{wreg1}, s{wreg1}, {ROWB}")
    def inc46():
        A.e("s_add_u32 s46, s46, 1"); A.e("s_cmp_eq_u32 s46, 9"); A.e("s_cselect_b32 s46, 0, s46")
    A.e("s_and_b32 s46, s24, 3"); A.e("s_lshl_b32 s46, s46, 1")
    A.e("s_cmp_ge_u32 s25, 6"); A.e("s_cselect_b32 s47, 6, 0"); A.e("s_sub_u32 s47, s25, s47"); A.e("s_mul_i32 s47, s47, 7")
    A.e("s_add_u32 s46, s46, s47")
    if OPT.get("norot"): A.e("s_mov_b32 s46, 0")
    A.e("s_mul_i32 s47, s46, 7282"); A.e("s_lshr_b32 s47, s47, 16"); A.e("s_mul_i32 s47, s47, 9"); A.e("s_sub_u32 s46, s46, s47")
    for sl in range(3):
        A.e(f"s_add_u32 s{60+sl}, s36, {sl*WSLOT + 8192}")
        A.e("s_cmp_eq_u32 s37, 1")
        A.e(f"s_mov_b32 s56, {SCR}")
        A.e(f"s_cselect_b32 s{60+sl}, s{60+sl}, s56")
    def emit_dma(l, mid=None):
        if mid and OPT.get("nodma"):
            A.e(mid); return
        for x in l[:-1]: A.e(x)
        A.e(mid if mid else "s_nop 0")
        A.e(l[-1])
    chunk_regs(XS[0], WS[0], WS[1]); inc46()
    chunk_regs(XS[1], WS[2], WS[3]); inc46()
    for j2 in range(4): emit_dma(xd(f"s{XS[0]}", 0, j2))
    for i in range(3): emit_dma(wd(f"s{WS[0]}", 0, i))
    for i in range(3): emit_dma(wd(f"s{WS[1]}", 1, i))
    for j2 in range(4): emit_dma(xd(f"s{XS[1]}", 1, j2))
    for i in range(3): emit_dma(wd(f"s{WS[2]}", 2, i))
    A.e(f"s_mov_b32 s73, s{WS[3]}")
    if OPT.get("pf"):
        PF = 159
        A.e("s_lshl_b32 s31, s11, 2")
        A.e("s_add_u32 s31, s31, s28")
        make_srd(A, 64, 4, 5, "0", 2048*1152)
        make_srd(A, 68, 6, 7, "0", 576*3456)
        A.e("s_mul_i32 s38, s31, 38")
        A.e(f"v_add_u32 v{T0}, s38, v{LANE}")
        A.e(f"v_and_b32 v{T1}, 511, v{T0}")
        A.e(f"v_lshrrev_b32 v{T2}, 9, v{T0}")
        A.e(f"v_add_u32 v{T2}, 2, v{T2}")
        A.e(f"v_mul_u32_u24 v{T1}, 1152, v{T1}")
        A.e(f"v_lshl_add_u32 v{T1}, v{T2}, 7, v{T1}")
        A.e("s_lshr_b32 s38, s10, 1")
        A.e(f"s_mul_i32 s38, s38, {512*1152}")
        A.e(f"v_cmp_gt_u32 vcc, 38, v{LANE}")
        A.e(f"v_mov_b32 v{T3}, 0x7ffffff0")
        A.e("s_nop 0")
        A.e(f"v_cndmask_b32 v{T1}, v{T3}, v{T1}, vcc")
        A.e(f"buffer_load_dword v{PF}, v{T1}, s[64:67], s38 offen")
        A.e("s_and_b32 s38, s10, 1")
        A.e("s_mul_i32 s38, s38, 1664")
        A.e(f"s_add_u32 s38, s38, {96*3456}")
        A.e("s_mul_i32 s39, s31, 70")
        for j in range(2):
            A.e(f"v_add_u32 v{T0}, {64*j}, v{LANE}")
            A.e(f"v_cmp_gt_u32 vcc, 70, v{T0}")
            A.e(f"v_add_u32 v{T0}, s39, v{T0}")
            A.e(f"v_mul_u32_u24 v{T1}, 4682, v{T0}")
            A.e(f"v_lshrrev_b32 v{T1}, 16, v{T1}")
            A.e(f"v_mul_u32_u24 v{T2}, 14, v{T1}")
            A.e(f"v_sub_u32 v{T2}, v{T0}, v{T2}")
            A.e(f"v_mul_u32_u24 v{T1}, 3456, v{T1}")
            A.e(f"v_lshl_add_u32 v{T1}, v{T2}, 7, v{T1}")
            A.e(f"v_cndmask_b32 v{T1}, v{T3}, v{T1}, vcc")
            A.e(f"buffer_load_dword v{PF+1+j}, v{T1}, s[68:71], s38 offen")
    stamp(A, 1)
    A.e(f"v_and_b32 v{T0}, 31, v{LANE}")
    A.e(f"v_lshrrev_b32 v{T1}, 5, v{LANE}")
    A.e(f"v_lshrrev_b32 v{T2}, 1, v{T0}")
    A.e(f"v_and_b32 v{T2}, 7, v{T2}")
    A.e(f"v_xor_b32 v{T2}, v{T2}, v{T1}")
    A.e(f"v_lshlrev_b32 v{BX[0]}, 7, v{T0}")
    A.e(f"v_lshl_add_u32 v{BX[0]}, v{T2}, 4, v{BX[0]}")
    for kq in range(1, 4): A.e(f"v_xor_b32 v{BX[kq]}, {32*kq}, v{BX[0]}")
    BXL = [128, 129, 130, 131]
    A.e("s_lshl_b32 s39, s28, 12")
    for kq in range(4): A.e(f"v_add_u32 v{BXL[kq]}, s39, v{BX[kq]}")
    A.e(f"v_lshrrev_b32 v{T2}, 2, v{LANE}")
    A.e(f"v_and_b32 v{T2}, 3, v{T2}")
    A.e(f"v_lshl_add_u32 v{T2}, v{T1}, 3, v{T2}")
    A.e(f"v_mul_u32_u24 v{T2}, {WROW}, v{T2}")
    A.e(f"v_add_u32 v{T2}, {WBASE}, v{T2}")
    A.e(f"v_lshrrev_b32 v{T3}, 4, v{LANE}")
    A.e(f"v_and_b32 v{T3}, 1, v{T3}")
    A.e(f"v_and_b32 v{T4}, 3, v{LANE}")
    A.e(f"v_lshl_add_u32 v{T3}, v{T3}, 2, v{T4}")
    A.e("s_cmp_eq_u32 s26, 2")
    A.e(f"s_cbranch_scc1 {name}_vaddr")
    A.e(f"v_lshlrev_b32 v{T0}, 2, v{T3}")
    A.e(f"v_mov_b32 v{BWM}, 0x86753120")
    A.e(f"v_lshrrev_b32 v{BWM}, v{T0}, v{BWM}")
    A.e(f"v_and_b32 v{BWM}, 15, v{BWM}")
    A.e("s_mul_i32 s31, s28, 9")
    A.e(f"v_add_u32 v{BWM}, s31, v{BWM}")
    A.e(f"v_lshl_add_u32 v{BWM}, v{BWM}, 3, v{T2}")
    A.e(f"v_mul_u32_u24 v{BWL}, 9, v{T4}")
    A.e(f"v_add_u32 v{BWL}, 4, v{BWL}")
    A.e(f"v_lshl_add_u32 v{BWL}, v{BWL}, 3, v{T2}")
    A.e(f"s_branch {name}_addr_done")
    A.label(f"{name}_vaddr")
    A.e("s_lshl_b32 s31, s28, 3")
    A.e(f"v_add_u32 v{BWM}, s31, v{T3}")
    A.e(f"v_lshl_add_u32 v{BWM}, v{BWM}, 3, v{T2}")
    A.e(f"v_add_u32 v{BWL}, 32, v{T4}")
    A.e(f"v_lshl_add_u32 v{BWL}, v{BWL}, 3, v{T2}")
    A.label(f"{name}_addr_done")
    for r in range(80): A.e(f"v_mov_b32 v{r}, 0")

    def read_list(buf, st, ks):
        if OPT.get("noread"): return []
        xs = (st//2) % 3; ws = st % 3; kq = 2*(st % 2) + ks
        L = []
        for q in range(2):
            L.append(f"ds_read_b64_tr_b16 {vr(WM[buf]+2*q,2)}, v{BWM} offset:{ws*WSLOT + ks*16*WROW + q*4*WROW}")
        for T in range(4):
            L.append(f"ds_read_b128 {vr(XF[buf][T],4)}, v{BX[kq]} offset:{xs*XSLOT + 4096*T}")
        for q in range(2):
            L.append(f"ds_read_b64_tr_b16 {vr(WL[buf]+2*q,2)}, v{BWL} offset:{ws*WSLOT + ks*16*WROW + q*4*WROW}")
        L.append(f"ds_read_b128 {vr(XL[buf],4)}, v{BXL[kq]} offset:{xs*XSLOT}")
        return L
    def mfma_list(buf, vtype):
        L = []
        for T in range(4):
            if vtype: L.append(f"v_mfma_f32_32x32x16_bf16 {vr(ACC[T],16)}, {vr(XF[buf][T],4)}, {vr(WM[buf],4)}, {vr(ACC[T],16)}")
            else:     L.append(f"v_mfma_f32_32x32x16_bf16 {vr(ACC[T],16)}, {vr(WM[buf],4)}, {vr(XF[buf][T],4)}, {vr(ACC[T],16)}")
        if vtype: L.append(f"v_mfma_f32_32x32x16_bf16 {vr(ACL,16)}, {vr(XL[buf],4)}, {vr(WL[buf],4)}, {vr(ACL,16)}")
        else:     L.append(f"v_mfma_f32_32x32x16_bf16 {vr(ACL,16)}, {vr(WL[buf],4)}, {vr(XL[buf],4)}, {vr(ACL,16)}")
        if OPT.get("nomfma"): L = ["s_nop 0"]*5
        return L
    def interleave(m, r, d):
        r = list(r); dd = dict(d)
        need = [3, 4, 5, 6, 9]
        for i in range(5):
            A.e(f"s_waitcnt lgkmcnt({9 - need[i] + min(3*i, 9)})")
            if i in dd: emit_dma(dd[i], m[i])
            else: A.e(m[i])
            for _ in range(3):
                if r: A.e(r.pop(0))
        for x in r: A.e(x)
    def iter_regs(last):
        A.e(f"s_mov_b32 s{WS[0]}, s73")
        chunk_regs(XS[0], WS[1], WS[2]); inc46()
        chunk_regs(XS[1], WS[3], WS[4]); inc46()
        chunk_regs(XS[2], WS[5], 73); inc46()
        for r in (XS[1], XS[2], WS[3], WS[4], WS[5]): A.e(f"s_add_u32 s{r}, s{r}, s56")
    A.e("s_mov_b32 s56, 0"); A.e(f"s_mov_b32 s55, {SCR}")
    A.e("s_mov_b32 s47, 0")
    iter_regs(False)
    A.e(f"s_waitcnt vmcnt({13 if OPT.get('pf') else 10})")
    A.e("s_barrier")
    stamp(A, 2)
    for x in read_list(0, 0, 0): A.e(x)
    A.e("s_cmp_eq_u32 s26, 2")
    A.e(f"s_cbranch_scc1 {name}_vloop")
    for vtype in (0, 1):
        L = f"{name}_{'v' if vtype else 'q'}loop"
        A.raw(".p2align 3")
        A.label(L)
        for st in range(6):
            c = st // 2; sub = st % 2
            interleave(mfma_list(0, vtype), read_list(1, st, 1),
                       [(1, xd(f"s{XS[c]}", (c+2) % 3, 2*sub, c >= 1)), (3, xd(f"s{XS[c]}", (c+2) % 3, 2*sub+1, c >= 1))])
            A.e("s_waitcnt vmcnt(7) lgkmcnt(0)")
            A.e("s_barrier")
            interleave(mfma_list(1, vtype), read_list(0, st+1, 0),
                       [(0, wd(f"s{WS[st]}", st % 3, 0, st >= 3)), (2, wd(f"s{WS[st]}", st % 3, 1, st >= 3)), (4, wd(f"s{WS[st]}", st % 3, 2, st >= 3))])
        A.e("s_add_u32 s47, s47, 1")
        A.e("s_cmp_eq_u32 s47, 2")
        A.e("s_cselect_b32 s56, 0x7ff00000, 0")
        iter_regs(False)
        A.e("s_cmp_lt_u32 s47, 3")
        A.e(f"s_cbranch_scc1 {L}")
        A.e(f"s_branch {name}_epi_{'v' if vtype else 'q'}")
    A.label(f"{name}_epi_q")
    stamp(A, 3)
    A.e("s_waitcnt lgkmcnt(0)")
    A.e("s_cmp_eq_u32 s26, 0")
    def csel(d, a, b):
        A.e(f"s_mov_b32 s55, {a}"); A.e(f"s_mov_b32 s56, {b}"); A.e(f"s_cselect_b32 s{d}, s55, s56")
    csel(30, LY.Q_OFF, LY.KV_OFF); csel(31, LY.Q_BYTES, LY.KV_BYTES)
    csel(48, 64*1152, 64*LY.KVTILE); csel(49, 1152, LY.KVTILE); csel(50, f32bits(LY.QSCALE), f32bits(1.0))
    A.e("s_add_u32 s20, s8, s30")
    A.e("s_addc_u32 s21, s9, 0")
    A.e("s_mov_b32 s22, s31")
    A.e("s_mov_b32 s23, 0x00020000")
    A.e("s_lshl_b32 s51, s27, 3")
    A.e("s_lshl_b32 s52, s28, 1")
    A.e("s_add_u32 s52, s52, s51")
    A.e("s_mul_i32 s52, s52, s48")
    A.e("s_lshl_b32 s53, s24, 2")
    A.e("s_mul_i32 s53, s53, s49")
    A.e("s_add_u32 s52, s52, s53")
    A.e(f"v_lshlrev_b32 v{T0}, 4, v{LANE}")
    SC2 = 80
    A.e(f"v_mov_b32 v{SC2}, s50"); A.e(f"v_mov_b32 v{SC2+1}, s50")
    for T in range(4):
        a = ACC[T]
        for r in range(0, 16, 2): A.e(f"v_pk_mul_f32 {vr(a+r,2)}, {vr(a+r,2)}, {vr(SC2,2)}")
        for i in range(8): A.e(f"v_cvt_pk_bf16_f32 v{a+i}, v{a+2*i}, v{a+2*i+1}")
        A.e(f"buffer_store_dwordx4 {vr(a,4)}, v{T0}, s[20:23], s52 offen")
        A.e("s_add_u32 s54, s52, s48")
        A.e(f"buffer_store_dwordx4 {vr(a+4,4)}, v{T0}, s[20:23], s54 offen")
        A.e("s_add_u32 s52, s52, s49")
    for r in range(0, 8, 2): A.e(f"v_pk_mul_f32 {vr(ACL+r,2)}, {vr(ACL+r,2)}, {vr(SC2,2)}")
    for i in range(4): A.e(f"v_cvt_pk_bf16_f32 v{ACL+i}, v{ACL+2*i}, v{ACL+2*i+1}")
    A.e("s_mul_i32 s52, s51, s48")
    A.e("s_lshl_b32 s53, s24, 2")
    A.e("s_add_u32 s53, s53, s28")
    A.e("s_mul_i32 s53, s53, s49")
    A.e("s_add_u32 s52, s52, s53")
    A.e("s_add_u32 s52, s52, 1024")
    A.e(f"v_lshrrev_b32 v{T1}, 5, v{LANE}")
    A.e("s_lshl_b32 s53, s48, 1")
    A.e(f"v_mul_lo_u32 v{T1}, v{T1}, s53")
    A.e(f"v_and_b32 v{T2}, 31, v{LANE}")
    A.e(f"v_lshl_add_u32 v{T1}, v{T2}, 2, v{T1}")
    for i in range(4):
        A.e(f"s_mul_i32 s53, s48, {4*(i//2) + (i%2)}")
        A.e("s_add_u32 s53, s53, s52")
        A.e(f"buffer_store_dword v{ACL+i}, v{T1}, s[20:23], s53 offen")
    stamp(A, 4)
    stamp_dump(A, 8, 28, 4)
    RT["wave"]=28; rt_exit(A, 0, 4); A.e("s_endpgm")
    A.label(f"{name}_epi_v")
    stamp(A, 3)
    A.e("s_waitcnt lgkmcnt(0)")
    make_srd(A, 20, 8, 9, str(LY.KV_OFF), LY.KV_BYTES)
    HS = 64*LY.KVTILE
    def voff(dst):
        A.e(f"v_mul_u32_u24 v{T1}, 3641, v{T0}")
        A.e(f"v_lshrrev_b32 v{T1}, 16, v{T1}")
        A.e(f"v_mul_u32_u24 v{T2}, 18, v{T1}")
        A.e(f"v_sub_u32 v{T2}, v{T0}, v{T2}")
        A.e(f"v_lshrrev_b32 v{T3}, 5, v{LANE}")
        A.e(f"v_mul_u32_u24 v{T3}, 18, v{T3}")
        A.e(f"v_add_u32 v{T2}, v{T2}, v{T3}")
        A.e(f"v_add_u32 v{T1}, s51, v{T1}")
        A.e(f"s_mov_b32 s53, {HS}")
        A.e(f"v_mul_lo_u32 v{T1}, v{T1}, s53")
        A.e(f"v_lshl_add_u32 v{dst}, v{T2}, 4, v{T1}")
    A.e("s_lshl_b32 s51, s27, 3")
    A.e(f"v_and_b32 v{T0}, 31, v{LANE}")
    A.e("s_lshl_b32 s31, s28, 5")
    A.e(f"v_add_u32 v{T0}, s31, v{T0}")
    voff(AX[0])
    A.e("s_lshl_b32 s53, s24, 2")
    A.e(f"s_mul_i32 s52, s53, {LY.KVTILE}")
    A.e("s_add_u32 s52, s52, 1152")
    for T in range(4):
        a = ACC[T]
        for i in range(8): A.e(f"v_cvt_pk_bf16_f32 v{a+i}, v{a+2*i}, v{a+2*i+1}")
        A.e(f"buffer_store_dwordx4 {vr(a,4)}, v{AX[0]}, s[20:23], s52 offen")
        A.e(f"buffer_store_dwordx4 {vr(a+4,4)}, v{AX[0]}, s[20:23], s52 offen offset:{LY.VSZ}")
        A.e(f"s_add_u32 s52, s52, {LY.KVTILE}")
    A.e(f"v_and_b32 v{T0}, 31, v{LANE}")
    A.e(f"v_add_u32 v{T0}, 128, v{T0}")
    voff(AX[1])
    A.e(f"v_and_b32 v{T0}, 16, v{LANE}")
    A.e(f"v_cmp_eq_u32 vcc, 0, v{T0}")
    A.e(f"v_mov_b32 v{T3}, 0x7ffffff0")
    A.e("s_nop 0")
    A.e(f"v_cndmask_b32 v{AX[1]}, v{T3}, v{AX[1]}, vcc")
    for i in range(8): A.e(f"v_cvt_pk_bf16_f32 v{ACL+i}, v{ACL+2*i}, v{ACL+2*i+1}")
    A.e("s_lshl_b32 s53, s24, 2")
    A.e("s_add_u32 s53, s53, s28")
    A.e(f"s_mul_i32 s52, s53, {LY.KVTILE}")
    A.e("s_add_u32 s52, s52, 1152")
    A.e(f"buffer_store_dwordx4 {vr(ACL,4)}, v{AX[1]}, s[20:23], s52 offen")
    A.e(f"buffer_store_dwordx4 {vr(ACL+4,4)}, v{AX[1]}, s[20:23], s52 offen offset:{LY.VSZ}")
    A.e(f"v_lshrrev_b32 v{T0}, 2, v{LANE}")
    A.e(f"v_add_u32 v{T0}, s51, v{T0}")
    A.e(f"s_mov_b32 s53, {HS}")
    A.e(f"v_mul_lo_u32 v{T0}, v{T0}, s53")
    A.e(f"v_bfe_u32 v{T1}, v{LANE}, 1, 1")
    A.e(f"v_mul_u32_u24 v{T1}, {LY.VSZ}, v{T1}")
    A.e(f"v_and_b32 v{T2}, 1, v{LANE}")
    A.e(f"v_lshl_add_u32 v{T1}, v{T2}, 4, v{T1}")
    A.e(f"v_add3_u32 v{T0}, v{T0}, v{T1}, 0")
    A.e(f"v_add_u32 v{T0}, 576, v{T0}")
    A.e(f"v_cmp_eq_u32 vcc, 0, v{T2}")
    A.e(f"v_mov_b32 v4, 0x3f803f80")
    A.e("s_nop 0")
    A.e("v_cndmask_b32 v0, 0, v4, vcc")
    A.e(f"v_cmp_gt_u32 vcc, 32, v{LANE}")
    for r in range(1, 4): A.e(f"v_mov_b32 v{r}, v0")
    A.e(f"v_cndmask_b32 v{T0}, v{T3}, v{T0}, vcc")
    A.e(f"buffer_store_dwordx4 v[0:3], v{T0}, s[20:23], s52 offen")
    stamp(A, 4)
    stamp_dump(A, 8, 28, 4)
    RT["wave"]=28; rt_exit(A, 0, 4); A.e("s_endpgm")
    return 164
```

```python
import sys; sys.path.insert(0,"gen")
from asmlib import *
from attn import gen_attn
from conv import conv_tail
from build_l1_only import gen_l1, L1_WGS, L1_LDS
from l3 import *
def gen_l3(A):
    kernel_begin(A, "l3_kernel")
    A.e("s_cmp_ge_u32 s2, 256")
    A.e("s_cbranch_scc1 l3_kernel_end")
    rt_entry(A)
    A.e("s_cmp_ge_u32 s2, 192")
    A.e("s_cbranch_scc1 l3f")
    nv = gen_outproj_role(A, "l3o")
    A.label("l3f")
    nv = max(nv, gen_final_role(A, "l3f", 192))
    A.label("l3_kernel_end")
    A.e("s_endpgm")
    kernel_end(A, "l3_kernel", nv)
def build(path, stamps=False, opt=None):
    opt = opt or {}
    hdr = open("concat_heads__ssm_conv_s4__softmax_full_mha__prompt.s.ref").read().split("; Override")[0]
    A = Asm()
    A.raw(hdr.rstrip())
    A.raw(f"; @launch kernel=l1_kernel grid=({L1_WGS},1,1) block=(256,1,1) lds={L1_LDS}")
    A.raw("; @launch kernel=attn_kernel grid=(256,1,1) block=(512,1,1) lds=155648")
    A.raw("; @launch kernel=l3_kernel grid=(256,1,1) block=(256,1,1) lds=110592")
    A.raw('.amdgcn_target "amdgcn-amd-amdhsa--gfx950"')
    import asmlib
    import l1gemm, conv, build_l1_only, ssm
    if 'sexit' in opt: ssm.SOPT['exit'] = opt['sexit']
    if opt.get('nopf'): build_l1_only.PF['on'] = False
    if opt.get('tlb'): build_l1_only.PF['tlb'] = True
    if opt.get('ssmfirst'): build_l1_only.PF['ssmfirst'] = True
    if opt.get('fused'): build_l1_only.PF['fused'] = True; conv.COPT['pfonly'] = True
    for k in ('noload','nomfma','wopf'):
        if opt.get('c'+k): conv.COPT[k] = True
    if opt.get("gprio"): l1gemm.OPT["prio"] = True
    if opt.get("gpf"): l1gemm.OPT["pf"] = True
    if opt.get("norot"): l1gemm.OPT["norot"] = True
    asmlib.STMOD["cur"] = opt.get("st1")
    asmlib.STMOD["ssm"] = opt.get("stssm")
    gen_l1(A)
    asmlib.STMOD["cur"] = opt.get("st2")
    gen_attn(A, "attn_kernel", stamps=stamps, opt=opt, helper_tail=(None if opt.get('noconv') else (lambda A, n, b3=False: conv_tail(A, n, opt.get("cprio"), b3))))
    asmlib.STMOD["cur"] = opt.get("st3")
    gen_l3(A)
    A.raw(".text")
    A.label("text_end")
    asmlib.STMOD["cur"] = None
    open(path, "w").write(A.text())
if __name__ == "__main__":
    opt = {}
    for k in sys.argv[2:]:
        if '=' in k:
            a, b = k.split('=')
            opt[a] = int(b) if b.lstrip('-').isdigit() else b.replace('+',' ')
        else: opt[k] = True
    import asmlib
    if opt.get("rt"): asmlib.RT["on"] = True
    if opt.get("gst"): asmlib.STAMPS["on"] = True
    build(sys.argv[1], stamps=opt.get("stamps", False), opt=opt)
```

```python
import sys; sys.path.insert(0,"gen")
from asmlib import *
from l1gemm import gen_gemm_role, GEMM_LDS
from ssm import *
import ssm_fused
L1_LDS = max(GEMM_LDS, SSM_LDS)
NPF = 16
L1_WGS = 192 + 288 + NPF
PF = {"on": True}
def gen_l1(A, only=None):
    kernel_begin(A, "l1_kernel")
    A.e(f"s_cmp_lt_u32 s2, {NPF}")
    A.e("s_cbranch_scc1 l1_pf")
    A.e(f"s_sub_u32 s2, s2, {NPF}")
    A.e("s_cmp_ge_u32 s2, 480")
    A.e("s_cbranch_scc1 l1_kernel_end")
    if only == "g":
        A.e("s_cmp_ge_u32 s2, 192"); A.e("s_cbranch_scc1 l1_kernel_end")
    if only == "k":
        A.e("s_cmp_lt_u32 s2, 192"); A.e("s_cbranch_scc1 l1_kernel_end")
    rt_entry(A)
    if PF.get("ssmfirst"):
        A.e("s_cmp_lt_u32 s2, 288")
        A.e("s_cselect_b32 s3, 192, 0")
        A.e("s_add_u32 s2, s2, s3")
        A.e("s_cmp_lt_u32 s2, 480")
        A.e("s_cmp_eq_u32 s3, 192")
        A.e("s_cbranch_scc1 l1k")
        A.e("s_sub_u32 s2, s2, 288")
    else:
        A.e("s_cmp_ge_u32 s2, 192")
        A.e("s_cbranch_scc1 l1k")
    nv = gen_gemm_role(A, "l1g")
    A.label("l1k")
    import asmlib
    old = asmlib.STMOD.get("cur")
    if asmlib.STMOD.get("ssm"): asmlib.STMOD["cur"] = asmlib.STMOD["ssm"]
    if PF.get("fused"): nv = max(nv, ssm_fused.gen_ssm_role(A, "l1k", 192, "l1_idxtab"))
    else: nv = max(nv, gen_ssm_role(A, "l1k", 192, "l1_idxtab"))
    asmlib.STMOD["cur"] = old
    A.label("l1_pf")
    if PF["on"]:
        A.e("s_getpc_b64 s[4:5]")
        A.label("l1_pf_pc")
        A.e("s_sub_u32 s4, s4, l1_pf_pc-l1_kernel")
        A.e("s_subb_u32 s5, s5, 0")
        A.e("v_lshlrev_b32 v1, 7, v0")
        A.e("s_mov_b32 s6, text_end-l1_kernel")
        A.e("s_mov_b32 s7, 0x00020000")
        A.e("s_mov_b32 s8, s4"); A.e("s_mov_b32 s9, s5"); A.e("s_mov_b32 s10, s6"); A.e("s_mov_b32 s11, 0x00020000")
        A.e("buffer_load_dword v2, v1, s[8:11], 0 offen")
        A.e("s_mov_b32 s12, 32768")
        A.e("buffer_load_dword v3, v1, s[8:11], s12 offen")
        if PF.get("tlb"):
            import layout as LY
            A.e("s_load_dwordx2 s[12:13], s[0:1], 112")
            A.e("s_load_dwordx2 s[14:15], s[0:1], 96")
            A.e("s_load_dwordx2 s[16:17], s[0:1], 88")
            A.e("v_lshlrev_b32 v4, 16, v0")
            A.e("s_waitcnt lgkmcnt(0)")
            used = LY.KR_OFF + LY.KR_BYTES
            make_srd(A, 20, 12, 13, "0", used)
            A.e("buffer_load_dword v5, v4, s[20:23], 0 offen")
            A.e(f"s_mov_b32 s18, {256*65536}")
            A.e("buffer_load_dword v6, v4, s[20:23], s18 offen")
            make_srd(A, 24, 14, 15, "0", 2048*2304)
            A.e("buffer_load_dword v7, v4, s[24:27], 0 offen")
            make_srd(A, 28, 16, 17, "0", 576*1152)
            A.e("buffer_load_dword v8, v4, s[28:31], 0 offen")
        A.e("s_waitcnt vmcnt(0)")
    A.label("l1_kernel_end")
    A.e("s_endpgm")
    if PF.get("fused"): ssm_fused.emit_idx_table4(A, "l1_idxtab")
    else: emit_idx_table(A, "l1_idxtab")
    kernel_end(A, "l1_kernel", nv)
if __name__ == "__main__":
    hdr = open("concat_heads__ssm_conv_s4__softmax_full_mha__prompt.s.ref").read().split("; Override")[0]
    A = Asm()
    A.raw(hdr.rstrip())
    A.raw(f"; @launch kernel=l1_kernel grid=({L1_WGS},1,1) block=(256,1,1) lds={L1_LDS}")
    A.raw('.amdgcn_target "amdgcn-amd-amdhsa--gfx950"')
    import asmlib, l1gemm
    import ssm
    for k in sys.argv[4:]:
        if k.startswith('exit='): ssm.SOPT['exit'] = int(k[5:])
        else: l1gemm.OPT[k] = True
    if len(sys.argv) > 3: asmlib.STAMPS["on"] = True
    gen_l1(A, sys.argv[2] if len(sys.argv) > 2 and sys.argv[2] != "all" else None)
    A.raw(".text"); A.label("text_end")
    open(sys.argv[1], "w").write(A.text())
```

```python
import sys; sys.path.insert(0, "work")
from asmlib import *
import layout as LY
import numpy as np, math, struct
def f32bits(x): return struct.unpack("<I", struct.pack("<f", x))[0]
def rnd_bf16_int(l):
    u = struct.unpack("<I", struct.pack("<f", float(l)))[0]
    u = (u + 0x7FFF + ((u >> 16) & 1)) & 0xFFFF0000
    return int(struct.unpack("<f", struct.pack("<I", u))[0])
def rowcol(lp):
    if lp < 256: return lp % 8, lp // 8
    if lp < 512: return 8 + (lp % 8)//2, (lp-256)//8
    if lp < 1024: return 12 + 2*((lp-512)//256) + (lp % 8)//4, ((lp-512) % 256)//8
    return 16 + (lp-1024)//256, ((lp-1024) % 256)//8
TZERO = 24*64
def idx_table4():
    t = []
    for r in range(4):
        for y in range(2048):
            idx = y - r
            if idx >= 0:
                rr, c = rowcol(rnd_bf16_int(idx)); t.append((rr*32 + c)*2)
            else: t.append(TZERO)
    return t
def emit_idx_table4(A, tabname):
    t = idx_table4()
    A.raw(".p2align 4")
    A.raw(f".type {tabname},@object")
    A.label(tabname)
    for i in range(0, len(t), 16):
        A.raw("  .short " + ", ".join(str(x) for x in t[i:i+16]))
    A.raw(f".size {tabname}, {len(t)*2}")

UCH = 4608; R = 9216; NSTR = 240; TBL = 64*NSTR; KCP = 4160; KCH = 4*KCP
TOFF = R + 2*KCH; EXC = R + 40960
STG = R + 4*TBL
SSM_LDS = STG + 8192
FLG = STG
POLLS = 2000

SOPT = {}
def gen_ssm_role(A, name, first_wg, tabname):
    def maybe_exit(i):
        if SOPT.get('exit') == i: A.e('s_endpgm')
    LANE, T0, T1, T2, T3 = 0, 1, 2, 3, 4
    DSK = 5
    RAW = 8
    DT = 14
    UR = 16
    IDX = 24
    G1, G2, G4, G8, H, W, CA, CB, EA, EB, TMP, TMP2 = 56, 58, 60, 62, 64, 66, 68, 70, 72, 74, 76, 78
    S0, S1, S2, S3 = 80, 81, 82, 83
    AWR, AA, AB = 84, 85, 86
    PX = 88
    PE = 96
    FA, FB = 104, 108
    FA2, FB2 = 112, 116
    ACC = 120
    A.e("s_load_dwordx8 s[4:11], s[0:1], 8")
    A.e("s_load_dwordx4 s[12:15], s[0:1], 40")
    A.e("s_load_dwordx2 s[16:17], s[0:1], 56")
    A.e("s_load_dwordx2 s[18:19], s[0:1], 112")
    A.e("s_load_dwordx2 s[64:65], s[0:1], 0")
    A.e("s_load_dwordx2 s[66:67], s[0:1], 104")
    A.e("s_load_dwordx2 s[78:79], s[0:1], 64")
    stamp(A, 0); stamp_rt0(A)
    A.e(f"v_lshrrev_b32 v{T0}, 6, v0")
    A.e(f"v_and_b32 v{LANE}, 63, v0")
    A.e(f"v_readfirstlane_b32 s28, v{T0}")
    A.e(f"s_sub_u32 s29, s2, {first_wg}")
    A.e("s_lshl_b32 s29, s29, 1")
    A.e("s_lshr_b32 s26, s28, 1")
    A.e("s_and_b32 s27, s28, 1")
    A.e("s_add_u32 s25, s29, s26")
    A.e("s_getpc_b64 s[20:21]")
    A.label(f"{name}_pc")
    A.e(f"s_add_u32 s20, s20, {tabname}-{name}_pc")
    A.e("s_addc_u32 s21, s21, 0")
    A.e(f"s_sub_u32 s68, s2, {first_wg}")
    A.e("s_mul_i32 s69, s68, 7282")
    A.e("s_lshr_b32 s69, s69, 16")
    A.e("s_mul_i32 s70, s69, 9")
    A.e("s_sub_u32 s70, s68, s70")
    A.e("s_waitcnt lgkmcnt(0)")
    make_srd(A, 60, 64, 65, "0", 2048*1152)
    A.e(f"v_lshrrev_b32 v{T1}, 3, v{LANE}")
    A.e(f"v_mul_u32_u24 v{T1}, 1152, v{T1}")
    A.e(f"v_and_b32 v{T2}, 7, v{LANE}")
    A.e(f"v_lshl_add_u32 v{T1}, v{T2}, 4, v{T1}")
    A.e("s_lshl_b32 s22, s69, 6")
    A.e("s_lshl_b32 s23, s28, 4")
    A.e("s_add_u32 s22, s22, s23")
    A.e("s_mul_i32 s22, s22, 1152")
    A.e("s_lshl_b32 s23, s70, 7")
    A.e("s_add_u32 s22, s22, s23")
    A.e("s_lshl_b32 s23, s28, 11")
    A.e(f"s_add_u32 s23, s23, {STG}")
    A.e("s_mov_b32 m0, s23")
    A.e("s_nop 0")
    A.e(f"buffer_load_dwordx4 v{T1}, s[60:63], s22 offen lds")
    A.e(f"s_add_u32 s22, s22, {8*1152}")
    A.e("s_add_u32 m0, s23, 1024")
    A.e("s_nop 0")
    A.e(f"buffer_load_dwordx4 v{T1}, s[60:63], s22 offen lds")
    A.e(f"v_lshlrev_b32 v{T0}, 1, v{LANE}")
    A.e("s_lshl_b32 s31, s25, 8")
    A.e("s_lshl_b32 s22, s27, 7")
    A.e("s_add_u32 s31, s31, s22")
    for i, p in enumerate((4, 6, 8, 10, 12, 14)):
        A.e(f"s_mov_b32 s{32+4*i}, s{p}")
        A.e(f"s_mov_b32 s{33+4*i}, s{p+1}")
        A.e(f"s_mov_b32 s{34+4*i}, {576*256}")
        A.e(f"s_mov_b32 s{35+4*i}, 0x00020000")
        A.e(f"buffer_load_ushort v{RAW+i}, v{T0}, s[{32+4*i}:{35+4*i}], s31 offen")
    make_srd(A, 56, 16, 17, "0", 1152)
    A.e("s_lshl_b32 s22, s25, 1")
    A.e(f"v_mov_b32 v{T2}, s22")
    A.e(f"buffer_load_ushort v{DT}, v{T2}, s[56:59], 0 offen")
    make_srd(A, 56, 78, 79, "0", 1152)
    A.e(f"buffer_load_ushort v{DSK}, v{T2}, s[56:59], 0 offen")
    A.e(f"s_mul_i32 s30, s28, {TBL}")
    A.e(f"s_add_u32 s30, s30, {R}")
    A.e(f"v_mul_u32_u24 v{AWR}, {NSTR}, v{LANE}")
    A.e(f"v_add_u32 v{AWR}, s30, v{AWR}")
    A.e(f"v_lshrrev_b32 v{T1}, 5, v{LANE}")
    A.e(f"v_lshrrev_b32 v{T2}, 2, v{LANE}")
    A.e(f"v_and_b32 v{T2}, 3, v{T2}")
    A.e(f"v_lshrrev_b32 v{T3}, 1, v{T2}")
    A.e(f"v_lshl_add_u32 v{T3}, v{T1}, 2, v{T3}")
    A.e(f"v_mul_u32_u24 v{AA}, {NSTR}, v{T3}")
    A.e(f"v_add_u32 v{AA}, s30, v{AA}")
    A.e(f"v_lshrrev_b32 v{T3}, 4, v{LANE}")
    A.e(f"v_and_b32 v{T3}, 1, v{T3}")
    A.e(f"v_lshlrev_b32 v{T3}, 5, v{T3}")
    A.e(f"v_and_b32 v{T1}, 3, v{LANE}")
    A.e(f"v_lshl_add_u32 v{T3}, v{T1}, 3, v{T3}")
    A.e(f"v_add_u32 v{AA}, v{AA}, v{T3}")
    A.e(f"v_and_b32 v{T2}, 1, v{T2}")
    A.e(f"v_mul_u32_u24 v{T1}, 64, v{T2}")
    A.e(f"v_add3_u32 v{AB}, v{AA}, v{T1}, 0")
    A.e(f"v_add_u32 v{AB}, 96, v{AB}")
    A.e(f"v_mul_u32_u24 v{T1}, 48, v{T2}")
    A.e(f"v_add_u32 v{AA}, v{AA}, v{T1}")
    for r in range(16): A.e(f"v_mov_b32 v{ACC+r}, 0")
    stamp(A, 1)
    maybe_exit(1)
    A.e("s_waitcnt vmcnt(8)")
    A.e("s_barrier")
    A.e(f"v_lshrrev_b32 v{T1}, 4, v{LANE}")
    A.e(f"v_lshrrev_b32 v{T2}, 2, v{LANE}")
    A.e(f"v_and_b32 v{T2}, 3, v{T2}")
    A.e(f"v_lshl_add_u32 v{T2}, v{T1}, 3, v{T2}")
    A.e(f"v_lshlrev_b32 v{T2}, 7, v{T2}")
    A.e(f"v_and_b32 v{T3}, 3, v{LANE}")
    A.e(f"v_lshl_add_u32 v{T2}, v{T3}, 3, v{T2}")
    A.e("s_lshl_b32 s22, s28, 5")
    A.e(f"s_add_u32 s22, s22, {STG}")
    A.e(f"v_add_u32 v{T2}, s22, v{T2}")
    for hf in range(2):
        A.e(f"ds_read_b64_tr_b16 {vr(UR+4*hf,2)}, v{T2} offset:{hf*32*128}")
        A.e(f"ds_read_b64_tr_b16 {vr(UR+4*hf+2,2)}, v{T2} offset:{hf*32*128+4*128}")
    A.e(f"v_and_b32 v{T3}, 15, v{LANE}")
    A.e(f"v_lshlrev_b32 v{T3}, 12, v{T3}")
    A.e(f"v_lshl_add_u32 v{T3}, v{T1}, 4, v{T3}")
    make_srd(A, 72, 18, 19, str(LY.UT_OFF), 576*4096)
    A.e("s_lshl_b32 s22, s70, 6")
    A.e("s_lshl_b32 s23, s28, 4")
    A.e("s_add_u32 s22, s22, s23")
    A.e("s_lshl_b32 s22, s22, 12")
    A.e("s_lshl_b32 s23, s69, 7")
    A.e("s_add_u32 s22, s22, s23")
    A.e("s_waitcnt lgkmcnt(0)")
    A.e(f"buffer_store_dwordx4 {vr(UR,4)}, v{T3}, s[72:75], s22 offen sc1")
    A.e(f"buffer_store_dwordx4 {vr(UR+4,4)}, v{T3}, s[72:75], s22 offen offset:64 sc1")
    stamp(A, 2)
    maybe_exit(2)
    A.e("s_waitcnt vmcnt(2)")
    L_hi = float(np.float32(math.log2(math.e))); L_lo = math.log2(math.e) - L_hi
    A.e(f"v_lshlrev_b32 v{DT}, 16, v{DT}")
    A.e(f"s_mov_b32 s22, 0x{f32bits(L_hi):x}")
    A.e(f"s_mov_b32 s23, 0x{f32bits(L_lo):x}")
    A.e(f"v_mul_f32 v{S0}, s22, v{DT}")
    A.e(f"v_fma_f32 v{S1}, v{DT}, s22, -v{S0}")
    A.e(f"v_fma_f32 v{S1}, v{DT}, s23, v{S1}")
    A.e(f"v_exp_f32 v{S0}, v{S0}")
    A.e(f"v_mul_f32 v{S1}, 0x{f32bits(math.log(2.0)):x}, v{S1}")
    A.e(f"v_fma_f32 v{S0}, v{S0}, v{S1}, v{S0}")
    A.e(f"v_cvt_pk_bf16_f32 v{S0}, v{S0}, v{S0}")
    A.e(f"v_and_b32 v{DT}, 0xffff0000, v{S0}")
    for i in range(6): A.e(f"v_lshlrev_b32 v{RAW+i}, 16, v{RAW+i}")
    def cmul(D, X, G, TM=TMP):
        A.e(f"v_pk_mul_f32 {vr(TM,2)}, {vr(X,2)}, {vr(G,2)} op_sel_hi:[1,0]")
        A.e(f"v_pk_fma_f32 {vr(D,2)}, {vr(X,2)}, {vr(G,2)}, {vr(TM,2)} op_sel:[1,1,0] op_sel_hi:[0,1,1] neg_lo:[0,1,0]")
    A.e(f"v_mul_f32 v{S0}, v{DT}, v{RAW+0}")
    A.e(f"v_mul_f32 v{S1}, v{DT}, v{RAW+1}")
    A.e(f"v_mul_f32 v{S2}, 0x{f32bits(math.log2(math.e)):x}, v{S0}")
    A.e(f"v_mul_f32 v{S3}, 0x{f32bits(1.0/(2*math.pi)):x}, v{S1}")
    for (G, m) in ((G1, 1.0), (G8, 8.0), (H, 256.0)):
        A.e(f"v_mul_f32 v{S0}, 0x{f32bits(m):x}, v{S2}")
        A.e(f"v_mul_f32 v{S1}, 0x{f32bits(m):x}, v{S3}")
        A.e(f"v_exp_f32 v{S0}, v{S0}")
        A.e(f"v_fract_f32 v{S1}, v{S1}")
        A.e("s_nop 0")
        A.e(f"v_cos_f32 v{G}, v{S1}")
        A.e(f"v_sin_f32 v{G+1}, v{S1}")
        A.e("s_nop 0")
        A.e(f"v_mul_f32 v{G}, v{G}, v{S0}")
        A.e(f"v_mul_f32 v{G+1}, v{G+1}, v{S0}")
    A.e(f"v_mul_f32 v{CA}, v{DT}, v{RAW+2}")
    A.e(f"v_mul_f32 v{CA+1}, v{DT}, v{RAW+3}")
    cmul(W, CA, RAW+4)
    cmul(G2, G1, G1, TMP2)
    cmul(G4, G2, G2)
    A.e(f"v_lshlrev_b32 v{T1}, 4, v{LANE}")
    A.e("s_lshl_b32 s22, s27, 13")
    A.e(f"v_add_u32 v{T1}, s22, v{T1}")
    for k in range(8):
        if k == 4: A.e(f"v_add_u32 v{T1}, 4096, v{T1}")
        A.e(f"global_load_dwordx4 {vr(IDX+4*k,4)}, v{T1}, s[20:21] offset:{1024*(k%4)}")
    def packX(p, a, b):
        A.e(f"v_cvt_pk_bf16_f32 v{PX+p}, v{a}, v{b}")
        A.e(f"v_cvt_pk_bf16_f32 v{PX+4+p}, -v{a+1}, -v{b+1}")
    def packE(p, a, b):
        A.e(f"v_cvt_pk_bf16_f32 v{PE+p}, v{a}, v{b}")
        A.e(f"v_cvt_pk_bf16_f32 v{PE+4+p}, v{a+1}, v{b+1}")
    def flushX(g):
        A.e(f"ds_write_b128 v{AWR}, {vr(PX,4)} offset:{16*g}")
        A.e(f"ds_write_b128 v{AWR}, {vr(PX+4,4)} offset:{48+16*g}")
    def flushE(g):
        A.e(f"ds_write_b128 v{AWR}, {vr(PE,4)} offset:{96+16*g}")
        A.e(f"ds_write_b128 v{AWR}, {vr(PE+4,4)} offset:{160+16*g}")
    xs = []
    xs.append(lambda: (cmul(CB, W, G1), packX(0, W, CB)))
    xs.append(lambda: (cmul(CA, CB, G1), cmul(CB, CA, G1), packX(1, CA, CB)))
    xs.append(lambda: (cmul(CA, CB, G1), cmul(CB, CA, G1), packX(2, CA, CB)))
    xs.append(lambda: (cmul(CA, CB, G1), cmul(CB, CA, G1), packX(3, CA, CB), flushX(0)))
    xs.append(lambda: (cmul(W, W, H), cmul(CB, W, G2), packX(0, W, CB)))
    xs.append(lambda: (cmul(CA, CB, G2), cmul(CB, CA, G2), packX(1, CA, CB)))
    xs.append(lambda: (cmul(W, W, H), cmul(CB, W, G4), packX(2, W, CB)))
    xs.append(lambda: (cmul(W, W, H), cmul(CB, W, G4), packX(3, W, CB), flushX(1)))
    xs.append(lambda: (cmul(CA, W, H), cmul(CB, CA, H), packX(0, CA, CB)))
    xs.append(lambda: (cmul(CA, CB, H), cmul(CB, CA, H), packX(1, CA, CB)))
    xs.append(lambda: (cmul(CA, CB, H), packX(2, CA, CA), packX(3, CA, CA), flushX(2)))
    es = []
    def e01():
        A.e(f"v_mov_b32 v{EA}, 1.0"); A.e(f"v_mov_b32 v{EA+1}, 0")
        packE(0, EA, G8)
        cmul(EA, G8, G8, TMP2); cmul(EB, EA, G8, TMP2); packE(1, EA, EB)
    es.append(e01)
    for p in range(2, 16):
        def f(p=p):
            cmul(EA, EB, G8, TMP2); cmul(EB, EA, G8, TMP2); packE(p % 4, EA, EB)
            if p % 4 == 3: flushE(p//4)
        es.append(f)
    for i in range(15):
        es[i]()
        if i < len(xs): xs[i]()
    A.e("s_waitcnt vmcnt(0)")
    A.e("s_barrier")
    A.e("s_cmp_lg_u32 s28, 0")
    A.e(f"s_cbranch_scc1 {name}_nosig")
    make_srd(A, 76, 66, 67, "0", 256)
    A.e("s_lshl_b32 s22, s70, 4")
    A.e(f"v_mov_b32 v{T1}, s22")
    A.e(f"v_mov_b32 v{T2}, 1")
    A.e("s_mov_b64 exec, 1")
    A.e(f"buffer_atomic_add v{T2}, v{T1}, s[76:79], 0 offen sc1")
    A.e("s_mov_b64 exec, -1")
    A.label(f"{name}_nosig")
    A.e(f"v_mov_b32 v{S0}, 0"); A.e(f"v_mov_b32 v{S1}, 0")
    A.e(f"v_lshlrev_b32 v{T1}, 3, v{LANE}")
    A.e(f"s_mul_i32 s22, s26, {UCH}")
    A.e(f"v_add_u32 v{T1}, s22, v{T1}")
    A.e(f"ds_write_b64 v{T1}, {vr(S0,2)}")
    A.e("s_waitcnt lgkmcnt(0)")
    stamp(A, 3)
    maybe_exit(3)
    def frd(fa, fb, s):
        for q in range(2):
            A.e(f"ds_read_b64_tr_b16 {vr(fa+2*q,2)}, v{AA} offset:{(8*s+2*q)*NSTR}")
            A.e(f"ds_read_b64_tr_b16 {vr(fb+2*q,2)}, v{AB} offset:{(8*s+2*q)*NSTR}")
    frd(FA, FB, 0)
    for s in range(8):
        fa, fb = (FA, FB) if s % 2 == 0 else (FA2, FB2)
        na, nb = (FA2, FB2) if s % 2 == 0 else (FA, FB)
        if s < 7:
            frd(na, nb, s+1); A.e("s_waitcnt lgkmcnt(4)")
        else: A.e("s_waitcnt lgkmcnt(0)")
        A.e(f"v_mfma_f32_32x32x16_bf16 {vr(ACC,16)}, {vr(fa,4)}, {vr(fb,4)}, {vr(ACC,16)}")
    A.e(f"v_lshlrev_b32 v{T1}, 4, v{LANE}")
    A.e(f"s_mul_i32 s22, s26, {2*TBL}")
    A.e(f"s_add_u32 s22, s22, {R+TBL}")
    A.e(f"v_add_u32 v{T1}, s22, v{T1}")
    A.e("s_nop 9")
    A.e("s_cmp_eq_u32 s27, 0")
    A.e(f"s_cbranch_scc1 {name}_c0")
    for g in range(3): A.e(f"ds_write_b128 v{T1}, {vr(ACC+4*g,4)} offset:{1024*g}")
    A.e("s_waitcnt lgkmcnt(0)")
    A.e("s_barrier")
    A.e("s_cmp_lg_u32 s28, 3")
    A.e(f"s_cbranch_scc1 {name}_c1")
    make_srd(A, 76, 66, 67, "0", 256)
    A.e("s_lshr_b32 s22, s25, 6")
    A.e("s_lshl_b32 s22, s22, 4")
    A.e(f"v_mov_b32 v{T1}, s22")
    A.e(f"s_mov_b32 s23, {POLLS}")
    A.e("s_mov_b32 s24, 1")
    A.label(f"{name}_poll")
    A.e(f"buffer_load_dword v{T2}, v{T1}, s[76:79], 0 offen sc1")
    A.e("s_waitcnt vmcnt(0)")
    A.e(f"v_readfirstlane_b32 s22, v{T2}")
    A.e("s_nop 3")
    A.e("s_cmp_ge_u32 s22, 32")
    A.e(f"s_cbranch_scc1 {name}_polled")
    A.e("s_sleep 16")
    A.e("s_sub_u32 s23, s23, 1")
    A.e("s_cmp_lg_u32 s23, 0")
    A.e(f"s_cbranch_scc1 {name}_poll")
    A.e("s_mov_b32 s24, 0")
    A.label(f"{name}_polled")
    A.e(f"v_mov_b32 v{T1}, {FLG}")
    A.e(f"v_mov_b32 v{T2}, s24")
    A.e(f"ds_write_b32 v{T1}, v{T2}")
    A.e(f"s_branch {name}_c1")
    A.label(f"{name}_c0")
    A.e("s_barrier")
    for g in range(3): A.e(f"ds_read_b128 {vr(FA+4*g,4)}, v{T1} offset:{1024*g}")
    A.e(f"v_and_b32 v{T2}, 31, v{LANE}")
    A.e(f"v_lshrrev_b32 v{T3}, 5, v{LANE}")
    A.e(f"v_lshlrev_b32 v{T2}, 1, v{T2}")
    A.e(f"v_lshl_add_u32 v{T2}, v{T3}, 8, v{T2}")
    A.e("s_lshl_b32 s22, s26, 11")
    A.e(f"s_add_u32 s22, s22, {TOFF}")
    A.e(f"v_add_u32 v{T2}, s22, v{T2}")
    A.e(f"v_mov_b32 v{T3}, s22")
    A.e(f"v_mov_b32 v{S0}, 0")
    A.e(f"ds_write_b32 v{T3}, v{S0} offset:{TZERO}")
    A.e("s_waitcnt lgkmcnt(1)")
    for g in range(3):
        for r in range(4): A.e(f"v_add_f32 v{ACC+4*g+r}, v{ACC+4*g+r}, v{FA+4*g+r}")
        A.e(f"v_cvt_pk_bf16_f32 v{S0}, v{ACC+4*g}, v{ACC+4*g+1}")
        A.e(f"v_cvt_pk_bf16_f32 v{S1}, v{ACC+4*g+2}, v{ACC+4*g+3}")
        A.e(f"ds_write_b16 v{T2}, v{S0} offset:{(8*g+0)*64}")
        A.e(f"ds_write_b16_d16_hi v{T2}, v{S0} offset:{(8*g+1)*64}")
        A.e(f"ds_write_b16 v{T2}, v{S1} offset:{(8*g+2)*64}")
        A.e(f"ds_write_b16_d16_hi v{T2}, v{S1} offset:{(8*g+3)*64}")
    A.label(f"{name}_c1")
    A.e("s_waitcnt vmcnt(0) lgkmcnt(0)")
    A.e("s_barrier")
    stamp(A, 4)
    maybe_exit(4)
    A.e(f"v_mov_b32 v{T1}, {FLG}")
    A.e(f"ds_read_b32 v{T2}, v{T1}")
    A.e("s_waitcnt lgkmcnt(0)")
    A.e(f"v_readfirstlane_b32 s24, v{T2}")
    A.e("s_nop 3")
    A.e("s_cmp_eq_u32 s24, 1")
    A.e(f"s_cbranch_scc1 {name}_ready")
    make_srd(A, 60, 64, 65, "0", 2048*1152)
    A.e(f"v_mul_u32_u24 v{T1}, 1152, v{LANE}")
    A.e(f"s_mul_i32 s22, s27, {1024*1152}")
    A.e("s_lshl_b32 s23, s25, 1")
    A.e("s_add_u32 s22, s22, s23")
    A.e(f"v_lshlrev_b32 v{T2}, 1, v{LANE}")
    A.e(f"s_mul_i32 s23, s26, {UCH}")
    A.e("s_lshl_b32 s68, s27, 11")
    A.e("s_add_u32 s23, s23, s68")
    A.e(f"v_add_u32 v{T2}, s23, v{T2}")
    for i in range(16):
        A.e(f"buffer_load_ushort v{T3}, v{T1}, s[60:63], s22 offen")
        A.e(f"s_add_u32 s22, s22, {64*1152}")
        A.e("s_waitcnt vmcnt(0)")
        A.e(f"ds_write_b16 v{T2}, v{T3} offset:{512+128*i}")
    A.e(f"s_branch {name}_udone2")
    A.label(f"{name}_ready")
    make_srd(A, 72, 18, 19, str(LY.UT_OFF), 576*4096)
    A.e(f"v_lshlrev_b32 v{T1}, 4, v{LANE}")
    A.e("s_lshl_b32 s22, s25, 12")
    A.e("s_lshl_b32 s23, s27, 11")
    A.e("s_add_u32 s22, s22, s23")
    A.e(f"buffer_load_dwordx4 {vr(UR,4)}, v{T1}, s[72:75], s22 offen sc1")
    A.e(f"buffer_load_dwordx4 {vr(UR+4,4)}, v{T1}, s[72:75], s22 offen offset:1024 sc1")
    A.label(f"{name}_udone2")
    A.e("s_lshl_b32 s22, s26, 11")
    A.e(f"s_add_u32 s22, s22, {TOFF}")
    A.e(f"v_mov_b32 v{T3}, s22")
    A.e(f"v_lshlrev_b32 v{T1}, 4, v{LANE}")
    A.e(f"s_mul_i32 s22, s26, {KCH}")
    A.e(f"s_mul_i32 s23, s27, {2*KCP}")
    A.e("s_add_u32 s22, s22, s23")
    A.e(f"s_add_u32 s22, s22, {R}")
    A.e(f"v_add_u32 v{T1}, s22, v{T1}")
    ADS = [56, 64]; OUTS = [72, 76]
    def gath(k):
        ad = ADS[k % 2]
        for e in range(8):
            A.e(f"v_add_u32_sdwa v{ad+e}, v{T3}, v{IDX+4*k+e//2} dst_sel:DWORD dst_unused:UNUSED_PAD src0_sel:DWORD src1_sel:WORD_{e%2}")
        for e in range(8): A.e(f"ds_read_u16 v{ad+e}, v{ad+e}")
    A.e(f"v_mov_b32 v{80}, 0"); A.e(f"v_mov_b32 v{81}, 0"); A.e(f"v_mov_b32 v{82}, 0"); A.e(f"v_mov_b32 v{83}, 0")
    A.e(f"v_cmp_gt_u32 vcc, 2, v{LANE}")
    A.e("s_and_saveexec_b64 s[70:71], vcc")
    A.e(f"ds_write_b128 v{T1}, {vr(80,4)}")
    A.e(f"ds_write_b128 v{T1}, {vr(80,4)} offset:{KCP}")
    A.e("s_mov_b64 exec, s[70:71]")
    gath(0)
    for k in range(8):
        ad = ADS[k % 2]; o = OUTS[k % 2]
        if k < 7:
            gath(k+1); A.e("s_waitcnt lgkmcnt(8)")
        else: A.e("s_waitcnt lgkmcnt(0)")
        for i in range(4): A.e(f"v_lshl_or_b32 v{o+i}, v{ad+2*i+1}, 16, v{ad+2*i}")
        A.e(f"ds_write_b128 v{T1}, {vr(o,4)} offset:{(k//4)*KCP + 32 + 1024*(k%4)}")
    A.e("s_cmp_eq_u32 s24, 0")
    A.e(f"s_cbranch_scc1 {name}_nouw")
    A.e(f"v_lshlrev_b32 v{T1}, 4, v{LANE}")
    A.e(f"s_mul_i32 s22, s26, {UCH}")
    A.e("s_lshl_b32 s23, s27, 11")
    A.e("s_add_u32 s22, s22, s23")
    A.e(f"v_add_u32 v{T1}, s22, v{T1}")
    A.e("s_waitcnt vmcnt(0)")
    A.e(f"ds_write_b128 v{T1}, {vr(UR,4)} offset:512")
    A.e(f"ds_write_b128 v{T1}, {vr(UR+4,4)} offset:1536")
    A.label(f"{name}_nouw")
    A.e("s_waitcnt lgkmcnt(0)")
    A.e("s_barrier")
    stamp(A, 5)
    maybe_exit(5)
    CACC = 8
    BF = 40
    AF = [72, 76]
    ACV, BCV = 80, 81
    A.e(f"v_lshrrev_b32 v{T1}, 2, v{LANE}")
    A.e(f"v_and_b32 v{T1}, 3, v{T1}")
    A.e(f"v_mul_u32_u24 v{ACV}, {KCP}, v{T1}")
    A.e(f"v_and_b32 v{T1}, 3, v{LANE}")
    A.e(f"v_lshl_add_u32 v{ACV}, v{T1}, 3, v{ACV}")
    A.e(f"v_lshrrev_b32 v{T2}, 4, v{LANE}")
    A.e(f"v_lshlrev_b32 v{T3}, 4, v{T2}")
    A.e(f"v_sub_u32 v{ACV}, v{ACV}, v{T3}")
    A.e(f"s_mul_i32 s22, s26, {KCH}")
    A.e(f"s_add_u32 s22, s22, {R+56}")
    A.e("s_lshl_b32 s23, s27, 8")
    A.e("s_add_u32 s22, s22, s23")
    A.e(f"v_add_u32 v{ACV}, s22, v{ACV}")
    A.e(f"v_and_b32 v{T1}, 15, v{LANE}")
    A.e(f"v_lshlrev_b32 v{BCV}, 5, v{T1}")
    A.e(f"v_add_u32 v{BCV}, v{BCV}, v{T3}")
    A.e(f"s_mul_i32 s22, s26, {UCH}")
    A.e(f"s_add_u32 s22, s22, 32")
    A.e("s_sub_u32 s23, 256, s23")
    A.e("s_add_u32 s22, s22, s23")
    A.e(f"v_add_u32 v{BCV}, s22, v{BCV}")
    for r in range(32): A.e(f"v_mov_b32 v{CACC+r}, 0")
    BFS = [40, 84]
    AFS = [72, 76, 116]
    def bread(x):
        return [f"ds_read_b128 {vr(BFS[x%2]+4*k,4)}, v{BCV} offset:{512*k + 192 - 64*x}" for k in range(8)]
    def ard(x, mu):
        off = 64*(8*mu + x); buf = AFS[(8*x + mu) % 3]
        return [f"ds_read_b64_tr_b16 {vr(buf,2)}, v{ACV} offset:{off+8}", f"ds_read_b64_tr_b16 {vr(buf+2,2)}, v{ACV} offset:{off}"]
    steps = [(x, mu) for x in range(4) for mu in range(8)]
    issued = []
    def issue(insts, tag):
        for l in insts:
            A.e(l); issued.append(tag)
    issue(bread(0), ("B", 0)); issue(ard(0, 0), ("A", 0)); issue(ard(0, 1), ("A", 1))
    for si, (x, mu) in enumerate(steps):
        last = max(i for i, t in enumerate(issued) if t == ("A", si) or t == ("B", x))
        A.e(f"s_waitcnt lgkmcnt({min(len(issued) - 1 - last, 15)})")
        pend = []
        if si + 2 < len(steps): pend += [(l, ("A", si+2)) for l in ard(*steps[si+2])]
        if mu >= 2 and mu <= 5 and x < 3:
            pend += [(l, ("B", x+1)) for l in bread(x+1)[2*(mu-2):2*(mu-2)+2]]
        ab = AFS[si % 3]
        for k in range(8-mu):
            A.e(f"v_mfma_f32_16x16x32_bf16 {vr(CACC+4*(mu+k),4)}, {vr(ab,4)}, {vr(BFS[x%2]+4*k,4)}, {vr(CACC+4*(mu+k),4)}")
            if pend:
                l, t = pend.pop(0); A.e(l); issued.append(t)
        for l, t in pend:
            A.e(l); issued.append(t)
    stamp(A, 6 - 1) if False else None
    A.e(f"v_lshlrev_b32 v{T1}, 4, v{LANE}")
    A.e("s_lshl_b32 s22, s28, 12")
    A.e(f"s_add_u32 s22, s22, {EXC}")
    A.e(f"v_add_u32 v{T2}, s22, v{T1}")
    A.e("s_xor_b32 s23, s28, 1")
    A.e("s_lshl_b32 s23, s23, 12")
    A.e(f"s_add_u32 s23, s23, {EXC}")
    A.e(f"v_add_u32 v{T3}, s23, v{T1}")
    A.e("s_nop 4")
    A.e("s_cmp_eq_u32 s27, 0")
    A.e(f"s_cbranch_scc1 {name}_e0")
    for t in range(4): A.e(f"ds_write_b128 v{T2}, {vr(CACC+4*t,4)} offset:{1024*t}")
    for r in range(16): A.e(f"v_mov_b32 v{CACC+r}, v{CACC+16+r}")
    A.e(f"s_branch {name}_e1")
    A.label(f"{name}_e0")
    for t in range(4): A.e(f"ds_write_b128 v{T2}, {vr(CACC+16+4*t,4)} offset:{1024*t}")
    A.label(f"{name}_e1")
    A.e("s_waitcnt lgkmcnt(0)")
    A.e("s_barrier")
    for t in range(4): A.e(f"ds_read_b128 {vr(BF+4*t,4)}, v{T3} offset:{1024*t}")
    A.e("s_lshl_b32 s22, s25, 12")
    A.e(f"s_add_u32 s22, s22, {LY.YT_OFF}")
    make_srd(A, 56, 18, 19, "s22", 4096)
    A.e(f"v_and_b32 v{T1}, 15, v{LANE}")
    A.e(f"v_lshlrev_b32 v{T1}, 5, v{T1}")
    A.e(f"v_lshrrev_b32 v{T2}, 4, v{LANE}")
    A.e(f"v_lshl_add_u32 v{T1}, v{T2}, 3, v{T1}")
    A.e("s_lshl_b32 s22, s27, 11")
    A.e(f"s_mul_i32 s23, s26, {UCH}")
    A.e("s_add_u32 s23, s23, s22")
    A.e(f"v_add_u32 v{T2}, s23, v{T1}")
    for t in range(4): A.e(f"ds_read_b64 {vr(84+2*t,2)}, v{T2} offset:{512+512*t}")
    A.e(f"v_lshlrev_b32 v{92}, 16, v{DSK}")
    A.e(f"v_lshlrev_b32 v{93}, 16, v{DSK}")
    A.e("s_waitcnt lgkmcnt(0)")
    W = 96
    for t in range(4):
        a = CACC + 4*t; u = 84 + 2*t
        for r in range(4): A.e(f"v_add_f32 v{a+r}, v{a+r}, v{BF+4*t+r}")
        A.e(f"v_cvt_pk_bf16_f32 v{a}, v{a}, v{a+1}")
        A.e(f"v_cvt_pk_bf16_f32 v{a+1}, v{a+2}, v{a+3}")
        for k in range(2):
            A.e(f"v_lshlrev_b32 v{W}, 16, v{u+k}")
            A.e(f"v_and_b32 v{W+1}, 0xffff0000, v{u+k}")
            A.e(f"v_pk_mul_f32 {vr(W,2)}, {vr(W,2)}, {vr(92,2)}")
            A.e(f"v_cvt_pk_bf16_f32 v{W}, v{W}, v{W+1}")
            A.e(f"v_lshlrev_b32 v{W+2}, 16, v{a+k}")
            A.e(f"v_and_b32 v{W+3}, 0xffff0000, v{a+k}")
            A.e(f"v_and_b32 v{W+1}, 0xffff0000, v{W}")
            A.e(f"v_lshlrev_b32 v{W}, 16, v{W}")
            A.e(f"v_pk_add_f32 {vr(W,2)}, {vr(W,2)}, {vr(W+2,2)}")
            A.e(f"v_cvt_pk_bf16_f32 v{a+k}, v{W}, v{W+1}")
        A.e(f"buffer_store_dwordx2 {vr(a,2)}, v{T1}, s[56:59], s22 offen offset:{512*t}")
    stamp_dump(A, 18, 28, 4)
    RT["wave"]=28; rt_exit(A, 0, 4); A.e("s_endpgm")
    return 136
```
